```python
import torch

def _softmax(x, axis=-1):
    return torch.softmax(x, dim=axis)
def _gelu(x):
    return torch.nn.functional.gelu(x, approximate="tanh")
def _silu(x):
    return torch.nn.functional.silu(x)
def _sigmoid(x):
    return torch.sigmoid(x)
def _layernorm(x, axis=-1, eps=1e-5):
    m = x.mean(dim=axis, keepdim=True)
    v = x.var(dim=axis, keepdim=True, unbiased=False)
    return (x - m) / torch.sqrt(v + eps)
def _scatter_add(tgt, idx, src, axis=0):
    return tgt.clone().index_add_(axis, idx, src)
def _segment_sum(src, seg, n):
    out = torch.zeros((n,) + src.shape[1:], dtype=src.dtype)
    return out.index_add_(0, seg, src)
def _pad(x, pw):
    flat = tuple(v for pair in reversed(pw) for v in pair)
    return torch.nn.functional.pad(x, flat)

kernel_name = 'concat_heads__mha_block__ssm_conv_s4d__prompt'

def setup_inputs():

    _w = (lambda a: (lambda t: t.to(torch.bfloat16) if t.is_floating_point() else t)(torch.as_tensor(a)))
    def _A_setup():
        B, S, D, H = 1, 2048, 448, 16
        return {
            "x": _w((lambda *s: torch.randn(*s, dtype=torch.bfloat16) * 0.2)(B, S, D)),
            "wqkv": _w((lambda *s: torch.randn(*s, dtype=torch.bfloat16) * 0.2)(D, 3 * D)),
            "wo": _w((lambda *s: torch.randn(*s, dtype=torch.bfloat16) * 0.05)(D, D)),
        }
    _A_in = _A_setup()

    def _B_setup():
        Bsz, L, D, N = 1, 2048, 448, 256
        return {
            "u": _w((lambda *s: torch.randn(*s, dtype=torch.bfloat16) * 0.05)(Bsz, L, D)),
            "log_A_real": _w((lambda *s: torch.randn(*s, dtype=torch.bfloat16) * 6.4)(D, N) * 0.5),
            "A_imag": _w((lambda *s: torch.randn(*s, dtype=torch.bfloat16) * 0.1)(D, N) * 3.14),
            "C_real": _w((lambda *s: torch.randn(*s, dtype=torch.bfloat16) * 0.4)(D, N) / N ** 0.5),
            "C_imag": _w((lambda *s: torch.randn(*s, dtype=torch.bfloat16) * 0.4)(D, N) / N ** 0.5),
            "log_dt": _w((lambda *s: torch.randn(*s, dtype=torch.bfloat16) * 0.1)(D) * 0.5 - 4.0),
            "D_skip": _w((lambda *s: torch.randn(*s, dtype=torch.bfloat16) * 0.1)(D)),
        }
    _B_in = _B_setup()

    return {
        "A_x": _A_in["x"],
        "A_wqkv": _A_in["wqkv"],
        "A_wo": _A_in["wo"],
        "B_u": _B_in["u"],
        "B_log_A_real": _B_in["log_A_real"],
        "B_A_imag": _B_in["A_imag"],
        "B_C_real": _B_in["C_real"],
        "B_C_imag": _B_in["C_imag"],
        "B_log_dt": _B_in["log_dt"],
        "B_D_skip": _B_in["D_skip"],
    }

def reference(A_x, A_wqkv, A_wo, B_u, B_log_A_real, B_A_imag, B_C_real, B_C_imag, B_log_dt, B_D_skip):
    def _A_ref(x, wqkv, wo):
        B, S, D = x.shape
        H = 16
        Dh = D // H
        qkv = (lambda x, *d: x.permute(*d))((x @ wqkv).reshape(B, S, 3, H, Dh), 2, 0, 3, 1, 4)
        q, k, v = qkv[0], qkv[1], qkv[2]
        scores = torch.einsum("bhqd,bhkd->bhqk", q, k) * (Dh ** -0.5)
        p = _softmax(scores, axis=-1)
        o = torch.einsum("bhqk,bhkd->bhqd", p, v)
        return (lambda x, *d: x.permute(*d))(o, 0, 2, 1, 3).reshape(B, S, D) @ wo

    def _B_ref(u, log_A_real, A_imag, C_real, C_imag, log_dt, D_skip):
        L = u.shape[1]
        dt = torch.exp(log_dt)
        A = -torch.exp(log_A_real) + 1j * A_imag
        C = (C_real + 1j * C_imag) * dt[:, None]
        pos = (lambda x, dt: x.to(dt))(torch.arange(L), log_dt.dtype)
        P = torch.exp((A * dt[:, None])[:, :, None] * pos[None, None, :])
        K = 2.0 * torch.einsum("dn,dnl->dl", C, P).real
        L2 = 2 * L
        u_t = (lambda x, *d: x.permute(*d))(u, 0, 2, 1)
        Kf = (lambda x, *a, **k: torch.fft.rfft(x.float(), *a, **k))(K, L2)
        Uf = (lambda x, *a, **k: torch.fft.rfft(x.float(), *a, **k))(u_t, L2)
        y = (lambda x, *a, **k: torch.fft.irfft(x, *a, **k).to(torch.bfloat16))(Uf * Kf[None, :, :], L2)[:, :, :L]
        y = (lambda x, *d: x.permute(*d))(y, 0, 2, 1)
        return y + u * D_skip[None, None, :]

    a = _A_ref(A_x, A_wqkv, A_wo)
    b = _B_ref(B_u, B_log_A_real, B_A_imag, B_C_real, B_C_imag, B_log_dt, B_D_skip)
    return torch.concatenate([a, b], axis=-1)
```

```python
class Asm:
    def __init__(self):
        self.lines = []
        self.uid = 0
    def __call__(self, s):
        for l in s.strip("\n").split("\n"):
            l = l.strip()
            if not l: continue
            if l.endswith(":") and " " not in l: self.lines.append(l)
            else: self.lines.append("    " + l)
    def label(self, n): self.lines.append(n + ":")
    def newlabel(self, p="L"):
        self.uid += 1
        return f"{p}_{self.uid}"
    def text(self): return "\n".join(self.lines) + "\n"

def vr(a, n=1):
    return f"v{a}" if n == 1 else f"v[{a}:{a+n-1}]"
def sr(a, n=1):
    return f"s{a}" if n == 1 else f"s[{a}:{a+n-1}]"

QBUF = 0x000000
KBUF = 0x200000
VBUF = 0x400000
OBUF = 0x600000
UTB  = 0x800000
YTB  = 0xA00000
KPL  = 0x1000000
FLG  = 0xC00000
STAMP = 0xF00000
WS_SIZE = 0x2000000
TILEB = 28672

KA_X, KA_WQKV, KA_WO, KA_U, KA_LOGA, KA_AIM, KA_CR, KA_CI, KA_LOGDT, KA_DSKIP, KA_OUT, KA_DBG, KA_WS = [8*i for i in range(13)]

def f32bits(x):
    import struct
    return struct.unpack("<I", struct.pack("<f", x))[0]

def interleave(main, fill, per=None):
    out = []
    n = len(main)
    k = 0
    for i, m in enumerate(main):
        out.append(m)
        tgt = (len(fill) * (i + 1) + n - 1) // n if per is None else min(len(fill), per * (i + 1))
        while k < tgt:
            out.append(fill[k]); k += 1
    out += fill[k:]
    return out

def kdesc(name, vgpr, sgpr=96, accum=None):
    accum = accum or ((vgpr + 3) // 4 * 4)
    return f""".section .rodata,"a"
.p2align 6
.amdhsa_kernel {name}
  .amdhsa_next_free_vgpr {vgpr}
  .amdhsa_next_free_sgpr {sgpr}
  .amdhsa_accum_offset {accum}
  .amdhsa_group_segment_fixed_size 0
  .amdhsa_kernarg_size 104
  .amdhsa_user_sgpr_count 2
  .amdhsa_user_sgpr_kernarg_segment_ptr 1
  .amdhsa_system_sgpr_workgroup_id_x 1
.end_amdhsa_kernel
"""
def khead(name):
    return f""".text
.globl {name}
.p2align 8
.type {name},@function
{name}:
"""

STAMPS_ON = False
def stamp(a, idx):
    if STAMPS_ON: a(f"s_memrealtime s[{64+2*idx}:{65+2*idx}]")
def stamp_flush(a, kern, n, S_WS=4, S_WAVE=44):
    if not STAMPS_ON: return
    a(f"s_waitcnt vmcnt(0)\ns_memrealtime s[{64+2*(n-1)}:{65+2*(n-1)}]\ns_waitcnt lgkmcnt(0)")
    a(f"s_lshl_b32 s62, s2, 3\ns_add_u32 s62, s62, s{S_WAVE}\ns_lshl_b32 s62, s62, 6\ns_add_u32 s62, s62, {STAMP + kern*0x20000}")
    a("v_mov_b32 v1, 0")
    for i in range(n):
        a(f"v_mov_b32 v2, s{64+2*i}\nbuffer_store_dword v2, v1, s[{S_WS}:{S_WS+3}], s62 offen offset:{4*i}")
```

```python
from common import *
import common
import math
CS = (28 ** -0.5) * math.log2(math.e)

S_WS, S_X, S_W, S_WO, S_U, S_OUT, S_LA, S_AI, S_CR, S_CI = 4, 8, 12, 16, 20, 24, 28, 32, 36, 40
S_WAVE, S_J, S_RB, S_H, S_B = 44, 45, 46, 47, 48
S_T = 50
S_KA = 64

def srd(a, dst, ka_off, size):
    src = S_KA + ka_off // 4
    a(f"s_mov_b32 s{dst}, s{src}")
    a(f"s_mov_b32 s{dst+1}, s{src+1}")
    a(f"s_mov_b32 s{dst+2}, {size}")
    a(f"s_mov_b32 s{dst+3}, 0x00020000")

def prologue(a, need, exit_label, limit224):
    a(f"""
    s_cmp_ge_u32 s2, 256
    s_cbranch_scc1 {exit_label}
    s_load_dwordx16 s[{S_KA}:{S_KA+15}], s[0:1], 0
    s_load_dwordx8 s[{S_KA+16}:{S_KA+23}], s[0:1], 64
    s_load_dwordx2 s[{S_KA+24}:{S_KA+25}], s[0:1], 96
    v_lshrrev_b32 v1, 6, v0
    s_and_b32 s{S_T}, s2, 7
    s_lshr_b32 s{S_T+1}, s2, 3
    v_readfirstlane_b32 s{S_WAVE}, v1
    v_and_b32 v0, 63, v0
    s_and_b32 s{S_T+2}, s{S_T+1}, 1
    s_lshl_b32 s{S_H}, s{S_T}, 1
    s_add_u32 s{S_H}, s{S_H}, s{S_T+2}
    s_lshr_b32 s{S_B}, s2, 4
    ; t = (x&1)*28 + i ; j = t>>3 ; rb = (x>>1)*8 + (t&7)
    s_and_b32 s{S_T+2}, s{S_T}, 1
    s_mul_i32 s{S_T+2}, s{S_T+2}, 28
    s_add_u32 s{S_T+2}, s{S_T+2}, s{S_T+1}
    s_lshr_b32 s{S_J}, s{S_T+2}, 3
    s_and_b32 s{S_T+2}, s{S_T+2}, 7
    s_lshr_b32 s{S_RB}, s{S_T}, 1
    s_lshl_b32 s{S_RB}, s{S_RB}, 3
    s_add_u32 s{S_RB}, s{S_RB}, s{S_T+2}
    """)
    if limit224:
        a(f"s_cmp_ge_u32 s{S_T+1}, 28")
        a(f"s_cbranch_scc1 {exit_label}")
    a("s_waitcnt lgkmcnt(0)")
    tbl = dict(ws=(S_WS, KA_WS, WS_SIZE), x=(S_X, KA_X, 1835008), w=(S_W, KA_WQKV, 1204224), wo=(S_WO, KA_WO, 401408),
               u=(S_U, KA_U, 1835008), out=(S_OUT, KA_OUT, 3670016), la=(S_LA, KA_LOGA, 229376), ai=(S_AI, KA_AIM, 229376),
               cr=(S_CR, KA_CR, 229376), ci=(S_CI, KA_CI, 229376))
    for n in need:
        srd(a, *tbl[n])
    stamp(a, 0)

class VM:
    def __init__(self): self.q = []
    def issue(self, tag): self.q.append(tag)
    def wait_for(self, tag):
        idx = max(i for i, t in enumerate(self.q) if t == tag)
        n = len(self.q) - 1 - idx
        assert n <= 63
        return n

STORE_FLAGS = ""
LOAD_FLAGS = ""

def gemm_qkv(a, nbar_out, RING=0):
    vXa, vXb, vWa, vWb = 2, 3, 4, 5
    vXr = [6, 7, 8, 9]
    vWlo, vWhi = 10, 11
    vKst, vVst = 12, 13
    vT0, vT1, vT2 = 14, 15, 1
    XF = 16
    WF = 128
    ACC = [192, 208]
    PK = 224
    sXo, sWo, sM, sKst, sVst, sV2, sQst, sTT, sCT, sCS = [S_T + i for i in range(10)]
    a(f"""
    v_lshrrev_b32 v{vT0}, 3, v0              ; rowl
    v_and_b32 v{vT1}, 7, v0                  ; slot
    s_lshl_b32 s{sM}, s{S_WAVE}, 4
    v_add_u32 v{vT2}, s{sM}, v{vT0}          ; 16w + rowl
    v_lshrrev_b32 v{vT0}, 1, v{vT0}          ; rowl>>1
    v_xor_b32 v{vXa}, v{vT1}, v{vT0}
    v_lshlrev_b32 v{vXa}, 4, v{vXa}
    v_mad_u32_u24 v{vXb}, v{vT2}, 56, 0
    v_lshlrev_b32 v{vXb}, 4, v{vXb}          ; row*896
    v_add_u32 v{vXa}, v{vXa}, v{vXb}
    v_xor_b32 v{vXb}, 64, v{vXa}
    v_add_u32 v{vXb}, {8*896}, v{vXb}
    v_and_b32 v{vT0}, 1, v{vT0}
    v_lshlrev_b32 v{vT0}, 2, v{vT0}
    v_xor_b32 v{vT0}, v{vT1}, v{vT0}
    v_lshlrev_b32 v{vT0}, 4, v{vT0}
    v_mul_u32_u24 v{vWa}, 2688, v{vT2}
    v_add_u32 v{vWa}, v{vWa}, v{vT0}
    v_add_u32 v{vWb}, {8*2688}, v{vWa}
    s_mul_i32 s{sXo}, s{S_RB}, {64*896}
    s_lshl_b32 s{sWo}, s{S_J}, 7
    s_lshl_b32 s{sM}, s{S_WAVE}, 11
    """)
    vm = VM()
    def chunk_list(s):
        if s < 7: return [("x", s), ("k", s)]
        seq = [("v", c) for c in range(7)] + [("q", c) for c in range(7)]
        return seq[2 * (s - 7): 2 * (s - 7) + 2]
    secoff = dict(q=0, k=896, v=1792)
    def dma(s):
        ins = []
        base = RING + (s % 7) * 16384
        for ci, (kind, c) in enumerate(chunk_list(s)):
            for half in range(2):
                blk = [f"s_add_u32 m0, s{sM}, {base + ci * 8192 + half * 1024}"]
                if kind == "x":
                    if half == 0: blk.append(f"s_add_u32 s{S_T+12}, s{sXo}, {128 * c}")
                    else: blk.append("s_nop 0")
                    blk.append(f"buffer_load_dwordx4 v{vXa if half == 0 else vXb}, s[{S_X}:{S_X+3}], s{S_T+12} offen lds")
                else:
                    if half == 0: blk.append(f"s_add_u32 s{S_T+13}, s{sWo}, {64 * c * 2688 + secoff[kind]}")
                    else: blk.append("s_nop 0")
                    blk.append(f"buffer_load_dwordx4 v{vWa if half == 0 else vWb}, s[{S_W}:{S_W+3}], s{S_T+13} offen lds")
                ins.append(("\n".join(blk), ("d", s)))
        return ins
    for s in range(7):
        for t, tag in dma(s):
            a(t); vm.issue(tag)
    a(f"""
    s_lshr_b32 s{sTT}, s{S_WAVE}, 1
    s_and_b32 s{sCT}, s{S_WAVE}, 1
    v_and_b32 v{vT0}, 31, v0
    v_lshrrev_b32 v{vT1}, 5, v0              ; hh
    v_lshrrev_b32 v{vT2}, 1, v{vT0}
    v_and_b32 v{vT2}, 7, v{vT2}
    v_xor_b32 v{vT2}, v{vT2}, v{vT1}
    v_lshlrev_b32 v{vT2}, 4, v{vT2}
    v_lshl_add_u32 v{vXr[0]}, v{vT0}, 7, v{vT2}
    s_lshl_b32 s{S_T+12}, s{sTT}, 12
    v_add_u32 v{vXr[0]}, s{S_T+12}, v{vXr[0]}
    v_xor_b32 v{vXr[1]}, 32, v{vXr[0]}
    v_xor_b32 v{vXr[2]}, 64, v{vXr[0]}
    v_xor_b32 v{vXr[3]}, 96, v{vXr[0]}
    v_add_u32 v{vXr[0]}, {RING}, v{vXr[0]}
    v_add_u32 v{vXr[1]}, {RING}, v{vXr[1]}
    v_add_u32 v{vXr[2]}, {RING}, v{vXr[2]}
    v_add_u32 v{vXr[3]}, {RING}, v{vXr[3]}
    v_bfe_u32 v{vT2}, v0, 2, 2               ; r
    v_lshl_add_u32 v{vWlo}, v{vT1}, 3, v{vT2}
    v_lshlrev_b32 v{vWlo}, 7, v{vWlo}
    v_lshrrev_b32 v{vT2}, 1, v{vT2}
    v_xor_b32 v{vT2}, s{sCT}, v{vT2}
    v_lshl_add_u32 v{vWlo}, v{vT2}, 6, v{vWlo}  ; + 64*(ct ^ (r>>1))
    v_bfe_u32 v{vT2}, v0, 4, 1
    v_lshl_add_u32 v{vWlo}, v{vT2}, 5, v{vWlo}  ; + 32*gamma
    v_and_b32 v{vT2}, 1, v0
    v_lshl_add_u32 v{vWlo}, v{vT2}, 4, v{vWlo}
    v_bfe_u32 v{vT2}, v0, 1, 1
    v_lshl_add_u32 v{vWlo}, v{vT2}, 3, v{vWlo}  ; bit1 -> 8B
    v_add_u32 v{vWlo}, {RING}, v{vWlo}
    v_add_u32 v{vWhi}, 0x10000, v{vWlo}
    v_lshlrev_b32 v{vKst}, 4, v0
    v_and_b32 v{vVst}, 0x13, v{vT0}
    v_bfe_u32 v{vT2}, v{vT0}, 2, 1
    v_lshl_add_u32 v{vVst}, v{vT2}, 3, v{vVst}
    v_bfe_u32 v{vT2}, v{vT0}, 3, 1
    v_lshl_add_u32 v{vVst}, v{vT2}, 2, v{vVst}
    v_lshlrev_b32 v{vVst}, 4, v{vVst}
    v_mul_u32_u24 v{vT2}, 7168, v{vT1}
    v_add_u32 v{vVst}, v{vVst}, v{vT2}
    s_lshl_b32 s{S_T+12}, s{S_RB}, 1
    s_add_u32 s{S_T+12}, s{S_T+12}, s{sTT}
    s_mul_i32 s{S_T+12}, s{S_T+12}, {TILEB}      ; tile*28672
    s_lshl_b32 s{S_T+13}, s{S_J}, 1
    s_add_u32 s{S_T+13}, s{S_T+13}, s{sCT}       ; 2j+ct
    s_lshl_b32 s{sQst}, s{S_T+13}, 11
    s_add_u32 s{sQst}, s{sQst}, s{S_T+12}        ; + QBUF(0)
    s_add_u32 s{sKst}, s{sQst}, {KBUF}
    s_lshl_b32 s{sVst}, s{S_T+13}, 9
    s_add_u32 s{sVst}, s{sVst}, s{S_T+12}
    s_add_u32 s{sVst}, s{sVst}, {VBUF}
    s_add_u32 s{sV2}, s{sVst}, 14336
    s_mov_b32 s{sCS}, {hex(f32bits(CS))}
    """)
    def reads(s):
        ins = []
        pos = s % 7
        buf = WF + (s % 2) * 32
        fi = 0
        for ci, (kind, c) in enumerate(chunk_list(s)):
            off = pos * 16384 + ci * 8192
            if kind == "x":
                for kp in range(4):
                    ins.append(f"ds_read_b128 {vr(XF + (4 * c + kp) * 4, 4)}, v{vXr[kp]} offset:{off & 0xffff}")
            else:
                va = vWhi if off >= 65536 else vWlo
                for kp in range(4):
                    for i2 in range(2):
                        ins.append(f"ds_read_b64_tr_b16 {vr(buf + fi * 4 + i2 * 2, 2)}, v{va} offset:{(off & 0xffff) + kp * 2048 + i2 * 512}")
                    fi += 1
        return ins
    def mfmas(s):
        ins = []
        buf = WF + (s % 2) * 32
        fi = 0
        for (kind, c) in chunk_list(s):
            if kind == "x": continue
            acc = ACC[1] if kind == "v" else ACC[0]
            for kp in range(4):
                w = vr(buf + fi * 4, 4); x = vr(XF + (4 * c + kp) * 4, 4); fi += 1
                cc = "0" if (c == 0 and kp == 0) else vr(acc, 16)
                if kind == "v": ins.append(f"v_mfma_f32_32x32x16_bf16 {vr(acc,16)}, {x}, {w}, {cc}")
                else: ins.append(f"v_mfma_f32_32x32x16_bf16 {vr(acc,16)}, {w}, {x}, {cc}")
        return ins
    def epi(kind):
        acc = ACC[1] if kind == "v" else ACC[0]
        ins = []
        if kind == "q":
            for i in range(16): ins.append((f"v_mul_f32 v{acc+i}, s{sCS}, v{acc+i}", None))
        for i in range(8): ins.append((f"v_cvt_pk_bf16_f32 v{PK+i}, v{acc+2*i}, v{acc+2*i+1}", None))
        if kind == "v":
            ins.append((f"buffer_store_dwordx4 {vr(PK,4)}, v{vVst}, s[{S_WS}:{S_WS+3}], s{sVst} offen{STORE_FLAGS}", ("st", kind)))
            ins.append((f"buffer_store_dwordx4 {vr(PK+4,4)}, v{vVst}, s[{S_WS}:{S_WS+3}], s{sV2} offen{STORE_FLAGS}", ("st", kind)))
        else:
            so = sKst if kind == "k" else sQst
            ins.append((f"buffer_store_dwordx4 {vr(PK,4)}, v{vKst}, s[{S_WS}:{S_WS+3}], s{so} offen{STORE_FLAGS}", ("st", kind)))
            ins.append((f"buffer_store_dwordx4 {vr(PK+4,4)}, v{vKst}, s[{S_WS}:{S_WS+3}], s{so} offen offset:1024{STORE_FLAGS}", ("st", kind)))
        return ins
    nbar = 0
    for s in range(14):
        a(f"; ---- slot {s}")
        a(f"s_waitcnt vmcnt({vm.wait_for(('d', s))}) lgkmcnt(0)")
        a("s_barrier"); nbar += 1
        if s in (0, 6, 10, 13): stamp(a, {0:1, 6:2, 10:3, 13:4}[s])
        if s == 4:
            for r in vXr: a(f"v_add_u32 v{r}, 0x10000, v{r}")
        fill = [(r, None) for r in reads(s)]
        if 1 <= s <= 7: fill += dma(s + 6)
        if s == 8: fill += epi("k")
        if s == 12: fill += epi("v")
        main = [(m, None) for m in (mfmas(s - 1) if s >= 1 else [])]
        seq = interleave(main, fill) if main else fill
        for t, tag in seq:
            a(t)
            if tag: vm.issue(tag)
    a("s_waitcnt lgkmcnt(0)")
    for m in mfmas(13): a(m)
    a("s_nop 11")
    for t, tag in epi("q"): a(t)
    nbar_out.append(nbar)

def attention(a, XCH):
    vKa, vVa, vVb = 2, 3, 4
    vT0, vT1, vT2, vL = 5, 6, 7, 1
    Q = 8
    O = 40
    S = [104, 120]
    P = [136, 144]
    KB = [152 + 16 * i for i in range(4)]
    VB = [160 + 16 * i for i in range(4)]
    sK, sQ, sCnt, sOst = S_T, S_T + 1, S_T + 2, S_T + 3
    sMask = S_T + 4
    sZ = S_T + 6
    sKV = 92
    a(f"""
    s_mov_b32 s{sKV}, s{S_WS}
    s_mov_b32 s{sKV+1}, s{S_WS+1}
    s_mov_b32 s{sKV+2}, {WS_SIZE}
    s_mov_b32 s{sKV+3}, 0x00020000
    s_mul_i32 s{S_T+8}, s{S_H}, 7
    s_lshr_b32 s{S_T+8}, s{S_T+8}, 1          ; p0 = floor(3.5h)
    s_lshl_b32 s{S_T+8}, s{S_T+8}, 9          ; p0*512
    v_lshlrev_b32 v{vKa}, 4, v0
    v_add_u32 v{vKa}, s{S_T+8}, v{vKa}
    """)
    for q in range(4):
        a(f"""
        s_add_u32 s{S_T+9}, s{S_WAVE}, {q+1}
        s_and_b32 s{S_T+9}, s{S_T+9}, 3
        s_lshl_b32 s{S_T+10}, s{S_B}, 2
        s_add_u32 s{S_T+9}, s{S_T+9}, s{S_T+10}
        s_mul_i32 s{S_T+9}, s{S_T+9}, {TILEB}
        buffer_load_dwordx4 {vr(Q+8*q,4)}, v{vKa}, s[{S_WS}:{S_WS+3}], s{S_T+9} offen{LOAD_FLAGS}
        buffer_load_dwordx4 {vr(Q+8*q+4,4)}, v{vKa}, s[{S_WS}:{S_WS+3}], s{S_T+9} offen offset:1024{LOAD_FLAGS}
        """)
    a(f"""
    v_and_b32 v{vT0}, 31, v0
    v_lshrrev_b32 v{vT1}, 5, v0
    v_and_b32 v{vVa}, 0x13, v{vT0}
    v_bfe_u32 v{vT2}, v{vT0}, 2, 1
    v_lshl_add_u32 v{vVa}, v{vT2}, 3, v{vVa}
    v_bfe_u32 v{vT2}, v{vT0}, 3, 1
    v_lshl_add_u32 v{vVa}, v{vT2}, 2, v{vVa}
    v_lshlrev_b32 v{vVa}, 4, v{vVa}
    v_mul_u32_u24 v{vT2}, 7168, v{vT1}
    v_add_u32 v{vVa}, v{vVa}, v{vT2}
    s_mul_i32 s{S_T+8}, s{S_H}, 448
    s_add_u32 s{S_T+8}, s{S_T+8}, {VBUF - KBUF}
    v_add_u32 v{vVa}, s{S_T+8}, v{vVa}
    v_add_u32 v{vVb}, 14336, v{vVa}
    s_mul_i32 s{sK}, s{S_WAVE}, {16 * TILEB}
    s_add_u32 s{sK}, s{sK}, {KBUF}
    s_mov_b32 s{sMask}, 0x0fffffff
    s_mov_b32 s{sMask+1}, 0x0fffffff
    v_mov_b32 v{vT2}, 0x3f803f80
    v_cmp_eq_u32 vcc, 28, v{vT0}
    s_nop 1
    v_cndmask_b32 v{vT2}, 0, v{vT2}, vcc
    """)
    for b in range(4):
        for i in range(8): a(f"v_mov_b32 v{VB[b]+i}, v{vT2}")
    def ldK(b, so):
        return [f"buffer_load_dwordx4 {vr(KB[b],4)}, v{vKa}, s[{sKV}:{sKV+3}], s{so} offen{LOAD_FLAGS}",
                f"buffer_load_dwordx4 {vr(KB[b]+4,4)}, v{vKa}, s[{sKV}:{sKV+3}], s{so} offen offset:1024{LOAD_FLAGS}"]
    def ldV(b, so):
        return [f"s_mov_b64 exec, s[{sMask}:{sMask+1}]\n"
                f"buffer_load_dwordx4 {vr(VB[b],4)}, v{vVa}, s[{sKV}:{sKV+3}], s{so} offen{LOAD_FLAGS}\n"
                f"buffer_load_dwordx4 {vr(VB[b]+4,4)}, v{vVb}, s[{sKV}:{sKV+3}], s{so} offen{LOAD_FLAGS}\n"
                f"s_mov_b64 exec, -1"]
    for t in range(4):
        for l in ldK(t, sK): a(l)
        if t < 3:
            for l in ldV(t, sK): a(l)
            a(f"s_add_u32 s{sK}, s{sK}, {TILEB}")
    for i in range(64): a(f"v_mov_b32 v{O+i}, 0")
    for i in range(8): a(f"v_mov_b32 v{P[1]+i}, 0")
    lab = a.newlabel("Lqz"); lab2 = a.newlabel("Lqz")
    a(f"""
    s_waitcnt vmcnt(14)
    s_and_b32 s{S_T+8}, s{S_H}, 1
    s_cmp_eq_u32 s{S_T+8}, 0
    s_cbranch_scc1 {lab}
    s_mov_b32 exec_hi, 0
    """)
    for q in range(4):
        a(f"v_mov_b32 v{Q+8*q}, 0\nv_mov_b32 v{Q+8*q+1}, 0")
    a(f"s_branch {lab2}\n{lab}:\ns_mov_b32 exec_lo, 0")
    for q in range(4):
        a(f"v_mov_b32 v{Q+8*q+6}, 0\nv_mov_b32 v{Q+8*q+7}, 0")
    a(f"{lab2}:\ns_mov_b64 exec, -1")
    def qk(u):
        i, q = (u // 4) % 4, u % 4
        s = S[u % 2]
        return [f"v_mfma_f32_32x32x16_bf16 {vr(s,16)}, {vr(KB[i],4)}, {vr(Q+8*q,4)}, 0",
                f"v_mfma_f32_32x32x16_bf16 {vr(s,16)}, {vr(KB[i]+4,4)}, {vr(Q+8*q+4,4)}, {vr(s,16)}"]
    def pv(u):
        i, q = (u // 4) % 4, u % 4
        p = P[u % 2]; o = O + 16 * q
        return [f"v_mfma_f32_32x32x16_bf16 {vr(o,16)}, {vr(VB[i],4)}, {vr(p,4)}, {vr(o,16)}",
                f"v_mfma_f32_32x32x16_bf16 {vr(o,16)}, {vr(VB[i]+4,4)}, {vr(p+4,4)}, {vr(o,16)}"]
    a(f"s_waitcnt vmcnt(12)\ns_mov_b32 s{sCnt}, 0\ns_nop 1")
    stamp(a, 1)
    for m in qk(0): a(m)
    a("s_nop 11")
    loop = a.newlabel("Lattn")
    a(".p2align 6")
    a(f"{loop}:")
    for u in range(16):
        i, q = u // 4, u % 4
        s = S[u % 2]; p = P[u % 2]
        m = qk(u + 1) + pv(u - 1)
        extra = {k: [] for k in range(16)}
        pre = []
        if q == 3:
            pre.append("s_waitcnt vmcnt(10)")
            if i == 0:
                extra[1].append(f"s_cmp_eq_u32 s{sCnt}, 3\ns_cselect_b32 s{sKV+2}, 0, s{sKV+2}")
            extra[2].append(f"s_add_u32 s{sK}, s{sK}, {TILEB}")
            lk = ldK(i, sK)
            extra[5].append(lk[0]); extra[6].append(lk[1])
        if q == 1:
            extra[6].append("s_waitcnt vmcnt(10)")
            extra[9].append(ldV((i + 3) % 4, sK)[0])
        for l in pre: a(l)
        for g in range(4):
            a(m[g])
            for k in range(4 * g, 4 * g + 4):
                a(f"v_exp_f32 v{s+k}, v{s+k}")
                for l in extra[k]: a(l)
                if k % 2 == 0 and k >= 2:
                    a(f"v_cvt_pk_bf16_f32 v{p+(k-2)//2}, v{s+k-2}, v{s+k-1}")
        a("s_nop 0")
        a(f"v_cvt_pk_bf16_f32 v{p+7}, v{s+14}, v{s+15}")
    a(f"""
    s_add_u32 s{sCnt}, s{sCnt}, 1
    s_cmp_lt_u32 s{sCnt}, 4
    s_cbranch_scc1 {loop}
    s_nop 1
    """)
    for m in pv(15): a(m)
    stamp(a, 2)
    a(f"v_lshlrev_b32 v{vT0}, 4, v0")
    for q in range(3):
        a(f"""
        s_add_u32 s{S_T+9}, s{S_WAVE}, {q+1}
        s_and_b32 s{S_T+9}, s{S_T+9}, 3
        s_mul_i32 s{S_T+9}, s{S_T+9}, 12288
        v_add_u32 v{vT1}, s{S_T+9}, v{vT0}
        """)
        for k in range(4):
            a(f"ds_write_b128 v{vT1}, {vr(O+16*q+4*k,4)} offset:{XCH + q*4096 + k*1024}")
    a(f"""
    s_mul_i32 s{S_T+9}, s{S_WAVE}, 12288
    v_add_u32 v{vT1}, s{S_T+9}, v{vT0}
    s_waitcnt lgkmcnt(0)
    s_barrier
    """)
    for q in range(3):
        for k in range(4):
            a(f"ds_read_b128 {vr(O+16*q+4*k,4)}, v{vT1} offset:{XCH + q*4096 + k*1024}")
    F = O + 48
    stamp(a, 3)
    for q in range(3):
        a(f"s_waitcnt lgkmcnt({8 - 4*q})")
        for k in range(16): a(f"v_add_f32 v{F+k}, v{F+k}, v{O+16*q+k}")
    a(f"""
    v_mov_b32 v{vT1}, v{F+12}
    v_mov_b32 v{vL}, v{F+12}
    s_lshl_b32 s{sOst}, s{S_B}, 2
    s_add_u32 s{sOst}, s{sOst}, s{S_WAVE}
    v_permlane32_swap_b32 v{vT1}, v{vL}
    s_lshl_b32 s{sOst}, s{sOst}, 4
    s_add_u32 s{sOst}, s{sOst}, s{S_H}
    v_rcp_f32 v{vT1}, v{vL}
    v_cmp_gt_u32 vcc, 32, v0
    s_lshl_b32 s{sOst}, s{sOst}, 11
    s_add_u32 s{sOst}, s{sOst}, {OBUF}
    v_cndmask_b32 v{vT2}, 0, v{vT1}, vcc
    """)
    for k in range(16): a(f"v_mul_f32 v{F+k}, v{F+k}, v{vT1 if k < 12 else vT2}")
    for k in range(8): a(f"v_cvt_pk_bf16_f32 v{O+k}, v{F+2*k}, v{F+2*k+1}")
    a(f"buffer_store_dwordx4 {vr(O,4)}, v{vT0}, s[{S_WS}:{S_WS+3}], s{sOst} offen{STORE_FLAGS}")
    a(f"buffer_store_dwordx4 {vr(O+4,4)}, v{vT0}, s[{S_WS}:{S_WS+3}], s{sOst} offen offset:1024{STORE_FLAGS}")

def outproj(a, WOL, XCH):
    vWa, vOa, vWr0, vWr1, vT0, vT1, vT2, vSt = 2, 3, 4, 5, 6, 7, 1, 8
    OF = 16
    WF = 80
    ACC = [144, 160]
    sM, sWo, sO, sTT, sKH = S_T, S_T + 1, S_T + 2, S_T + 3, S_T + 4
    a(f"""
    v_lshrrev_b32 v{vT0}, 3, v0
    v_and_b32 v{vT1}, 7, v0
    v_bfe_u32 v{vT2}, v0, 4, 1
    v_lshlrev_b32 v{vT2}, 2, v{vT2}
    v_xor_b32 v{vT1}, v{vT1}, v{vT2}
    v_lshlrev_b32 v{vT1}, 4, v{vT1}
    v_mul_u32_u24 v{vWa}, 896, v{vT0}
    v_add_u32 v{vWa}, v{vWa}, v{vT1}
    s_mul_i32 s{sWo}, s{S_WAVE}, {112*896}
    s_lshl_b32 s{S_T+8}, s{S_J}, 7
    s_add_u32 s{sWo}, s{sWo}, s{S_T+8}
    s_mul_i32 s{sM}, s{S_WAVE}, {14*1024}
    s_lshr_b32 s{sTT}, s{S_WAVE}, 1
    s_and_b32 s{sKH}, s{S_WAVE}, 1
    """)
    for i in range(14):
        a(f"""
        s_add_u32 m0, s{sM}, {WOL + i*1024}
        s_add_u32 s{S_T+8}, s{sWo}, {i*8*896}
        buffer_load_dwordx4 v{vWa}, s[{S_WO}:{S_WO+3}], s{S_T+8} offen lds
        """)
    a(f"""
    v_lshlrev_b32 v{vOa}, 4, v0
    s_lshl_b32 s{sO}, s{S_RB}, 1
    s_add_u32 s{sO}, s{sO}, s{sTT}
    s_lshl_b32 s{sO}, s{sO}, 1
    s_add_u32 s{sO}, s{sO}, s{sKH}
    s_lshl_b32 s{sO}, s{sO}, 14
    s_add_u32 s{sO}, s{sO}, {OBUF}
    """)
    for i in range(16):
        if i % 4 == 0 and i: a(f"s_add_u32 s{sO}, s{sO}, 4096")
        a(f"buffer_load_dwordx4 {vr(OF+4*i,4)}, v{vOa}, s[{S_WS}:{S_WS+3}], s{sO} offen offset:{(i%4)*1024}{LOAD_FLAGS}")
    a(f"""
    v_mov_b32 v{vT1}, 0
    v_mov_b32 v{vT0}, 0
    v_lshlrev_b32 v{vT2}, 3, v0
    ds_write_b64 v{vT2}, v[{vT0}:{vT1}] offset:{WOL + 448*128}
    v_lshrrev_b32 v{vT1}, 5, v0
    v_bfe_u32 v{vT2}, v0, 2, 2
    v_lshl_add_u32 v{vWr0}, v{vT1}, 3, v{vT2}
    s_mul_i32 s{S_T+8}, s{sKH}, 224
    v_add_u32 v{vWr0}, s{S_T+8}, v{vWr0}
    v_lshlrev_b32 v{vWr0}, 7, v{vWr0}
    v_lshrrev_b32 v{vT2}, 1, v{vT2}
    v_lshl_add_u32 v{vWr0}, v{vT2}, 6, v{vWr0}     ; ct=0: 64*(r>>1)
    v_and_b32 v{vT2}, 1, v0
    v_lshl_add_u32 v{vWr0}, v{vT2}, 5, v{vWr0}
    v_bfe_u32 v{vT2}, v0, 4, 1
    v_lshl_add_u32 v{vWr0}, v{vT2}, 4, v{vWr0}
    v_bfe_u32 v{vT2}, v0, 1, 1
    v_lshl_add_u32 v{vWr0}, v{vT2}, 3, v{vWr0}
    v_xor_b32 v{vWr1}, 64, v{vWr0}
    v_and_b32 v{vT0}, 31, v0
    v_mul_u32_u24 v{vSt}, 1792, v{vT0}
    v_lshl_add_u32 v{vSt}, v{vT1}, 5, v{vSt}
    s_waitcnt vmcnt(16) lgkmcnt(0)
    s_barrier
    """)
    def reads(hl):
        ins = []
        buf = WF + (hl % 2) * 16
        for f in range(2):
            for ct in range(2):
                for i2 in range(2):
                    ins.append(f"ds_read_b64_tr_b16 {vr(buf + (2*f+ct)*4 + 2*i2, 2)}, v{vWr1 if ct else vWr0} offset:{WOL + (28*hl + 16*f + 4*i2)*128}")
        return ins
    def mf(hl):
        ins = []
        buf = WF + (hl % 2) * 16
        for f in range(2):
            for ct in range(2):
                cc = "0" if (hl == 0 and f == 0) else vr(ACC[ct], 16)
                ins.append(f"v_mfma_f32_32x32x16_bf16 {vr(ACC[ct],16)}, {vr(buf+(2*f+ct)*4,4)}, {vr(OF+(2*hl+f)*4,4)}, {cc}")
        return ins
    stamp(a, 1)
    for r in reads(0): a(r)
    for hl in range(8):
        a(f"s_waitcnt vmcnt({14 - 2*hl}) lgkmcnt(0)")
        seq = interleave(mf(hl), reads(hl + 1) if hl < 7 else [])
        for t in seq: a(t)
    stamp(a, 2)
    l1 = a.newlabel("Lop"); l2 = a.newlabel("Lop")
    a(f"""
    v_lshlrev_b32 v{vT0}, 4, v0
    s_lshl_b32 s{S_T+8}, s{S_WAVE}, 12
    v_add_u32 v{vT1}, s{S_T+8}, v{vT0}
    v_xor_b32 v{vT2}, 0x1000, v{vT1}
    s_nop 8
    s_cmp_eq_u32 s{sKH}, 0
    s_cbranch_scc1 {l1}
    """)
    for k in range(4): a(f"ds_write_b128 v{vT1}, {vr(ACC[0]+4*k,4)} offset:{XCH + k*1024}")
    for k in range(16): a(f"v_mov_b32 v{OF+k}, v{ACC[1]+k}")
    a(f"s_branch {l2}\n{l1}:")
    for k in range(4): a(f"ds_write_b128 v{vT1}, {vr(ACC[1]+4*k,4)} offset:{XCH + k*1024}")
    for k in range(16): a(f"v_mov_b32 v{OF+k}, v{ACC[0]+k}")
    a(f"""
    {l2}:
    s_waitcnt lgkmcnt(0)
    s_barrier
    """)
    for k in range(4): a(f"ds_read_b128 {vr(OF+16+4*k,4)}, v{vT2} offset:{XCH + k*1024}")
    a(f"""
    s_lshl_b32 s{sO}, s{S_RB}, 1
    s_add_u32 s{sO}, s{sO}, s{sTT}
    s_mul_i32 s{sO}, s{sO}, {32*1792}
    s_lshl_b32 s{S_T+8}, s{S_J}, 1
    s_add_u32 s{S_T+8}, s{S_T+8}, s{sKH}
    s_lshl_b32 s{S_T+8}, s{S_T+8}, 6
    s_add_u32 s{sO}, s{sO}, s{S_T+8}
    s_waitcnt lgkmcnt(0)
    """)
    for k in range(16): a(f"v_add_f32 v{OF+k}, v{OF+k}, v{OF+16+k}")
    for k in range(8): a(f"v_cvt_pk_bf16_f32 v{OF+32+k}, v{OF+2*k}, v{OF+2*k+1}")
    a(f"buffer_store_dwordx4 {vr(OF+32,4)}, v{vSt}, s[{S_OUT}:{S_OUT+3}], s{sO} offen")
    a(f"buffer_store_dwordx4 {vr(OF+36,4)}, v{vSt}, s[{S_OUT}:{S_OUT+3}], s{sO} offen offset:16")
```

```python
from common import *
import common, math
from phases_a import *
import phases_a as pa

PRIVB = 8704
KPLL = 4 * PRIVB
SP = 1568
KPLB = 4 * SP
RING = KPLL + 2 * KPLB
UROW = 4224
LOG2E = math.log2(math.e)
S_BW, S_C, S_NH, S_PRIV = 90, 91, 49, 63

def b_setup(a, base=0):
    a(f"""
    s_sub_u32 s{S_BW}, s{S_WAVE}, 4
    s_lshr_b32 s{S_C}, s{S_BW}, 1
    s_and_b32 s{S_NH}, s{S_BW}, 1
    s_mul_i32 s{S_PRIV}, s{S_BW}, {PRIVB}
    """)
    if base: a(f"s_add_u32 s{S_PRIV}, s{S_PRIV}, {base}")

def tr_issue(a, srd_, soff, pitch, STG, vA, vT, flags=""):
    a(f"""
    v_lshrrev_b32 v{vT}, 3, v0
    v_mul_u32_u24 v{vA}, {pitch}, v{vT}
    v_and_b32 v{vT}, 7, v0
    v_lshl_add_u32 v{vA}, v{vT}, 4, v{vA}
    s_mul_i32 s{S_T+12}, s{S_BW}, {16*pitch}
    s_add_u32 s{soff}, s{soff}, s{S_T+12}
    s_lshl_b32 s{S_T+12}, s{S_BW}, 11
    s_add_u32 m0, s{S_T+12}, {STG}
    s_nop 0
    buffer_load_dwordx4 v{vA}, s[{srd_}:{srd_+3}], s{soff} offen lds{flags}
    s_add_u32 m0, s{S_T+12}, {STG + 1024}
    s_add_u32 s{soff}, s{soff}, {8*pitch}
    buffer_load_dwordx4 v{vA}, s[{srd_}:{srd_+3}], s{soff} offen lds{flags}
    """)

def tr_finish(a, srd_, soff, pitch, STG, R, flags="", zero_pad=False):
    vA, vB, vT = R + 8, R + 9, R + 10
    a(f"""
    v_lshrrev_b32 v{vT}, 4, v0
    v_lshlrev_b32 v{vA}, 11, v{vT}
    v_bfe_u32 v{vB}, v0, 2, 2
    v_lshl_add_u32 v{vA}, v{vB}, 7, v{vA}
    v_and_b32 v{vB}, 3, v0
    v_lshl_add_u32 v{vA}, v{vB}, 3, v{vA}
    s_lshl_b32 s{S_T+12}, s{S_BW}, 5
    s_add_u32 s{S_T+12}, s{S_T+12}, {STG}
    v_add_u32 v{vA}, s{S_T+12}, v{vA}
    """)
    for i in range(4):
        a(f"ds_read_b64_tr_b16 {vr(R+2*i,2)}, v{vA} offset:{i*512}")
    a(f"""
    v_and_b32 v{vB}, 15, v0
    v_mul_u32_u24 v{vB}, 144, v{vB}
    v_lshl_add_u32 v{vB}, v{vT}, 5, v{vB}
    v_add_u32 v{vB}, s{S_PRIV}, v{vB}
    v_lshrrev_b32 v{vT}, 3, v0
    v_mul_u32_u24 v{vA}, 144, v{vT}
    v_mul_u32_u24 v{vT}, {pitch}, v{vT}
    v_and_b32 v{vT+1}, 7, v0
    v_lshl_add_u32 v{vA}, v{vT+1}, 4, v{vA}
    v_add_u32 v{vA}, s{S_PRIV}, v{vA}
    v_lshl_add_u32 v{vT}, v{vT+1}, 4, v{vT}
    s_mul_i32 s{S_T+12}, s{S_BW}, {16*pitch}
    s_add_u32 s{soff}, s{soff}, s{S_T+12}
    s_add_u32 s{S_T+12}, s{soff}, {8*pitch}
    s_waitcnt lgkmcnt(0)
    ds_write_b128 v{vB}, {vr(R,4)}
    ds_write_b128 v{vB}, {vr(R+4,4)} offset:16
    ds_read_b128 {vr(R,4)}, v{vA}
    ds_read_b128 {vr(R+4,4)}, v{vA} offset:{8*144}
    s_waitcnt lgkmcnt(1)
    buffer_store_dwordx4 {vr(R,4)}, v{vT}, s[{srd_}:{srd_+3}], s{soff} offen{flags}
    s_waitcnt lgkmcnt(0)
    buffer_store_dwordx4 {vr(R+4,4)}, v{vT}, s[{srd_}:{srd_+3}], s{S_T+12} offen{flags}
    """)
    if zero_pad:
        l = a.newlabel("Lzp")
        a(f"""
        s_cmp_lg_u32 s{S_RB}, 0
        s_cbranch_scc1 {l}
        s_nop 1
        v_mov_b32 v{R}, 0
        v_mov_b32 v{R+1}, 0
        v_mov_b32 v{R+2}, 0
        v_mov_b32 v{R+3}, 0
        s_sub_u32 s{soff}, s{soff}, 128
        s_sub_u32 s{S_T+12}, s{S_T+12}, 128
        buffer_store_dwordx4 {vr(R,4)}, v{vT}, s[{srd_}:{srd_+3}], s{soff} offen{flags}
        buffer_store_dwordx4 {vr(R,4)}, v{vT}, s[{srd_}:{srd_+3}], s{S_T+12} offen{flags}
        {l}:
        """)

def cmul(d, x, y):
    return [f"v_pk_mul_f32 {vr(d,2)}, {vr(x,2)}, {vr(y,2)} op_sel:[0,0] op_sel_hi:[1,0]",
            f"v_pk_fma_f32 {vr(d,2)}, {vr(x,2)}, {vr(y,2)}, {vr(d,2)} op_sel:[1,1,0] op_sel_hi:[0,1,1] neg_lo:[0,1,0]"]

def with_barriers(ins, nb):
    out = []
    n = len(ins)
    pts = [(k + 1) * n // (nb + 1) for k in range(nb)] if nb else []
    for i, t in enumerate(ins):
        while pts and pts[0] == i:
            out.append("s_barrier"); pts.pop(0)
        out.append(t)
    out += ["s_barrier"] * len(pts)
    return out

def kgen(a, dump_kpl):
    PRM = 2
    vDT, vFA = 10, 11
    T = 12
    E1, E2, E4, E8, E256, E16 = 20, 22, 24, 26, 28, 30
    X, Y, Z, W = 32, 34, 36, 38
    PKT = 40
    AF, BF, ACC = 48, 80, 112
    TR = 128
    sU, sD, sLD, sDS, sIt = S_T, S_T + 1, S_T + 2, S_T + 3, S_T + 4
    b_setup(a)
    a(f"""
    s_lshl_b32 s{sD}, s{S_J}, 5
    s_add_u32 s{sD}, s{sD}, s{S_RB}
    s_lshl_b32 s{sD}, s{sD}, 2                 ; d0*2 bytes
    s_load_dword s{sLD}, s[{S_KA + KA_LOGDT//4}:{S_KA + KA_LOGDT//4 + 1}], s{sD}
    s_load_dword s{sDS}, s[{S_KA + KA_DSKIP//4}:{S_KA + KA_DSKIP//4 + 1}], s{sD}
    s_lshl_b32 s{S_T+5}, s{sD}, 8              ; d0*512
    s_lshl_b32 s{S_T+6}, s{S_BW}, 8
    s_add_u32 s{S_T+5}, s{S_T+5}, s{S_T+6}
    v_lshlrev_b32 v1, 1, v0
    """)
    for i in range(8): a(f"v_mov_b32 v{PRM+i}, 0")
    for it in range(2):
        for k, s_ in enumerate((S_LA, S_AI, S_CR, S_CI)):
            a(f"buffer_load_short_d16_hi v{PRM+4*it+k}, v1, s[{s_}:{s_+3}], s{S_T+5} offen offset:{128*it}")
    a(f"""
    s_mul_i32 s{sU}, s{S_RB}, {64*896}
    s_lshl_b32 s{S_T+6}, s{S_J}, 7
    s_add_u32 s{sU}, s{sU}, s{S_T+6}
    """)
    tr_issue(a, S_U, sU, 896, KPLL, T, T + 1)
    a(f"""
    v_and_b32 v{T}, 31, v0
    v_mul_u32_u24 v{vFA}, 272, v{T}
    v_lshrrev_b32 v{T}, 5, v0
    v_lshl_add_u32 v{vFA}, v{T}, 4, v{vFA}
    v_add_u32 v{vFA}, s{S_PRIV}, v{vFA}
    """)
    for i in range(16): a(f"v_mov_b32 v{ACC+i}, 0")
    a(f"""
    s_waitcnt lgkmcnt(0)
    s_lshl_b32 s{S_T+6}, s{S_C}, 4
    s_lshr_b32 s{sLD}, s{sLD}, s{S_T+6}
    s_lshl_b32 s{sLD}, s{sLD}, 16
    s_lshr_b32 s{sDS}, s{sDS}, s{S_T+6}
    s_lshl_b32 s{sDS}, s{sDS}, 16
    v_mov_b32 v{T}, {hex(f32bits(LOG2E))}
    v_mul_f32 v{vDT}, s{sLD}, v{T}
    v_exp_f32 v{vDT}, v{vDT}
    s_mul_i32 s{sU}, s{S_J}, {64*UROW}
    v_cvt_pk_bf16_f32 v{vDT}, v{vDT}, v{vDT}
    v_and_b32 v{vDT}, 0xffff0000, v{vDT}
    s_lshl_b32 s{S_T+6}, s{S_RB}, 7
    s_add_u32 s{sU}, s{sU}, s{S_T+6}
    s_add_u32 s{sU}, s{sU}, {UTB + 128}
    s_waitcnt vmcnt(0)
    s_barrier
    """)
    stamp(a, 1)
    tr_finish(a, S_WS, sU, UROW, KPLL, TR, flags=pa.STORE_FLAGS, zero_pad=True)
    a(f"s_mov_b32 m0, s{S_PRIV}\ns_mov_b32 s{sIt}, 0")
    loop = a.newlabel("Lkg")
    a(f"{loop}:")
    ins = []
    LA, AI, CR, CI = PRM, PRM + 1, PRM + 2, PRM + 3
    vA_, vB_ = T, T + 1
    ins += f"""v_mul_f32 v{vA_}, {hex(f32bits(LOG2E))}, v{LA}
    v_exp_f32 v{vA_}, v{vA_}
    v_mul_f32 v{vB_}, v{AI}, v{vDT}
    v_cvt_pk_bf16_f32 v{vA_}, v{vA_}, v{vA_}
    v_and_b32 v{vA_}, 0xffff0000, v{vA_}
    v_mul_f32 v{vA_}, v{vA_}, v{vDT}
    v_mul_f32 v{vA_}, {hex(f32bits(-LOG2E))}, v{vA_}
    v_mul_f32 v{vB_}, 0.15915494, v{vB_}
    v_add_f32 v{T+2}, v{vDT}, v{vDT}
    v_mul_f32 v{X}, v{CR}, v{T+2}
    v_mul_f32 v{X+1}, v{CI}, v{T+2}""".split("\n")
    for E, t in ((E1, 1.0), (E8, 8.0), (E256, 256.0)):
        tb = hex(f32bits(t))
        ins += f"""v_mul_f32 v{T+2}, {tb}, v{vA_}
        v_mul_f32 v{T+3}, {tb}, v{vB_}
        v_exp_f32 v{T+2}, v{T+2}
        v_fract_f32 v{T+3}, v{T+3}
        v_cos_f32 v{E}, v{T+3}
        v_sin_f32 v{E+1}, v{T+3}
        v_mul_f32 v{E}, v{E}, v{T+2}
        v_mul_f32 v{E+1}, v{E+1}, v{T+2}""".split("\n")
    pk = [0]
    def put(src, rows, conj):
        t = PKT + pk[0] % 8; pk[0] += 1
        o = [f"v_cvt_pk_bf16_f32 v{t}, v{src}, {'-' if conj else ''}v{src+1}"]
        for r in rows: o.append(f"ds_write_addtid_b32 v{t} offset:{r*272}")
        return o
    rho = lambda v, h: 8 * (v >> 2) + 4 * h + (v & 3)
    ins += cmul(E2, E1, E1) + cmul(E4, E2, E2) + cmul(E16, E8, E8)
    ins += cmul(Z, X, E256)
    ins += put(X, [rho(0, 0)], True)
    cur, nxt = X, Y
    for k in range(1, 8):
        ins += cmul(nxt, cur, E1) + put(nxt, [rho(k, 0)], True)
        cur, nxt = nxt, cur
    rows1 = [[0, 1], [2], [3, 4, 5], [6], [7]]
    ins += put(Z, [rho(v, 1) for v in rows1[0]], True)
    cur, nxt = Z, X
    for k in range(1, 5):
        ins += cmul(nxt, cur, E2) + put(nxt, [rho(v, 1) for v in rows1[k]], True)
        cur, nxt = nxt, (Y if nxt == X else X)
    H, Hn = Z, W
    for B in (2, 3):
        ins += cmul(Hn, H, E256); H, Hn = Hn, H
        ins += put(H, [rho(8, B & 1)], True)
        ins += cmul(X, H, E4) + put(X, [rho(9, B & 1)], True)
        ins += cmul(Y, H, E8) + put(Y, [rho(10, B & 1)], True)
    for B in (4, 5, 6, 7):
        v0_ = 11 if B < 6 else 13
        ins += cmul(Hn, H, E256); H, Hn = Hn, H
        ins += put(H, [rho(v0_, B & 1)], True)
        ins += cmul(X, H, E8) + put(X, [rho(v0_ + 1, B & 1)], True)
    for s in range(8): ins.append(f"ds_read_b128 {vr(AF+4*s,4)}, v{vFA} offset:{32*s}")
    ins += [f"v_mov_b32 v{T+4}, 0x3f80", f"ds_write_addtid_b32 v{T+4} offset:0"]
    ins += put(E8, [1], False) + put(E16, [2], False)
    ch = {1: E8, 0: E16}
    pool = {1: [X, Y], 0: [Z, W]}
    for j in range(3, 32):
        par = j & 1
        d = pool[par][0]; pool[par].reverse()
        ins += cmul(d, ch[par], E16) + put(d, [j], False)
        ch[par] = d
    for s in range(8): ins.append(f"ds_read_b128 {vr(BF+4*s,4)}, v{vFA} offset:{32*s}")
    for k in range(4): ins.append(f"v_mov_b32 v{PRM+k}, v{PRM+4+k}")
    for s in range(8):
        ins.append(f"s_waitcnt lgkmcnt({7-s})")
        ins.append(f"v_mfma_f32_32x32x16_bf16 {vr(ACC,16)}, {vr(AF+4*s,4)}, {vr(BF+4*s,4)}, {vr(ACC,16)}")
    for t in with_barriers([i.strip() for i in ins], 6): a(t)
    a(f"""
    s_add_u32 s{sIt}, s{sIt}, 1
    s_cmp_lt_u32 s{sIt}, 2
    s_cbranch_scc1 {loop}
    """)
    stamp(a, 2)
    l1 = a.newlabel("Lkx"); l2 = a.newlabel("Lkx"); l3 = a.newlabel("Lkx"); l4 = a.newlabel("Lkx")
    vKa, vG = T + 2, T + 3
    a(f"""
    v_lshlrev_b32 v{T}, 4, v0
    v_add_u32 v{T+1}, s{S_PRIV}, v{T}
    s_xor_b32 s{S_T+6}, s{S_BW}, 1
    s_mul_i32 s{S_T+6}, s{S_T+6}, {PRIVB}
    v_add_u32 v{T}, s{S_T+6}, v{T}
    v_and_b32 v{vKa}, 3, v0
    v_mul_u32_u24 v{vKa}, {SP}, v{vKa}
    v_lshrrev_b32 v{vG}, 2, v0
    v_lshl_add_u32 v{vKa}, v{vG}, 4, v{vKa}
    s_mul_i32 s{S_T+7}, s{S_C}, {KPLB}
    v_add_u32 v{vG}, s{S_T+7}, v{vKa}
    v_mov_b32 v{PKT}, 0
    v_mov_b32 v{PKT+1}, 0
    v_mov_b32 v{PKT+2}, 0
    v_mov_b32 v{PKT+3}, 0
    s_lshr_b32 s{S_T+8}, s{sD}, 1
    s_add_u32 s{S_T+8}, s{S_T+8}, s{S_C}
    s_mul_i32 s{S_T+8}, s{S_T+8}, 8192
    s_add_u32 s{S_T+8}, s{S_T+8}, {KPL}
    s_cmp_eq_u32 s{S_NH}, 0
    s_cbranch_scc1 {l1}
    ds_write_b128 v{T+1}, {vr(ACC,4)}
    ds_write_b128 v{T+1}, {vr(ACC+4,4)} offset:1024
    ds_write_b128 v{vG}, {vr(PKT,4)} offset:{KPLL}
    """)
    if dump_kpl: a(f"buffer_store_dwordx4 {vr(PKT,4)}, v{vKa}, s[{S_WS}:{S_WS+3}], s{S_T+8} offen")
    a(f"""
    s_branch {l2}
    {l1}:
    ds_write_b128 v{T+1}, {vr(ACC+8,4)}
    ds_write_b128 v{T+1}, {vr(ACC+12,4)} offset:1024
    ds_write_b128 v{vG}, {vr(PKT,4)} offset:{KPLL+256}
    """)
    if dump_kpl: a(f"buffer_store_dwordx4 {vr(PKT,4)}, v{vKa}, s[{S_WS}:{S_WS+3}], s{S_T+8} offen offset:256")
    a(f"""
    {l2}:
    s_waitcnt lgkmcnt(0)
    s_barrier
    ds_read_b128 {vr(AF,4)}, v{T}
    ds_read_b128 {vr(AF+4,4)}, v{T} offset:1024
    s_cmp_eq_u32 s{S_NH}, 0
    s_cbranch_scc0 {l3}
    v_mov_b32 v{T+4}, s{sDS}
    v_cmp_eq_u32 vcc, 0, v0
    s_nop 1
    v_cndmask_b32 v{T+4}, 0, v{T+4}, vcc
    v_add_f32 v{ACC}, v{ACC}, v{T+4}
    s_waitcnt lgkmcnt(0)
    """)
    def wr(reg, beta):
        o = f"ds_write_b128 v{vG}, {vr(reg,4)} offset:{KPLL + 512 + 256*beta}\n"
        if dump_kpl: o += f"buffer_store_dwordx4 {vr(reg,4)}, v{vKa}, s[{S_WS}:{S_WS+3}], s{S_T+8} offen offset:{512 + 256*beta}\n"
        return o
    for k in range(8): a(f"v_add_f32 v{ACC+k}, v{ACC+k}, v{AF+k}")
    for k in range(4): a(f"v_cvt_pk_bf16_f32 v{BF+k}, v{ACC+7-2*k}, v{ACC+6-2*k}")
    a(wr(BF, 0))
    a(f"""
    s_branch {l4}
    {l3}:
    v_and_b32 v{T+4}, 1, v0
    v_cmp_eq_u32 vcc, 0, v{T+4}
    s_waitcnt lgkmcnt(0)
    """)
    for k in range(7): a(f"v_add_f32 v{ACC+8+k}, v{ACC+8+k}, v{AF+k}")
    g0, g4, g8 = ACC + 8, ACC + 9, ACC + 10
    a(f"""
    v_cvt_pk_bf16_f32 v{BF}, v{g8}, v{g8}
    v_cvt_pk_bf16_f32 v{BF+1}, v{g4}, v{g4}
    v_cvt_pk_bf16_f32 v{BF+2}, v{g4}, v{g0}
    v_cvt_pk_bf16_f32 v{BF+3}, v{g0}, v{g0}
    """)
    a(wr(BF, 1))
    for beta in (2, 3):
        g0 = ACC + 11 + 2 * (beta - 2); g8 = g0 + 1; R = BF + 4 * (beta - 1)
        a(f"""
        v_cndmask_b32 v{T+4}, v{g8}, v{g0}, vcc
        v_cvt_pk_bf16_f32 v{R}, v{g8}, v{g8}
        v_cvt_pk_bf16_f32 v{R+1}, v{g8}, v{T+4}
        v_cvt_pk_bf16_f32 v{R+2}, v{g0}, v{g0}
        v_cvt_pk_bf16_f32 v{R+3}, v{g0}, v{g0}
        """)
        a(wr(R, beta))
    a(f"{l4}:")

def conv(a, load_kpl):
    T = 2
    vAa, vXa = 10, 11
    FR = [16, 48]
    ACC = [80, 96]
    LD = 112
    sD, sU, sIt = S_T, S_T + 1, S_T + 2
    S1 = 1088
    a(f"""
    s_lshl_b32 s{sD}, s{S_J}, 5
    s_add_u32 s{sD}, s{sD}, s{S_RB}
    s_lshl_b32 s{sD}, s{sD}, 1
    s_add_u32 s{sD}, s{sD}, s{S_C}             ; channel
    s_mul_i32 s{sU}, s{sD}, {UROW}
    s_lshl_b32 s{S_T+5}, s{S_NH}, 10
    s_add_u32 s{sU}, s{sU}, s{S_T+5}
    s_add_u32 s{sU}, s{sU}, {UTB + 64}
    s_mov_b32 s{S_T+6}, 964                    ; n/68 = (n*964)>>16 for n<576
    """)
    for i in range(9):
        a(f"""
        v_add_u32 v{T}, {64*i}, v0
        v_mul_u32_u24 v{T+1}, s{S_T+6}, v{T}
        v_lshrrev_b32 v{T+1}, 16, v{T+1}          ; arr
        v_mul_u32_u24 v{T+2}, 68, v{T+1}
        v_sub_u32 v{T}, v{T}, v{T+2}              ; off
        v_lshlrev_b32 v{T}, 4, v{T}
        v_and_b32 v{T+2}, 3, v{T+1}
        v_lshl_add_u32 v{T}, v{T+2}, 1, v{T}
        v_lshrrev_b32 v{T+1}, 2, v{T+1}
        v_lshl_add_u32 v{T}, v{T+1}, 11, v{T}
        buffer_load_dwordx4 {vr(LD+4*i,4)}, v{T}, s[{S_WS}:{S_WS+3}], s{sU} offen{pa.LOAD_FLAGS}
        """)
    if load_kpl:
        a(f"""
        s_mul_i32 s{S_T+5}, s{sD}, 8192
        s_add_u32 s{S_T+5}, s{S_T+5}, {KPL}
        s_mul_i32 s{S_T+7}, s{S_C}, {KPLB}
        v_lshlrev_b32 v{T}, 4, v0
        """)
        for i in range(7):
            if i == 6: a("s_mov_b32 exec_lo, 0xff\ns_mov_b32 exec_hi, 0")
            a(f"""
            s_add_u32 m0, s{S_T+7}, {KPLL + 1024*i}
            s_add_u32 s{S_T+8}, s{S_T+5}, {1024*i}
            buffer_load_dwordx4 v{T}, s[{S_WS}:{S_WS+3}], s{S_T+8} offen lds
            """)
        a("s_mov_b64 exec, -1")
    a(f"""
    v_and_b32 v{T}, 3, v0
    v_bfe_u32 v{T+1}, v0, 3, 2
    v_lshl_add_u32 v{T}, v{T+1}, 2, v{T}
    v_bfe_u32 v{T+1}, v0, 2, 1
    v_lshl_add_u32 v{T}, v{T+1}, 4, v{T}          ; r
    v_lshrrev_b32 v{T+1}, 5, v0                   ; hh
    v_lshlrev_b32 v{T+2}, 3, v{T+1}
    v_sub_u32 v{T}, v{T}, v{T+2}
    v_add_u32 v{T}, 9, v{T}                       ; yb
    v_and_b32 v{T+2}, 3, v{T}                     ; c
    v_sub_u32 v{T}, v{T}, v{T+2}
    v_lshlrev_b32 v{T}, 1, v{T}
    v_mul_u32_u24 v{T+2}, {S1}, v{T+2}
    v_add3_u32 v{vAa}, v{T}, v{T+2}, s{S_PRIV}
    v_and_b32 v{T}, 31, v0
    v_lshlrev_b32 v{T}, 4, v{T}
    v_mul_u32_u24 v{T+2}, {SP}, v{T+1}
    s_mul_i32 s{S_T+7}, s{S_C}, {KPLB}
    s_lshl_b32 s{S_T+5}, s{S_NH}, 8
    s_sub_u32 s{S_T+7}, s{S_T+7}, s{S_T+5}
    s_add_u32 s{S_T+7}, s{S_T+7}, {30*16}
    v_add3_u32 v{vXa}, v{T}, v{T+2}, s{S_T+7}
    v_lshlrev_b32 v{T}, 4, v0
    v_add_u32 v{T}, s{S_PRIV}, v{T}
    """)
    for i in range(32): a(f"v_mov_b32 v{ACC[0]+i}, 0")
    nk = 7 if load_kpl else 0
    for i in range(9):
        a(f"s_waitcnt vmcnt({8 - i + nk})")
        if i == 8: a("s_mov_b32 exec_hi, 0")
        a(f"ds_write_b128 v{T}, {vr(LD+4*i,4)} offset:{1024*i}")
    a("s_mov_b64 exec, -1\ns_waitcnt vmcnt(0)")
    stamp(a, 1)
    def reads(buf, dm):
        ins = []
        R = FR[buf]
        for sg in range(2):
            for kp in range(2):
                for i2 in range(2):
                    ins.append(f"ds_read_b64 {vr(R + (2*sg+kp)*4 + 2*i2, 2)}, v{vAa} offset:{sg*4*S1 + 64*dm + 32*(1-kp) + 8*i2}")
        for xo in range(2):
            for kp in range(2):
                ins.append(f"ds_read_b128 {vr(R + 16 + (2*xo+kp)*4, 4)}, v{vXa} offset:{KPLL + 2*kp*SP + 512*xo + 16*(2-dm)}")
        order = [0, 1, 8, 10, 4, 5, 2, 3, 9, 11, 6, 7]
        return [ins[k] for k in order]
    def mf(buf):
        R = FR[buf]
        A = lambda sg, kp: vr(R + (2*sg+kp)*4, 4)
        Xf = lambda xo, kp: vr(R + 16 + (2*xo+kp)*4, 4)
        o = []
        for kp in range(2):
            o.append(f"v_mfma_f32_32x32x16_bf16 {vr(ACC[0],16)}, {A(0,kp)}, {Xf(0,kp)}, {vr(ACC[0],16)}")
            o.append(f"v_mfma_f32_32x32x16_bf16 {vr(ACC[1],16)}, {A(0,kp)}, {Xf(1,kp)}, {vr(ACC[1],16)}")
            o.append(f"v_mfma_f32_32x32x16_bf16 {vr(ACC[1],16)}, {A(1,kp)}, {Xf(0,kp)}, {vr(ACC[1],16)}")
        return o
    for r in reads(0, 0): a(r)
    a(f"s_mov_b32 s{sIt}, 0")
    loop = a.newlabel("Lcv")
    a(f"{loop}:")
    a("s_waitcnt lgkmcnt(0)")
    for t in interleave(mf(0), reads(1, 1)): a(t)
    a("s_waitcnt lgkmcnt(0)")
    for t in interleave(mf(1), reads(0, 2)): a(t)
    a(f"""
    v_add_u32 v{vAa}, 128, v{vAa}
    v_subrev_u32 v{vXa}, 32, v{vXa}
    s_add_u32 s{sIt}, s{sIt}, 1
    s_cmp_lt_u32 s{sIt}, 8
    s_cbranch_scc1 {loop}
    s_waitcnt lgkmcnt(0)
    """)
    stamp(a, 2)
    l1 = a.newlabel("Lcx"); l2 = a.newlabel("Lcx")
    F = FR[0]
    a(f"""
    s_xor_b32 s{S_T+6}, s{S_BW}, 1
    s_mul_i32 s{S_T+6}, s{S_T+6}, {PRIVB}
    v_lshlrev_b32 v{T+1}, 4, v0
    v_add_u32 v{T+2}, s{S_T+6}, v{T+1}
    v_and_b32 v{T+3}, 31, v0
    v_lshlrev_b32 v{T+3}, 6, v{T+3}
    v_lshrrev_b32 v{T+4}, 5, v0
    v_lshl_add_u32 v{T+3}, v{T+4}, 5, v{T+3}
    v_add_u32 v{T+3}, s{S_PRIV}, v{T+3}
    s_lshl_b32 s{sU}, s{sD}, 12
    s_lshl_b32 s{S_T+5}, s{S_NH}, 11
    s_add_u32 s{sU}, s{sU}, s{S_T+5}
    s_add_u32 s{sU}, s{sU}, {YTB}
    s_cmp_eq_u32 s{S_NH}, 0
    s_cbranch_scc1 {l1}
    """)
    for k in range(4): a(f"ds_write_b128 v{T}, {vr(ACC[0]+4*k,4)} offset:{1024*k}")
    for k in range(16): a(f"v_mov_b32 v{F+k}, v{ACC[1]+k}")
    a(f"s_branch {l2}\n{l1}:")
    for k in range(4): a(f"ds_write_b128 v{T}, {vr(ACC[1]+4*k,4)} offset:{1024*k}")
    for k in range(16): a(f"v_mov_b32 v{F+k}, v{ACC[0]+k}")
    a(f"{l2}:\ns_waitcnt lgkmcnt(0)\ns_barrier")
    for k in range(4): a(f"ds_read_b128 {vr(F+16+4*k,4)}, v{T+2} offset:{1024*k}")
    a("s_waitcnt lgkmcnt(0)")
    for k in range(16): a(f"v_add_f32 v{F+k}, v{F+k}, v{F+16+k}")
    for k in range(8): a(f"v_cvt_pk_bf16_f32 v{F+32+k}, v{F+2*k}, v{F+2*k+1}")
    a(f"""
    ds_write_b128 v{T+3}, {vr(F+32,4)} offset:4096
    ds_write_b128 v{T+3}, {vr(F+36,4)} offset:4112
    ds_read_b128 {vr(F,4)}, v{T} offset:4096
    ds_read_b128 {vr(F+4,4)}, v{T} offset:5120
    s_waitcnt lgkmcnt(1)
    buffer_store_dwordx4 {vr(F,4)}, v{T+1}, s[{S_WS}:{S_WS+3}], s{sU} offen{pa.STORE_FLAGS}
    s_waitcnt lgkmcnt(0)
    buffer_store_dwordx4 {vr(F+4,4)}, v{T+1}, s[{S_WS}:{S_WS+3}], s{sU} offen offset:1024{pa.STORE_FLAGS}
    """)

def ytrans(a, STG):
    sS, sDd = S_T, S_T + 1
    a(f"""
    s_lshl_b32 s{sS}, s{S_J}, 18
    s_lshl_b32 s{S_T+5}, s{S_RB}, 7
    s_add_u32 s{sS}, s{sS}, s{S_T+5}
    s_add_u32 s{sS}, s{sS}, {YTB}
    """)
    tr_issue(a, S_WS, sS, 4096, STG, 2, 3)
    a(f"""
    s_mul_i32 s{sDd}, s{S_RB}, {64*1792}
    s_lshl_b32 s{S_T+5}, s{S_J}, 7
    s_add_u32 s{sDd}, s{sDd}, s{S_T+5}
    s_add_u32 s{sDd}, s{sDd}, 896
    s_waitcnt vmcnt(0)
    s_barrier
    """)
    tr_finish(a, S_OUT, sDd, 1792, STG, 16)
```

```python
import sys
from common import *
import common
common.STAMPS_ON = '--stamps' in sys.argv
import phases_a as pa
from phases_a import *
from phases_b import *
HDR = open('concat_heads__mha_block__ssm_conv_s4d__prompt.s.ref').read().split("; Override launch")[0]
out = HDR
out += "; @launch kernel=k1_kernel grid=(256,1,1) block=(512,1,1) lds=163840\n"
out += "; @launch kernel=k2_kernel grid=(256,1,1) block=(512,1,1) lds=163840\n"
out += "; @launch kernel=k3_kernel grid=(256,1,1) block=(512,1,1) lds=163840\n"
out += '.amdgcn_target "amdgcn-amd-amdhsa--gfx950"\n'
a = Asm(); a.uid = 100
prologue(a, ["ws", "x", "w", "u", "la", "ai", "cr", "ci"], "K1_end", True)
a(f"s_cmp_ge_u32 s{S_WAVE}, 4\ns_cbranch_scc1 K1_B")
nb = []
a("s_setprio 2")
gemm_qkv(a, nb, RING)
stamp_flush(a, 0, 6)
a("s_endpgm\nK1_B:")
kgen(a, True)
stamp_flush(a, 0, 4)
a("K1_end:\ns_endpgm")
out += khead("k1_kernel") + a.text() + kdesc("k1_kernel", 256)
a = Asm(); a.uid = 200
prologue(a, ["ws"], "K2_end", False)
a(f"s_cmp_ge_u32 s{S_WAVE}, 4\ns_cbranch_scc1 K2_B")
a("s_setprio 2")
attention(a, RING)
stamp_flush(a, 1, 5)
a("s_endpgm\nK2_B:")
a(f"s_cmp_ge_u32 s{S_T+1}, 28\ns_cbranch_scc1 K2_end")
b_setup(a)
conv(a, True)
stamp_flush(a, 1, 4)
a("K2_end:\ns_endpgm")
out += khead("k2_kernel") + a.text() + kdesc("k2_kernel", 256)
a = Asm(); a.uid = 300
prologue(a, ["ws", "wo", "out"], "K3_end", True)
a(f"s_cmp_ge_u32 s{S_WAVE}, 4\ns_cbranch_scc1 K3_B")
outproj(a, 0, 0xE400)
stamp_flush(a, 2, 4)
a("s_endpgm\nK3_B:")
b_setup(a, 90112)
ytrans(a, 81920)
stamp_flush(a, 2, 2)
a("K3_end:\ns_endpgm")
out += khead("k3_kernel") + a.text() + kdesc("k3_kernel", 256)
open(sys.argv[1] if len(sys.argv) > 1 else "v1.s", "w").write(out)
```

```python
import sys, math
from common import *
import common
STAMPS = '--stamps' in sys.argv
OPT = dict(x.split('=') for x in sys.argv[2:] if '=' in x)
CS = (28 ** -0.5) * math.log2(math.e)
LOG2E = math.log2(math.e)
KN = "concat_heads__mha_block__ssm_conv_s4d__prompt_kernel"

S_WS, S_X, S_W, S_WO, S_U, S_OUT, S_LA, S_AI, S_CR, S_CI = 4, 8, 12, 16, 20, 24, 28, 32, 36, 40
S_WAVE, S_J, S_RB, S_H, S_B, S_NH = 44, 45, 46, 47, 48, 49
S_T = 50
S_PRIV = 63
S_KA = 64
S_OFF = 76
S_BW, S_C = 90, 91
S_KV = 92
S_DBG = 96
S_NONCE, S_I = 100, 101
S3 = 3

PRIVB = 8704
KPLL = 4 * PRIVB
SP = 1568
KPLB = 4 * SP
RING = KPLL + 2 * KPLB
XCH = RING
WOL = RING + 49152
SYNC = RING + 114688
UROW = 4224
F1 = FLG
FU = FLG + 0x1C000
FY = FU + 0x7000
FO = FY + 0x7000
C_P1, C_W1, C_PO, C_WO, C_PU, C_WU, C_PY, C_WY = 96, 100, 104, 108, 112, 116, 120, 124
SF = " sc1"
LF = " sc1"
SPIN_MAX = 20000

a = Asm()
VST = 253
def stamp(idx):
    if STAMPS: a(f"s_memrealtime s[{64+2*idx}:{65+2*idx}]")
def stamp_save(bank, n):
    if not STAMPS: return
    a("s_waitcnt lgkmcnt(0)")
    for i in range(n): a(f"v_writelane_b32 v{VST}, s{64+2*i}, {bank*6+i}")
def stamp_flush():
    if not STAMPS: return
    a(f"s_lshl_b32 s62, s2, 3\ns_add_u32 s62, s62, s{S_WAVE}\ns_lshl_b32 s62, s62, 8\ns_add_u32 s62, s62, {STAMP}")
    a(f"v_lshlrev_b32 v254, 2, v0\nbuffer_store_dword v{VST}, v254, s[{S_WS}:{S_WS+3}], s62 offen")

class Q:
    def __init__(self, cap): self.q = []; self.cap = cap
    def issue(self, tag): self.q.append(tag)
    def wait_for(self, tag):
        idx = max(i for i, t in enumerate(self.q) if t == tag)
        return min(len(self.q) - 1 - idx, self.cap)

def srd(dst, ka_off, size):
    src = S_KA + ka_off // 4
    a(f"s_mov_b32 s{dst}, s{src}\ns_mov_b32 s{dst+1}, s{src+1}\ns_mov_b32 s{dst+2}, {size}\ns_mov_b32 s{dst+3}, 0x00020000")

def get_nonce(vT, issued=False):
    L = a.newlabel("Lnon"); D = a.newlabel("Lnon")
    a(f"s_mov_b32 s{S3}, 0")
    if issued:
        a(f"""s_waitcnt vmcnt(0)
        v_readfirstlane_b32 s{S_NONCE}, v{vT}
        s_cmp_lg_u32 s{S_NONCE}, 0
        s_cbranch_scc1 {D}""")
    a(f"""
    {L}:
    buffer_load_dword v{vT}, off, s[{S_DBG}:{S_DBG+3}], 0 sc1
    s_add_u32 s{S3}, s{S3}, 1
    s_waitcnt vmcnt(0)
    v_readfirstlane_b32 s{S_NONCE}, v{vT}
    s_cmp_gt_u32 s{S3}, {SPIN_MAX}
    s_cbranch_scc1 {D}
    s_cmp_lg_u32 s{S_NONCE}, 0
    s_cbranch_scc1 {D}
    s_sleep 8
    s_branch {L}
    {D}:
    """)

def poll(vA, vT, sleep):
    L = a.newlabel("Lpoll"); D = a.newlabel("Lpoll")
    a(f"""
    s_mov_b32 s{S3}, 0
    {L}:
    buffer_load_dword v{vT}, v{vA}, s[{S_WS}:{S_WS+3}], 0 offen sc1
    s_add_u32 s{S3}, s{S3}, 1
    s_cmp_gt_u32 s{S3}, {SPIN_MAX}
    s_cbranch_scc1 {D}
    s_waitcnt vmcnt(0)
    v_cmp_ne_u32 vcc, s{S_NONCE}, v{vT}
    s_cbranch_vccz {D}
    s_mov_b64 exec, vcc
    {f"s_sleep {sleep}" if sleep else ""}
    s_branch {L}
    {D}:
    s_mov_b64 exec, -1
    """)

def publish(sOff, vT):
    a(f"""
    v_mov_b32 v{vT}, s{S_NONCE}
    s_waitcnt vmcnt(0)
    s_mov_b64 exec, 1
    buffer_store_dword v{vT}, off, s[{S_WS}:{S_WS+3}], s{sOff} sc1
    s_mov_b64 exec, -1
    """)

def lds_wait(vaddr, off, k, vT, sleep=0):
    L = a.newlabel("Lpw"); D = a.newlabel("Lpw")
    a(f"""
    {L}:
    ds_read_b32 v{vT}, v{vaddr} offset:{off}
    s_waitcnt lgkmcnt(0)
    v_readfirstlane_b32 s{S3}, v{vT}
    s_cmp_ge_u32 s{S3}, {k}
    s_cbranch_scc1 {D}
    {f"s_sleep {sleep}" if sleep else ""}
    s_branch {L}
    {D}:
    """)

def group_publish(cnt, sOff, sLast, vSy, vT):
    L = a.newlabel("Lgp")
    a(f"""
    v_mov_b32 v{vT}, 1
    s_waitcnt vmcnt(0)
    s_mov_b64 exec, 1
    ds_add_rtn_u32 v{vT}, v{vSy}, v{vT} offset:{cnt}
    v_mov_b32 v{vT+1}, s{S_NONCE}
    s_waitcnt lgkmcnt(0)
    v_readfirstlane_b32 s{sLast}, v{vT}
    s_cmp_lg_u32 s{sLast}, 3
    s_cbranch_scc1 {L}
    buffer_store_dword v{vT+1}, off, s[{S_WS}:{S_WS+3}], s{sOff} sc1
    {L}:
    s_mov_b64 exec, -1
    """)

def group_wait(word, sSel, sel, vFa, vSy, vT, sleep):
    L = a.newlabel("Lgw"); D = a.newlabel("Lgw")
    a(f"s_cmp_lg_u32 s{sSel}, {sel}\ns_cbranch_scc1 {L}")
    poll(vFa, vT, sleep)
    a(f"""
    v_mov_b32 v{vT}, 1
    s_mov_b64 exec, 1
    ds_write_b32 v{vSy}, v{vT} offset:{word}
    s_mov_b64 exec, -1
    s_branch {D}
    {L}:
    """)
    lds_wait(vSy, word, 1, vT, 1)
    a(f"{D}:")

def prologue():
    a(f"""
    s_cmp_ge_u32 s2, 256
    s_cbranch_scc1 L_end
    s_load_dwordx16 s[{S_KA}:{S_KA+15}], s[0:1], 0
    s_load_dwordx8 s[{S_KA+16}:{S_KA+23}], s[0:1], 64
    s_load_dwordx2 s[{S_KA+24}:{S_KA+25}], s[0:1], 96
    v_lshrrev_b32 v1, 6, v0
    s_and_b32 s{S_T}, s2, 7
    s_lshr_b32 s{S_I}, s2, 3
    v_readfirstlane_b32 s{S_WAVE}, v1
    v_and_b32 v0, 63, v0
    {'v_mov_b32 v253, -1' if STAMPS else ''}
    s_and_b32 s{S_T+2}, s{S_I}, 1
    s_lshl_b32 s{S_H}, s{S_T}, 1
    s_add_u32 s{S_H}, s{S_H}, s{S_T+2}
    s_lshr_b32 s{S_B}, s2, 4
    s_and_b32 s{S_T+2}, s{S_T}, 1
    s_mul_i32 s{S_T+2}, s{S_T+2}, 28
    s_add_u32 s{S_T+2}, s{S_T+2}, s{S_I}
    s_lshr_b32 s{S_J}, s{S_T+2}, 3
    s_and_b32 s{S_T+2}, s{S_T+2}, 7
    s_lshr_b32 s{S_RB}, s{S_T}, 1
    s_lshl_b32 s{S_RB}, s{S_RB}, 3
    s_add_u32 s{S_RB}, s{S_RB}, s{S_T+2}
    v_mov_b32 v1, 0
    v_lshlrev_b32 v2, 2, v0
    v_add_u32 v2, {SYNC}, v2
    ds_write_b32 v2, v1
    s_cmp_ge_u32 s{S_WAVE}, 4
    s_cbranch_scc1 L_B
    """)

def gemm():
    vXa, vXb, vWa, vWb = 2, 3, 4, 5
    vXr = [6, 7, 8, 9]
    vWlo, vWhi = 10, 11
    vKst, vVst = 12, 13
    vT0, vT1, vT2 = 14, 15, 1
    XF, WF, ACC, PK = 16, 128, [192, 208], 224
    vSy, vOne, vRt, vNon = 232, 233, 234, 235
    sM, sKst, sVst, sV2, sQst, sTT, sCT, sCS, sFl = [S_T + i for i in range(9)]
    sA, sB_ = S_T + 11, S_T + 12
    XO = [S_OFF + i for i in range(7)]; WO_ = [S_OFF + 7 + i for i in range(7)]
    a(f"""
    v_lshrrev_b32 v{vT0}, 3, v0
    v_and_b32 v{vT1}, 7, v0
    s_lshl_b32 s{sM}, s{S_WAVE}, 4
    v_add_u32 v{vT2}, s{sM}, v{vT0}
    v_lshrrev_b32 v{vT0}, 1, v{vT0}
    v_xor_b32 v{vXa}, v{vT1}, v{vT0}
    v_lshlrev_b32 v{vXa}, 4, v{vXa}
    v_mul_u32_u24 v{vXb}, 896, v{vT2}
    v_add_u32 v{vXa}, v{vXa}, v{vXb}
    v_xor_b32 v{vXb}, 64, v{vXa}
    v_add_u32 v{vXb}, {8*896}, v{vXb}
    v_and_b32 v{vT0}, 1, v{vT0}
    v_lshlrev_b32 v{vT0}, 2, v{vT0}
    v_xor_b32 v{vT0}, v{vT1}, v{vT0}
    v_lshlrev_b32 v{vT0}, 4, v{vT0}
    v_mul_u32_u24 v{vWa}, 2688, v{vT2}
    v_add_u32 v{vWa}, v{vWa}, v{vT0}
    v_add_u32 v{vWb}, {8*2688}, v{vWa}
    s_lshl_b32 s{sM}, s{S_WAVE}, 11
    s_and_b32 s{sA}, s{S_RB}, 7
    s_lshl_b32 s{sB_}, s{S_J}, 1
    s_add_u32 s{sA}, s{sA}, s{sB_}
    s_mul_i32 s{sB_}, s{sA}, 37
    s_lshr_b32 s{sB_}, s{sB_}, 8
    s_mul_i32 s{sB_}, s{sB_}, 7
    s_sub_u32 s{sA}, s{sA}, s{sB_}
    s_mul_i32 s{sKst}, s{S_RB}, {64*896}
    s_lshl_b32 s{sVst}, s{S_J}, 7
    s_waitcnt lgkmcnt(0)
    s_barrier
    """)
    srd(S_X, KA_X, 1835008); srd(S_W, KA_WQKV, 1204224); srd(S_WS, KA_WS, WS_SIZE); srd(S_DBG, KA_DBG, 256); srd(S_OUT, KA_OUT, 3670016)
    stamp(0)
    vm = Q(63); lg = Q(15)
    def chunk_list(s):
        if s < 7: return [("x", s), ("k", s)]
        seq = [("v", c) for c in range(7)] + [("q", c) for c in range(7)]
        return seq[2 * (s - 7): 2 * (s - 7) + 2]
    secoff = dict(q=0, k=896, v=1792)
    def dma(s):
        ins = []
        base = RING + (s % 7) * 16384
        for ci, (kind, c) in enumerate(chunk_list(s)):
            for half in range(2):
                blk = [f"s_add_u32 m0, s{sM}, {base + ci * 8192 + half * 1024}"]
                if kind == "x":
                    blk.append("s_nop 0")
                    blk.append(f"buffer_load_dwordx4 v{vXa if half == 0 else vXb}, s[{S_X}:{S_X+3}], s{XO[c]} offen lds")
                else:
                    if half == 0: blk.append(f"s_add_u32 s{sB_}, s{WO_[c]}, {secoff[kind]}")
                    else: blk.append("s_nop 0")
                    blk.append(f"buffer_load_dwordx4 v{vWa if half == 0 else vWb}, s[{S_W}:{S_W+3}], s{sB_} offen lds")
                ins.append(("\n".join(blk), ("v", ("d", s))))
        return ins
    for s in range(7):
        a(f"""
        s_lshl_b32 s{XO[s]}, s{sA}, 7
        s_add_u32 s{XO[s]}, s{XO[s]}, s{sKst}
        s_mul_i32 s{WO_[s]}, s{sA}, {64*2688}
        s_add_u32 s{WO_[s]}, s{WO_[s]}, s{sVst}
        s_add_u32 s{sA}, s{sA}, 1
        s_cmp_eq_u32 s{sA}, 7
        s_cselect_b32 s{sA}, 0, s{sA}
        """)
        for t, tag in dma(s):
            a(t); vm.issue(tag[1])
    a(f"""
    s_lshr_b32 s{sTT}, s{S_WAVE}, 1
    s_and_b32 s{sCT}, s{S_WAVE}, 1
    v_and_b32 v{vT0}, 31, v0
    v_lshrrev_b32 v{vT1}, 5, v0
    v_lshrrev_b32 v{vT2}, 1, v{vT0}
    v_and_b32 v{vT2}, 7, v{vT2}
    v_xor_b32 v{vT2}, v{vT2}, v{vT1}
    v_lshlrev_b32 v{vT2}, 4, v{vT2}
    v_lshl_add_u32 v{vXr[0]}, v{vT0}, 7, v{vT2}
    s_lshl_b32 s{sA}, s{sTT}, 12
    v_xor_b32 v{vXr[1]}, 32, v{vXr[0]}
    v_xor_b32 v{vXr[2]}, 64, v{vXr[0]}
    v_xor_b32 v{vXr[3]}, 96, v{vXr[0]}
    s_add_u32 s{sA}, s{sA}, {RING}
    v_add_u32 v{vXr[0]}, s{sA}, v{vXr[0]}
    v_add_u32 v{vXr[1]}, s{sA}, v{vXr[1]}
    v_add_u32 v{vXr[2]}, s{sA}, v{vXr[2]}
    v_add_u32 v{vXr[3]}, s{sA}, v{vXr[3]}
    v_bfe_u32 v{vT2}, v0, 2, 2
    v_lshl_add_u32 v{vWlo}, v{vT1}, 3, v{vT2}
    v_lshlrev_b32 v{vWlo}, 7, v{vWlo}
    v_lshrrev_b32 v{vT2}, 1, v{vT2}
    v_xor_b32 v{vT2}, s{sCT}, v{vT2}
    v_lshl_add_u32 v{vWlo}, v{vT2}, 6, v{vWlo}
    v_bfe_u32 v{vT2}, v0, 4, 1
    v_lshl_add_u32 v{vWlo}, v{vT2}, 5, v{vWlo}
    v_and_b32 v{vT2}, 1, v0
    v_lshl_add_u32 v{vWlo}, v{vT2}, 4, v{vWlo}
    v_bfe_u32 v{vT2}, v0, 1, 1
    v_lshl_add_u32 v{vWlo}, v{vT2}, 3, v{vWlo}
    v_add_u32 v{vWlo}, {RING}, v{vWlo}
    v_add_u32 v{vWhi}, 0x10000, v{vWlo}
    v_lshlrev_b32 v{vKst}, 4, v0
    v_and_b32 v{vVst}, 0x13, v{vT0}
    v_bfe_u32 v{vT2}, v{vT0}, 2, 1
    v_lshl_add_u32 v{vVst}, v{vT2}, 3, v{vVst}
    v_bfe_u32 v{vT2}, v{vT0}, 3, 1
    v_lshl_add_u32 v{vVst}, v{vT2}, 2, v{vVst}
    v_lshlrev_b32 v{vVst}, 4, v{vVst}
    v_mul_u32_u24 v{vT2}, 7168, v{vT1}
    v_add_u32 v{vVst}, v{vVst}, v{vT2}
    s_lshl_b32 s{sA}, s{S_RB}, 1
    s_add_u32 s{sA}, s{sA}, s{sTT}               ; tile
    s_lshl_b32 s{sB_}, s{S_J}, 1
    s_add_u32 s{sB_}, s{sB_}, s{sCT}             ; cti
    s_lshl_b32 s{sFl}, s{sB_}, 6
    s_add_u32 s{sFl}, s{sFl}, s{sA}
    s_lshl_b32 s{sFl}, s{sFl}, 7
    s_add_u32 s{sFl}, s{sFl}, {F1}
    s_mul_i32 s{sA}, s{sA}, {TILEB}
    s_lshl_b32 s{sQst}, s{sB_}, 11
    s_add_u32 s{sQst}, s{sQst}, s{sA}
    s_add_u32 s{sKst}, s{sQst}, {KBUF}
    s_lshl_b32 s{sVst}, s{sB_}, 9
    s_add_u32 s{sVst}, s{sVst}, s{sA}
    s_add_u32 s{sVst}, s{sVst}, {VBUF}
    s_add_u32 s{sV2}, s{sVst}, 14336
    s_mov_b32 s{sCS}, {hex(f32bits(CS))}
    v_mov_b32 v{vSy}, {SYNC}
    v_mov_b32 v{vOne}, 1
    """)
    def reads(s):
        pos = s % 7
        buf = WF + (s % 2) * 32
        per = {}
        fi = 0
        for ci, (kind, c) in enumerate(chunk_list(s)):
            off = pos * 16384 + ci * 8192
            if kind == "x":
                for kp in range(4):
                    per.setdefault(kp, []).append(f"ds_read_b128 {vr(XF + (4 * c + kp) * 4, 4)}, v{vXr[kp]} offset:{off & 0xffff}")
            else:
                va = vWhi if off >= 65536 else vWlo
                for kp in range(4):
                    for i2 in range(2):
                        per.setdefault(fi, []).append(f"ds_read_b64_tr_b16 {vr(buf + fi * 4 + i2 * 2, 2)}, v{va} offset:{(off & 0xffff) + kp * 2048 + i2 * 512}")
                    fi += 1
        return [(t, ("l", (s, f))) for f in sorted(per) for t in per[f]]
    def mfmas(s):
        ins = []
        buf = WF + (s % 2) * 32
        fi = 0
        for (kind, c) in chunk_list(s):
            if kind == "x": continue
            acc = ACC[1] if kind == "v" else ACC[0]
            for kp in range(4):
                w = vr(buf + fi * 4, 4); x = vr(XF + (4 * c + kp) * 4, 4)
                cc = "0" if (c == 0 and kp == 0) else vr(acc, 16)
                if kind == "v": t = f"v_mfma_f32_32x32x16_bf16 {vr(acc,16)}, {x}, {w}, {cc}"
                else: t = f"v_mfma_f32_32x32x16_bf16 {vr(acc,16)}, {w}, {x}, {cc}"
                ins.append((t, ("m", (s, fi)))); fi += 1
        return ins
    def epi(kind):
        acc = ACC[1] if kind == "v" else ACC[0]
        ins = []
        if kind == "k":
            for i in range(16): ins.append((f"v_mul_f32 v{acc+i}, s{sCS}, v{acc+i}", None))
        for i in range(8): ins.append((f"v_cvt_pk_bf16_f32 v{PK+i}, v{acc+2*i}, v{acc+2*i+1}", None))
        if kind == "v":
            ins.append((f"buffer_store_dwordx4 {vr(PK,4)}, v{vVst}, s[{S_WS}:{S_WS+3}], s{sVst} offen{SF}", ("v", "st")))
            ins.append((f"buffer_store_dwordx4 {vr(PK+4,4)}, v{vVst}, s[{S_WS}:{S_WS+3}], s{sV2} offen{SF}", ("v", "st")))
        else:
            so = sKst if kind == "k" else sQst
            ins.append((f"buffer_store_dwordx4 {vr(PK,4)}, v{vKst}, s[{S_WS}:{S_WS+3}], s{so} offen{SF}", ("v", "st")))
            ins.append((f"buffer_store_dwordx4 {vr(PK+4,4)}, v{vKst}, s[{S_WS}:{S_WS+3}], s{so} offen offset:1024{SF}", ("v", "st")))
        return ins
    waited = [None]
    def emit(seq):
        for t, tag in seq:
            if tag and tag[0] == "m":
                if tag[1] in lg.q:
                    n = lg.wait_for(tag[1])
                    a(f"s_waitcnt lgkmcnt({n})")
                    lg.q = lg.q[len(lg.q) - n:] if n else []
            a(t)
            if tag and tag[0] == "v": vm.issue(tag[1])
            if tag and tag[0] == "l": lg.issue(tag[1])
    for s in range(14):
        a(f"; ---- slot {s}")
        a(f"""
        s_waitcnt vmcnt({vm.wait_for(('d', s))})
        s_mov_b64 exec, 1
        ds_add_rtn_u32 v{vRt}, v{vSy}, v{vOne} offset:{4*s}
        s_mov_b64 exec, -1
        """)
        lg.issue("sig")
        if s in (0, 6, 10, 13): stamp({0: 1, 6: 2, 10: 3, 13: 4}[s])
        m = mfmas(s - 1) if s >= 1 else []
        h = len(m) // 2
        f1 = []
        if s == 8: f1 = epi("k")
        if s == 12: f1 = epi("v")
        if s == 9: f1 = [(f"buffer_load_dword v{vNon}, off, s[{S_DBG}:{S_DBG+3}], 0 sc1", ("v", "non"))]
        if s == 4: f1 = [(f"v_add_u32 v{r}, 0x10000, v{r}", None) for r in vXr]
        emit(interleave(m[:h], f1) if h else f1)
        L = a.newlabel("Lgs"); D = a.newlabel("Lgs")
        a(f"""
        s_waitcnt lgkmcnt(0)
        v_readfirstlane_b32 s{sA}, v{vRt}
        s_cmp_eq_u32 s{sA}, 3
        s_cbranch_scc1 {D}
        {L}:
        ds_read_b32 v{vRt}, v{vSy} offset:{4*s}
        s_waitcnt lgkmcnt(0)
        v_readfirstlane_b32 s{sA}, v{vRt}
        s_cmp_lt_u32 s{sA}, 4
        s_cbranch_scc1 {L}
        {D}:
        """)
        lg.q = []
        f2 = reads(s)
        if 2 <= s <= 8: f2 = f2 + dma(s + 5)
        emit(interleave(m[h:], f2) if h else f2)
    emit(mfmas(13))
    a(f"""
    s_mov_b64 exec, 1
    ds_add_u32 v{vSy}, v{vOne} offset:56
    s_mov_b64 exec, -1
    s_nop 8
    """)
    emit(epi("q"))
    a(f"s_mov_b32 s{S_OFF}, s{sFl}")

def idle_prefetch():
    a("s_waitcnt lgkmcnt(0)")
    srd(S_WS, KA_WS, WS_SIZE); srd(S_DBG, KA_DBG, 256); srd(S_OUT, KA_OUT, 3670016)
    a(f"v_mov_b32 v235, 0")

def attention():
    vKa, vVa, vVb = 2, 3, 4
    vT0, vT1, vT2, vL = 5, 6, 7, 1
    Qr, O, S, P = 8, 40, [104, 120], [136, 144]
    KB = [152 + 16 * i for i in range(4)]
    VB = [160 + 16 * i for i in range(4)]
    sK, sCnt, sOst, sFl = S_T, S_T + 1, S_T + 2, S_T + 3
    sMask = S_T + 4
    sQ = [S_T + 6 + i for i in range(4)]
    sA, sB_ = S_T + 10, S_T + 11
    a(f"""
    s_mov_b32 s{S_KV}, s{S_WS}
    s_mov_b32 s{S_KV+1}, s{S_WS+1}
    s_mov_b32 s{S_KV+2}, {WS_SIZE}
    s_mov_b32 s{S_KV+3}, 0x00020000
    s_mul_i32 s{sA}, s{S_H}, 7
    s_lshr_b32 s{sA}, s{sA}, 1                ; p0
    v_bfe_u32 v{vT0}, v0, 4, 1
    v_and_b32 v{vT1}, 15, v0
    s_lshl_b32 s{sB_}, s{S_WAVE}, 4
    v_add_u32 v{vT1}, s{sB_}, v{vT1}
    v_bfe_u32 v{vT2}, v0, 2, 1
    v_and_b32 v{vL}, 3, v0
    s_lshl_b32 s{sB_}, s{S_B}, 2
    v_add_u32 v{vL}, s{sB_}, v{vL}
    v_cmp_gt_u32 vcc, 32, v0
    s_add_u32 s{sB_}, s{sA}, 3
    s_lshr_b32 s{sB_}, s{sB_}, 2
    v_cndmask_b32 v{vT0}, v{vT2}, v{vT0}, vcc
    v_cndmask_b32 v{vT1}, v{vL}, v{vT1}, vcc
    s_lshr_b32 s{sCnt}, s{sA}, 2
    v_add_u32 v{vT0}, s{sCnt}, v{vT0}
    v_min_u32 v{vT0}, s{sB_}, v{vT0}
    v_lshl_add_u32 v{vT0}, v{vT0}, 6, v{vT1}
    v_lshlrev_b32 v{vT0}, 7, v{vT0}
    v_add_u32 v{vL}, {F1}, v{vT0}
    s_lshl_b32 s{sA}, s{sA}, 9
    v_lshlrev_b32 v{vKa}, 4, v0
    v_add_u32 v{vKa}, s{sA}, v{vKa}
    """)
    for q in range(4):
        a(f"""
        s_add_u32 s{sQ[q]}, s{S_WAVE}, {q+1}
        s_and_b32 s{sQ[q]}, s{sQ[q]}, 3
        s_lshl_b32 s{sA}, s{S_B}, 2
        s_add_u32 s{sQ[q]}, s{sQ[q]}, s{sA}
        s_mul_i32 s{sQ[q]}, s{sQ[q]}, {TILEB}
        """)
    a(f"""
    v_and_b32 v{vT0}, 31, v0
    v_lshrrev_b32 v{vT1}, 5, v0
    v_and_b32 v{vVa}, 0x13, v{vT0}
    v_bfe_u32 v{vT2}, v{vT0}, 2, 1
    v_lshl_add_u32 v{vVa}, v{vT2}, 3, v{vVa}
    v_bfe_u32 v{vT2}, v{vT0}, 3, 1
    v_lshl_add_u32 v{vVa}, v{vT2}, 2, v{vVa}
    v_lshlrev_b32 v{vVa}, 4, v{vVa}
    v_mul_u32_u24 v{vT2}, 7168, v{vT1}
    v_add_u32 v{vVa}, v{vVa}, v{vT2}
    s_mul_i32 s{sA}, s{S_H}, 448
    s_add_u32 s{sA}, s{sA}, {VBUF - KBUF}
    v_add_u32 v{vVa}, s{sA}, v{vVa}
    v_add_u32 v{vVb}, 14336, v{vVa}
    s_mul_i32 s{sK}, s{S_WAVE}, {16 * TILEB}
    s_add_u32 s{sK}, s{sK}, {KBUF}
    s_mov_b32 s{sMask}, 0x0fffffff
    s_mov_b32 s{sMask+1}, 0x0fffffff
    v_mov_b32 v{vT2}, 0x3f803f80
    v_cmp_eq_u32 vcc, 28, v{vT0}
    s_nop 1
    v_cndmask_b32 v{vT2}, 0, v{vT2}, vcc
    """)
    for b in range(4):
        for i in range(8): a(f"v_mov_b32 v{VB[b]+i}, v{vT2}")
    for i in range(64): a(f"v_mov_b32 v{O+i}, 0")
    for i in range(8): a(f"v_mov_b32 v{P[1]+i}, 0")
    get_nonce(235, issued=True)
    lp = a.newlabel("Lnp")
    a(f"s_cmp_ge_u32 s{S_I}, 28\ns_cbranch_scc1 {lp}")
    publish(S_OFF, vT0)
    stamp(5)
    stamp_save(0, 6)
    a(f"{lp}:")
    stamp(0)
    a("s_mov_b32 exec_hi, 0xff")
    poll(vL, vT0, 2)
    stamp(1)
    def ldK(b, so):
        return [f"buffer_load_dwordx4 {vr(KB[b],4)}, v{vKa}, s[{S_KV}:{S_KV+3}], s{so} offen{LF}",
                f"buffer_load_dwordx4 {vr(KB[b]+4,4)}, v{vKa}, s[{S_KV}:{S_KV+3}], s{so} offen offset:1024{LF}"]
    def ldV(b, so):
        return [f"s_mov_b64 exec, s[{sMask}:{sMask+1}]\n"
                f"buffer_load_dwordx4 {vr(VB[b],4)}, v{vVa}, s[{S_KV}:{S_KV+3}], s{so} offen{LF}\n"
                f"buffer_load_dwordx4 {vr(VB[b]+4,4)}, v{vVb}, s[{S_KV}:{S_KV+3}], s{so} offen{LF}\n"
                f"s_mov_b64 exec, -1"]
    def ldQ(q):
        a(f"buffer_load_dwordx4 {vr(Qr+8*q,4)}, v{vKa}, s[{S_WS}:{S_WS+3}], s{sQ[q]} offen{LF}")
        a(f"buffer_load_dwordx4 {vr(Qr+8*q+4,4)}, v{vKa}, s[{S_WS}:{S_WS+3}], s{sQ[q]} offen offset:1024{LF}")
    ldQ(0)
    for l in ldK(0, sK): a(l)
    for q in (1, 2, 3): ldQ(q)
    for t in range(4):
        if t:
            for l in ldK(t, sK): a(l)
        if t < 3:
            for l in ldV(t, sK): a(l)
            a(f"s_add_u32 s{sK}, s{sK}, {TILEB}")
    def fixq(qs, n):
        lab = a.newlabel("Lqz"); lab2 = a.newlabel("Lqz")
        a(f"""
        s_bitcmp0_b32 s{S_H}, 0
        s_waitcnt vmcnt({n})
        s_cbranch_scc1 {lab}
        s_mov_b32 exec_hi, 0
        """)
        for q in qs: a(f"v_mov_b32 v{Qr+8*q}, 0\nv_mov_b32 v{Qr+8*q+1}, 0")
        a(f"s_branch {lab2}\n{lab}:\ns_mov_b32 exec_lo, 0")
        for q in qs: a(f"v_mov_b32 v{Qr+8*q+6}, 0\nv_mov_b32 v{Qr+8*q+7}, 0")
        a(f"{lab2}:\ns_mov_b64 exec, -1")
    fixq([0], 20)
    def qk(u):
        i, q = (u // 4) % 4, u % 4
        s = S[u % 2]
        return [f"v_mfma_f32_32x32x16_bf16 {vr(s,16)}, {vr(KB[i],4)}, {vr(Qr+8*q,4)}, 0",
                f"v_mfma_f32_32x32x16_bf16 {vr(s,16)}, {vr(KB[i]+4,4)}, {vr(Qr+8*q+4,4)}, {vr(s,16)}"]
    def pv(u):
        i, q = (u // 4) % 4, u % 4
        p = P[u % 2]; o = O + 16 * q
        return [f"v_mfma_f32_32x32x16_bf16 {vr(o,16)}, {vr(VB[i],4)}, {vr(p,4)}, {vr(o,16)}",
                f"v_mfma_f32_32x32x16_bf16 {vr(o,16)}, {vr(VB[i]+4,4)}, {vr(p+4,4)}, {vr(o,16)}"]
    a(f"s_waitcnt vmcnt(18)\ns_mov_b32 s{sCnt}, 0\ns_nop 1")
    stamp(2)
    for m in qk(0): a(m)
    fixq([1, 2, 3], 12)
    a("s_nop 3")
    loop = a.newlabel("Lattn")
    a(".p2align 6")
    a(f"{loop}:")
    for u in range(16):
        i, q = u // 4, u % 4
        s = S[u % 2]; p = P[u % 2]
        m = qk(u + 1) + pv(u - 1)
        extra = {k: [] for k in range(16)}
        pre = []
        if q == 3:
            pre.append("s_waitcnt vmcnt(10)")
            if i == 0:
                extra[1].append(f"s_cmp_eq_u32 s{sCnt}, 3\ns_cselect_b32 s{S_KV+2}, 0, s{S_KV+2}")
            extra[2].append(f"s_add_u32 s{sK}, s{sK}, {TILEB}")
            lk = ldK(i, sK)
            extra[5].append(lk[0]); extra[5].append(lk[1])
        if q == 1:
            extra[6].append("s_waitcnt vmcnt(10)")
            extra[9].append(ldV((i + 3) % 4, sK)[0])
        for l in pre: a(l)
        for g in range(4):
            a(m[g])
            for k in range(4 * g, 4 * g + 4):
                a(f"v_exp_f32 v{s+k}, v{s+k}")
                for l in extra[k]: a(l)
                if k % 2 == 0 and k >= 2:
                    a(f"v_cvt_pk_bf16_f32 v{p+(k-2)//2}, v{s+k-2}, v{s+k-1}")
        a("s_nop 0")
        a(f"v_cvt_pk_bf16_f32 v{p+7}, v{s+14}, v{s+15}")
    a(f"""
    s_add_u32 s{sCnt}, s{sCnt}, 1
    s_cmp_lt_u32 s{sCnt}, 4
    s_cbranch_scc1 {loop}
    s_nop 1
    """)
    for m in pv(15): a(m)
    stamp(3)
    a(f"v_lshlrev_b32 v{vT0}, 4, v0")
    for q in range(3):
        a(f"""
        s_add_u32 s{sA}, s{S_WAVE}, {q+1}
        s_and_b32 s{sA}, s{sA}, 3
        s_mul_i32 s{sA}, s{sA}, 12288
        v_add_u32 v{vT1}, s{sA}, v{vT0}
        """)
        for k in range(4):
            a(f"ds_write_b128 v{vT1}, {vr(O+16*q+4*k,4)} offset:{XCH + q*4096 + k*1024}")
    a(f"""
    s_mul_i32 s{sA}, s{S_WAVE}, 12288
    v_add_u32 v{vT1}, s{sA}, v{vT0}
    s_waitcnt lgkmcnt(0)
    s_barrier
    """)
    for q in range(3):
        for k in range(4):
            a(f"ds_read_b128 {vr(O+16*q+4*k,4)}, v{vT1} offset:{XCH + q*4096 + k*1024}")
    F = O + 48
    stamp(4)
    for q in range(3):
        a(f"s_waitcnt lgkmcnt({8 - 4*q})")
        for k in range(16): a(f"v_add_f32 v{F+k}, v{F+k}, v{O+16*q+k}")
    a(f"""
    v_mov_b32 v{vT1}, v{F+12}
    v_mov_b32 v{vL}, v{F+12}
    s_lshl_b32 s{sOst}, s{S_B}, 2
    s_add_u32 s{sOst}, s{sOst}, s{S_WAVE}
    v_permlane32_swap_b32 v{vT1}, v{vL}
    s_lshl_b32 s{sOst}, s{sOst}, 4
    s_add_u32 s{sOst}, s{sOst}, s{S_H}
    v_rcp_f32 v{vT1}, v{vL}
    v_cmp_gt_u32 vcc, 32, v0
    s_lshl_b32 s{sFl}, s{sOst}, 7
    s_add_u32 s{sFl}, s{sFl}, {FO}
    s_lshl_b32 s{sOst}, s{sOst}, 11
    s_add_u32 s{sOst}, s{sOst}, {OBUF}
    v_cndmask_b32 v{vT2}, 0, v{vT1}, vcc
    """)
    for k in range(16): a(f"v_mul_f32 v{F+k}, v{F+k}, v{vT1 if k < 12 else vT2}")
    for k in range(8): a(f"v_cvt_pk_bf16_f32 v{O+k}, v{F+2*k}, v{F+2*k+1}")
    a(f"buffer_store_dwordx4 {vr(O,4)}, v{vT0}, s[{S_WS}:{S_WS+3}], s{sOst} offen{SF}")
    a(f"buffer_store_dwordx4 {vr(O+4,4)}, v{vT0}, s[{S_WS}:{S_WS+3}], s{sOst} offen offset:1024{SF}")
    return sFl

def outproj(sFl):
    vOa, vWr0, vWr1, vT0, vT1, vT2, vSt, vFa = 3, 4, 5, 6, 7, 1, 8, 9
    OF = 48
    WF = 112
    ACC = [16, 32]
    sO, sTT, sKH, sA = S_T + 4, S_T + 5, S_T + 6, S_T + 7
    a(f"""
    s_lshr_b32 s{sTT}, s{S_WAVE}, 1
    s_and_b32 s{sKH}, s{S_WAVE}, 1
    v_lshrrev_b32 v{vT1}, 5, v0
    v_bfe_u32 v{vT2}, v0, 2, 2
    v_lshl_add_u32 v{vWr0}, v{vT1}, 3, v{vT2}
    s_mul_i32 s{sA}, s{sKH}, 224
    v_add_u32 v{vWr0}, s{sA}, v{vWr0}
    v_lshlrev_b32 v{vWr0}, 7, v{vWr0}
    v_lshrrev_b32 v{vT2}, 1, v{vT2}
    v_lshl_add_u32 v{vWr0}, v{vT2}, 6, v{vWr0}
    v_and_b32 v{vT2}, 1, v0
    v_lshl_add_u32 v{vWr0}, v{vT2}, 5, v{vWr0}
    v_bfe_u32 v{vT2}, v0, 4, 1
    v_lshl_add_u32 v{vWr0}, v{vT2}, 4, v{vWr0}
    v_bfe_u32 v{vT2}, v0, 1, 1
    v_lshl_add_u32 v{vWr0}, v{vT2}, 3, v{vWr0}
    v_xor_b32 v{vWr1}, 64, v{vWr0}
    v_add_u32 v{vWr0}, {WOL}, v{vWr0}
    v_add_u32 v{vWr1}, {WOL}, v{vWr1}
    """)
    rd = []
    for hl in range(8):
        for f in range(2):
            for ct in range(2):
                for i2 in range(2):
                    rd.append(f"ds_read_b64_tr_b16 {vr(WF + ((2*hl+f)*2+ct)*4 + 2*i2, 2)}, v{vWr1 if ct else vWr0} offset:{(28*hl + 16*f + 4*i2)*128}")
    for r in rd[:24]: a(r)
    publish(sFl, 10)
    stamp(5)
    for r in rd[24:]: a(r)
    a(f"""
    v_lshlrev_b32 v{vOa}, 4, v0
    s_lshl_b32 s{sO}, s{S_RB}, 1
    s_add_u32 s{sO}, s{sO}, s{sTT}
    s_lshl_b32 s{sO}, s{sO}, 1
    s_add_u32 s{sO}, s{sO}, s{sKH}         ; tile*2+kh
    v_lshlrev_b32 v{vFa}, 7, v0
    s_lshl_b32 s{sA}, s{sO}, 10
    s_add_u32 s{sA}, s{sA}, {FO}
    v_add_u32 v{vFa}, s{sA}, v{vFa}
    s_lshl_b32 s{sO}, s{sO}, 14
    s_add_u32 s{sO}, s{sO}, {OBUF}
    v_and_b32 v{vT0}, 31, v0
    v_mul_u32_u24 v{vSt}, 1792, v{vT0}
    v_lshl_add_u32 v{vSt}, v{vT1}, 5, v{vSt}
    """)
    stamp_save(1, 6)
    stamp(0)
    a("s_mov_b64 exec, 0xff")
    poll(vFa, 10, 0)
    stamp(1)
    for i in range(16):
        if i % 4 == 0 and i: a(f"s_add_u32 s{sO}, s{sO}, 4096")
        a(f"buffer_load_dwordx4 {vr(OF+4*i,4)}, v{vOa}, s[{S_WS}:{S_WS+3}], s{sO} offen offset:{(i%4)*1024}{LF}")
    a(f"""
    s_lshl_b32 s{sA}, s{S_WAVE}, 12
    v_add_u32 v{vT1}, s{sA}, v{vOa}
    v_xor_b32 v{vT2}, 0x1000, v{vT1}
    s_lshl_b32 s{sO}, s{S_RB}, 1
    s_add_u32 s{sO}, s{sO}, s{sTT}
    s_mul_i32 s{sO}, s{sO}, {32*1792}
    s_lshl_b32 s{sA}, s{S_J}, 1
    s_add_u32 s{sA}, s{sA}, s{sKH}
    s_lshl_b32 s{sA}, s{sA}, 6
    s_add_u32 s{sO}, s{sO}, s{sA}
    s_waitcnt lgkmcnt(0)
    """)
    for i in range(16):
        a(f"s_waitcnt vmcnt({15 - i})")
        for ct in range(2):
            cc = "0" if i == 0 else vr(ACC[ct], 16)
            a(f"v_mfma_f32_32x32x16_bf16 {vr(ACC[ct],16)}, {vr(WF+(2*i+ct)*4,4)}, {vr(OF+4*i,4)}, {cc}")
    stamp(2)
    l1 = a.newlabel("Lop"); l2 = a.newlabel("Lop")
    a(f"""
    s_nop 9
    s_cmp_eq_u32 s{sKH}, 0
    s_cbranch_scc1 {l1}
    """)
    for k in range(4): a(f"ds_write_b128 v{vT1}, {vr(ACC[0]+4*k,4)} offset:{k*1024}")
    for k in range(16): a(f"v_mov_b32 v{OF+k}, v{ACC[1]+k}")
    a(f"s_branch {l2}\n{l1}:")
    for k in range(4): a(f"ds_write_b128 v{vT1}, {vr(ACC[1]+4*k,4)} offset:{k*1024}")
    for k in range(16): a(f"v_mov_b32 v{OF+k}, v{ACC[0]+k}")
    a(f"{l2}:\ns_waitcnt lgkmcnt(0)\ns_barrier")
    for k in range(4): a(f"ds_read_b128 {vr(OF+16+4*k,4)}, v{vT2} offset:{k*1024}")
    a("s_waitcnt lgkmcnt(0)")
    for k in range(16): a(f"v_add_f32 v{OF+k}, v{OF+k}, v{OF+16+k}")
    for k in range(8): a(f"v_cvt_pk_bf16_f32 v{OF+32+k}, v{OF+2*k}, v{OF+2*k+1}")
    a(f"buffer_store_dwordx4 {vr(OF+32,4)}, v{vSt}, s[{S_OUT}:{S_OUT+3}], s{sO} offen")
    a(f"buffer_store_dwordx4 {vr(OF+36,4)}, v{vSt}, s[{S_OUT}:{S_OUT+3}], s{sO} offen offset:16")
    if STAMPS: a("s_waitcnt vmcnt(0)")
    stamp(3)
    stamp_save(2, 4)
    stamp_flush()

vMy, vPa, vSg, vSyB = 140, 141, 142, 213
def pair_signal(k):
    a(f"v_mov_b32 v{vSg}, {k}\ns_mov_b64 exec, 1\nds_write_b32 v{vMy}, v{vSg}\ns_mov_b64 exec, -1")

def tr_load(srd_, soff, pitch, R, flags=""):
    a(f"""
    v_lshrrev_b32 v{R+9}, 1, v0
    v_mul_u32_u24 v{R+8}, {pitch}, v{R+9}
    v_and_b32 v{R+9}, 1, v0
    v_lshl_add_u32 v{R+8}, v{R+9}, 4, v{R+8}
    s_lshl_b32 s{S_T+12}, s{S_BW}, 5
    s_add_u32 s{soff}, s{soff}, s{S_T+12}
    s_add_u32 s{S_T+12}, s{soff}, {32*pitch}
    buffer_load_dwordx4 {vr(R,4)}, v{R+8}, s[{srd_}:{srd_+3}], s{soff} offen{flags}
    buffer_load_dwordx4 {vr(R+4,4)}, v{R+8}, s[{srd_}:{srd_+3}], s{S_T+12} offen{flags}
    """)
def tr_finish(srd_, soff, pitch, R, LO, flags="", zero_pad=False):
    vA, vB, vT = R + 8, R + 9, R + 10
    a(f"""
    v_lshlrev_b32 v{vA}, 4, v0
    v_add_u32 v{vA}, s{S_PRIV}, v{vA}
    ds_write_b128 v{vA}, {vr(R,4)} offset:{LO}
    ds_write_b128 v{vA}, {vr(R+4,4)} offset:{LO+1024}
    v_lshrrev_b32 v{vT}, 4, v0
    v_and_b32 v{vB}, 15, v0
    v_lshlrev_b32 v{vA}, 9, v{vT}
    v_lshl_add_u32 v{vA}, v{vB}, 3, v{vA}
    v_add_u32 v{vA}, s{S_PRIV}, v{vA}
    """)
    for i in range(4): a(f"ds_read_b64_tr_b16 {vr(R+2*i,2)}, v{vA} offset:{LO + i*128}")
    a(f"""
    v_mul_u32_u24 v{vB}, 144, v{vB}
    v_lshl_add_u32 v{vB}, v{vT}, 5, v{vB}
    v_add_u32 v{vB}, s{S_PRIV}, v{vB}
    v_lshrrev_b32 v{vT}, 3, v0
    v_mul_u32_u24 v{vA}, 144, v{vT}
    v_mul_u32_u24 v{vT}, {pitch}, v{vT}
    v_and_b32 v{vT+1}, 7, v0
    v_lshl_add_u32 v{vA}, v{vT+1}, 4, v{vA}
    v_add_u32 v{vA}, s{S_PRIV}, v{vA}
    v_lshl_add_u32 v{vT}, v{vT+1}, 4, v{vT}
    s_mul_i32 s{S_T+12}, s{S_BW}, {16*pitch}
    s_add_u32 s{soff}, s{soff}, s{S_T+12}
    s_add_u32 s{S_T+12}, s{soff}, {8*pitch}
    s_waitcnt lgkmcnt(0)
    ds_write_b128 v{vB}, {vr(R,4)} offset:{LO+2048}
    ds_write_b128 v{vB}, {vr(R+4,4)} offset:{LO+2048+16}
    ds_read_b128 {vr(R,4)}, v{vA} offset:{LO+2048}
    ds_read_b128 {vr(R+4,4)}, v{vA} offset:{LO+2048+8*144}
    s_waitcnt lgkmcnt(1)
    buffer_store_dwordx4 {vr(R,4)}, v{vT}, s[{srd_}:{srd_+3}], s{soff} offen{flags}
    s_waitcnt lgkmcnt(0)
    buffer_store_dwordx4 {vr(R+4,4)}, v{vT}, s[{srd_}:{srd_+3}], s{S_T+12} offen{flags}
    """)
    if zero_pad:
        l = a.newlabel("Lzp")
        a(f"""
        s_cmp_lg_u32 s{S_RB}, 0
        s_cbranch_scc1 {l}
        s_nop 1
        v_mov_b32 v{R}, 0
        v_mov_b32 v{R+1}, 0
        v_mov_b32 v{R+2}, 0
        v_mov_b32 v{R+3}, 0
        s_sub_u32 s{soff}, s{soff}, 128
        s_sub_u32 s{S_T+12}, s{S_T+12}, 128
        buffer_store_dwordx4 {vr(R,4)}, v{vT}, s[{srd_}:{srd_+3}], s{soff} offen{flags}
        buffer_store_dwordx4 {vr(R,4)}, v{vT}, s[{srd_}:{srd_+3}], s{S_T+12} offen{flags}
        {l}:
        """)

NTOUCH = 4
def touch(v):
    a(f"""
    v_min_u32 v{v}, 6, v0
    v_lshlrev_b32 v{v}, 21, v{v}
    v_add_u32 v{v}, {0x1fff80}, v{v}
    buffer_load_dword v{v+1}, v{v}, s[{S_WS}:{S_WS+3}], 0 offen sc1
    buffer_load_dword v{v+2}, off, s[{S_DBG}:{S_DBG+3}], 0 offset:128 sc1
    v_and_b32 v{v}, 1, v0
    v_lshlrev_b32 v{v}, 21, v{v}
    buffer_load_dword v{v+3}, v{v}, s[{S_OUT}:{S_OUT+3}], 0 offen sc1
    buffer_load_dword v{v+4}, off, s[{S_WO}:{S_WO+3}], 0
    """)

def cmul(d, x, y):
    return [f"v_mul_f32 v{d}, v{x}, v{y}", f"v_mul_f32 v{d+1}, v{x+1}, v{y}",
            f"v_fma_f32 v{d}, -v{x+1}, v{y+1}, v{d}", f"v_fmac_f32 v{d+1}, v{x}, v{y+1}"]

def role_b():
    PRM, vDT, vFA, T = 2, 10, 11, 12
    E1, E2, E4, E8, E256, E16 = 20, 22, 24, 26, 28, 30
    X, Y, Z, W = 32, 34, 36, 38
    AF, BF, ACC, TR = 48, 80, 112, 128
    PKT = 144
    vNon = 143
    sU, sD, sLD, sDS, sIt, sFl = S_T, S_T + 1, S_T + 2, S_T + 3, S_T + 4, S_T + 9
    a(f"""
    L_B:
    s_setprio {OPT.get('bprio','0')}
    s_cmp_ge_u32 s{S_I}, 28
    s_cbranch_scc1 L_end
    s_sub_u32 s{S_BW}, s{S_WAVE}, 4
    s_memrealtime s[{S_T+10}:{S_T+11}]
    s_lshl_b32 s{sD}, s{S_J}, 5
    s_add_u32 s{sD}, s{sD}, s{S_RB}
    s_lshl_b32 s{sD}, s{sD}, 2
    s_lshl_b32 s{S_T+5}, s{sD}, 8
    s_lshl_b32 s{S_T+6}, s{S_BW}, 8
    s_add_u32 s{S_T+5}, s{S_T+5}, s{S_T+6}
    v_lshlrev_b32 v1, 1, v0
    """)
    for i in range(8): a(f"v_mov_b32 v{PRM+i}, 0")
    a(f"""
    s_mul_i32 s{sU}, s{S_RB}, {64*896}
    s_lshl_b32 s{S_T+6}, s{S_J}, 7
    s_add_u32 s{sU}, s{sU}, s{S_T+6}
    s_waitcnt lgkmcnt(0)
    s_barrier
    s_load_dword s{sLD}, s[{S_KA + KA_LOGDT//4}:{S_KA + KA_LOGDT//4 + 1}], s{sD}
    s_load_dword s{sDS}, s[{S_KA + KA_DSKIP//4}:{S_KA + KA_DSKIP//4 + 1}], s{sD}
    """)
    srd(S_U, KA_U, 1835008)
    tr_load(S_U, sU, 896, TR)
    for k, (s_, ko) in enumerate(((S_LA, KA_LOGA), (S_AI, KA_AIM), (S_CR, KA_CR), (S_CI, KA_CI))):
        srd(s_, ko, 229376)
        for it in range(2):
            a(f"buffer_load_short_d16_hi v{PRM+4*it+k}, v1, s[{s_}:{s_+3}], s{S_T+5} offen offset:{128*it}")
    srd(S_DBG, KA_DBG, 256)
    ln = a.newlabel("Lnn")
    a(f"""
    s_add_u32 s{S_T+6}, s2, s{S_BW}
    s_cmp_lg_u32 s{S_T+6}, 0
    s_cbranch_scc1 {ln}
    s_or_b32 s{S_T+10}, s{S_T+10}, 1
    v_mov_b32 v{T}, s{S_T+10}
    s_mov_b64 exec, 1
    buffer_store_dword v{T}, off, s[{S_DBG}:{S_DBG+3}], 0 sc1
    s_mov_b64 exec, -1
    {ln}:
    s_setprio 0
    s_lshr_b32 s{S_C}, s{S_BW}, 1
    s_and_b32 s{S_NH}, s{S_BW}, 1
    s_mul_i32 s{S_PRIV}, s{S_BW}, {PRIVB}
    """)
    srd(S_WS, KA_WS, WS_SIZE); srd(S_WO, KA_WO, 401408); srd(S_OUT, KA_OUT, 3670016)
    if OPT.get('touch','1') == '1': touch(248)
    stamp(0)
    a(f"""
    v_and_b32 v{T}, 31, v0
    v_mul_u32_u24 v{vFA}, 272, v{T}
    v_lshrrev_b32 v{T}, 5, v0
    v_lshl_add_u32 v{vFA}, v{T}, 4, v{vFA}
    v_add_u32 v{vFA}, s{S_PRIV}, v{vFA}
    s_lshl_b32 s{S_T+6}, s{S_BW}, 2
    s_add_u32 s{S_T+6}, s{S_T+6}, {SYNC + 64}
    v_mov_b32 v{vMy}, s{S_T+6}
    v_xor_b32 v{vPa}, 4, v{vMy}
    v_mov_b32 v{vSyB}, {SYNC}
    """)
    for i in range(16): a(f"v_mov_b32 v{ACC+i}, 0")
    WA = 200
    vAa, vXa, vPW = 210, 211, 212
    S1 = 1088
    a(f"s_mov_b32 s{S_T+6}, 964")
    for i in range(9):
        a(f"""
        v_add_u32 v{WA+i}, {64*i}, v0
        v_mul_u32_u24 v{T+5}, s{S_T+6}, v{WA+i}
        v_lshrrev_b32 v{T+5}, 16, v{T+5}
        v_mul_u32_u24 v{T+6}, 68, v{T+5}
        v_sub_u32 v{WA+i}, v{WA+i}, v{T+6}
        v_lshlrev_b32 v{WA+i}, 4, v{WA+i}
        v_and_b32 v{T+6}, 3, v{T+5}
        v_lshl_add_u32 v{WA+i}, v{T+6}, 1, v{WA+i}
        v_lshrrev_b32 v{T+5}, 2, v{T+5}
        v_lshl_add_u32 v{WA+i}, v{T+5}, 11, v{WA+i}
        """)
    a(f"""
    v_and_b32 v{T}, 3, v0
    v_bfe_u32 v{T+1}, v0, 3, 2
    v_lshl_add_u32 v{T}, v{T+1}, 2, v{T}
    v_bfe_u32 v{T+1}, v0, 2, 1
    v_lshl_add_u32 v{T}, v{T+1}, 4, v{T}
    v_lshrrev_b32 v{T+1}, 5, v0
    v_lshlrev_b32 v{T+2}, 3, v{T+1}
    v_sub_u32 v{T}, v{T}, v{T+2}
    v_add_u32 v{T}, 9, v{T}
    v_and_b32 v{T+2}, 3, v{T}
    v_sub_u32 v{T}, v{T}, v{T+2}
    v_lshlrev_b32 v{T}, 1, v{T}
    v_mul_u32_u24 v{T+2}, {S1}, v{T+2}
    v_add3_u32 v{vAa}, v{T}, v{T+2}, s{S_PRIV}
    v_and_b32 v{T}, 31, v0
    v_lshlrev_b32 v{T}, 4, v{T}
    v_mul_u32_u24 v{T+2}, {SP}, v{T+1}
    s_mul_i32 s{S_T+7}, s{S_C}, {KPLB}
    s_lshl_b32 s{S_T+5}, s{S_NH}, 8
    s_sub_u32 s{S_T+7}, s{S_T+7}, s{S_T+5}
    s_add_u32 s{S_T+7}, s{S_T+7}, {30*16}
    v_add3_u32 v{vXa}, v{T}, v{T+2}, s{S_T+7}
    """)
    CA = [216, 232]
    for i in range(32): a(f"v_mov_b32 v{CA[0]+i}, 0")
    a(f"""
    s_waitcnt lgkmcnt(0)
    s_lshl_b32 s{S_T+6}, s{S_C}, 4
    s_lshr_b32 s{sLD}, s{sLD}, s{S_T+6}
    s_lshl_b32 s{sLD}, s{sLD}, 16
    s_lshr_b32 s{sDS}, s{sDS}, s{S_T+6}
    s_lshl_b32 s{sDS}, s{sDS}, 16
    v_mov_b32 v{T}, {hex(f32bits(LOG2E))}
    v_mul_f32 v{vDT}, s{sLD}, v{T}
    v_exp_f32 v{vDT}, v{vDT}
    s_mul_i32 s{sU}, s{S_J}, {64*UROW}
    v_cvt_pk_bf16_f32 v{vDT}, v{vDT}, v{vDT}
    v_and_b32 v{vDT}, 0xffff0000, v{vDT}
    s_lshl_b32 s{S_T+6}, s{S_RB}, 7
    s_add_u32 s{sU}, s{sU}, s{S_T+6}
    s_add_u32 s{sU}, s{sU}, {UTB + 128}
    s_lshl_b32 s{sFl}, s{sD}, 5
    s_add_u32 s{sFl}, s{sFl}, {FU}
    s_waitcnt vmcnt({8 + (NTOUCH if OPT.get('touch','1') == '1' else 0)})
    """)
    stamp(1)
    tr_finish(S_WS, sU, UROW, TR, 0, flags=SF, zero_pad=True)
    a(f"buffer_load_dword v{vNon}, off, s[{S_DBG}:{S_DBG+3}], 0 sc1")
    a(f"s_mov_b32 m0, s{S_PRIV}\ns_mov_b32 s{sIt}, 0\ns_waitcnt vmcnt({3 + (NTOUCH if OPT.get('touch','1') == '1' else 0)})")
    loop = a.newlabel("Lkg")
    a(f"{loop}:")
    LA, AI, CR, CI = PRM, PRM + 1, PRM + 2, PRM + 3
    vA_, vB_ = T, T + 1
    a(f"""v_mul_f32 v{vA_}, {hex(f32bits(LOG2E))}, v{LA}
    v_exp_f32 v{vA_}, v{vA_}
    v_mul_f32 v{vB_}, v{AI}, v{vDT}
    v_cvt_pk_bf16_f32 v{vA_}, v{vA_}, v{vA_}
    v_and_b32 v{vA_}, 0xffff0000, v{vA_}
    v_mul_f32 v{vA_}, v{vA_}, v{vDT}
    v_mul_f32 v{vA_}, {hex(f32bits(-LOG2E))}, v{vA_}
    v_mul_f32 v{vB_}, 0.15915494, v{vB_}
    v_add_f32 v{T+2}, v{vDT}, v{vDT}
    v_mul_f32 v{X}, v{CR}, v{T+2}
    v_mul_f32 v{X+1}, v{CI}, v{T+2}""")
    for E, t in ((E1, 1.0), (E8, 8.0), (E256, 256.0)):
        tb = hex(f32bits(t))
        a(f"""v_mul_f32 v{T+2}, {tb}, v{vA_}
        v_mul_f32 v{T+3}, {tb}, v{vB_}
        v_exp_f32 v{T+2}, v{T+2}
        v_fract_f32 v{T+3}, v{T+3}
        v_cos_f32 v{E}, v{T+3}
        v_sin_f32 v{E+1}, v{T+3}
        v_mul_f32 v{E}, v{E}, v{T+2}
        v_mul_f32 v{E+1}, v{E+1}, v{T+2}""")
    pend = []; pk = [0]
    def flush():
        for w in pend: a(w)
        pend.clear(); pk[0] = 0
    def put(src, rows, conj):
        t = PKT + pk[0]; pk[0] += 1
        a(f"v_cvt_pk_bf16_f32 v{t}, v{src}, {'-' if conj else ''}v{src+1}")
        for r in rows: pend.append(f"ds_write_addtid_b32 v{t} offset:{r*272}")
        if pk[0] == 16: flush()
    def cm(d, x, y):
        for t in cmul(d, x, y): a(t)
    rho = lambda v, h: 8 * (v >> 2) + 4 * h + (v & 3)
    cm(E2, E1, E1); cm(E4, E2, E2); cm(E16, E8, E8)
    cm(Z, X, E256)
    put(X, [rho(0, 0)], True)
    cur, nxt = X, Y
    for k in range(1, 8):
        cm(nxt, cur, E1); put(nxt, [rho(k, 0)], True)
        cur, nxt = nxt, cur
    rows1 = [[0, 1], [2], [3, 4, 5], [6], [7]]
    put(Z, [rho(v, 1) for v in rows1[0]], True)
    cur, nxt = Z, X
    for k in range(1, 5):
        cm(nxt, cur, E2); put(nxt, [rho(v, 1) for v in rows1[k]], True)
        cur, nxt = nxt, (Y if nxt == X else X)
    flush()
    H, Hn = Z, W
    for B in (2, 3):
        cm(Hn, H, E256); H, Hn = Hn, H
        put(H, [rho(8, B & 1)], True)
        cm(X, H, E4); put(X, [rho(9, B & 1)], True)
        cm(Y, H, E8); put(Y, [rho(10, B & 1)], True)
    for B in (4, 5, 6, 7):
        v0_ = 11 if B < 6 else 13
        cm(Hn, H, E256); H, Hn = Hn, H
        put(H, [rho(v0_, B & 1)], True)
        cm(X, H, E8); put(X, [rho(v0_ + 1, B & 1)], True)
    flush()
    for s in range(8): a(f"ds_read_b128 {vr(AF+4*s,4)}, v{vFA} offset:{32*s}")
    a(f"v_mov_b32 v{PKT}, 0x3f80"); pend.append(f"ds_write_addtid_b32 v{PKT} offset:0"); pk[0] = 1
    put(E8, [1], False); put(E16, [2], False)
    ch = {1: E8, 0: E16}; pool = {1: [X, Y], 0: [Z, W]}
    for j in range(3, 32):
        par = j & 1
        d = pool[par][0]; pool[par].reverse()
        cm(d, ch[par], E16); put(d, [j], False)
        ch[par] = d
    flush()
    for s in range(8): a(f"ds_read_b128 {vr(BF+4*s,4)}, v{vFA} offset:{32*s}")
    for k in range(4): a(f"v_mov_b32 v{PRM+k}, v{PRM+4+k}")
    for s in range(8):
        a(f"s_waitcnt lgkmcnt({7-s})")
        a(f"v_mfma_f32_32x32x16_bf16 {vr(ACC,16)}, {vr(AF+4*s,4)}, {vr(BF+4*s,4)}, {vr(ACC,16)}")
    ldone = a.newlabel("Lkd")
    a(f"""
    s_cmp_lg_u32 s{sIt}, 0
    s_cbranch_scc1 {ldone}
    s_mov_b32 s{sIt}, 1
    """)
    get_nonce(vNon, issued=True)
    group_publish(C_PU, sFl, S_T + 10, vSyB, T)
    a(f"s_branch {loop}\n{ldone}:")
    stamp(2)
    l1 = a.newlabel("Lkx"); l2 = a.newlabel("Lkx"); l3 = a.newlabel("Lkx"); l4 = a.newlabel("Lkx")
    vG = T + 3
    a(f"""
    v_lshlrev_b32 v{T}, 4, v0
    v_add_u32 v{T+1}, s{S_PRIV}, v{T}
    s_xor_b32 s{S_T+6}, s{S_BW}, 1
    s_mul_i32 s{S_T+6}, s{S_T+6}, {PRIVB}
    v_add_u32 v{T}, s{S_T+6}, v{T}
    v_and_b32 v{T+2}, 3, v0
    v_mul_u32_u24 v{T+2}, {SP}, v{T+2}
    v_lshrrev_b32 v{vG}, 2, v0
    v_lshl_add_u32 v{T+2}, v{vG}, 4, v{T+2}
    s_mul_i32 s{S_T+7}, s{S_C}, {KPLB}
    v_add_u32 v{vG}, s{S_T+7}, v{T+2}
    v_mov_b32 v{PKT}, 0
    v_mov_b32 v{PKT+1}, 0
    v_mov_b32 v{PKT+2}, 0
    v_mov_b32 v{PKT+3}, 0
    s_cmp_eq_u32 s{S_NH}, 0
    s_cbranch_scc1 {l1}
    ds_write_b128 v{T+1}, {vr(ACC,4)}
    ds_write_b128 v{T+1}, {vr(ACC+4,4)} offset:1024
    ds_write_b128 v{vG}, {vr(PKT,4)} offset:{KPLL}
    s_branch {l2}
    {l1}:
    ds_write_b128 v{T+1}, {vr(ACC+8,4)}
    ds_write_b128 v{T+1}, {vr(ACC+12,4)} offset:1024
    ds_write_b128 v{vG}, {vr(PKT,4)} offset:{KPLL+256}
    {l2}:
    """)
    pair_signal(1)
    LD = 160
    sCh = S_T + 8
    a(f"""
    s_lshr_b32 s{sCh}, s{sD}, 1
    s_add_u32 s{sCh}, s{sCh}, s{S_C}           ; channel
    s_lshl_b32 s{S_T+5}, s{S_J}, 12
    s_add_u32 s{S_T+5}, s{S_T+5}, {FU}
    v_and_b32 v{T+4}, 31, v0
    v_lshlrev_b32 v{T+4}, 7, v{T+4}
    v_add_u32 v{T+4}, s{S_T+5}, v{T+4}
    s_mul_i32 s{sU}, s{sCh}, {UROW}
    s_lshl_b32 s{S_T+5}, s{S_NH}, 10
    s_add_u32 s{sU}, s{sU}, s{S_T+5}
    s_add_u32 s{sU}, s{sU}, {UTB + 64}
    """)
    group_wait(C_WU, S_BW, 0, T + 4, vSyB, T + 5, 4)
    for i in range(9):
        a(f"buffer_load_dwordx4 {vr(LD+4*i,4)}, v{WA+i}, s[{S_WS}:{S_WS+3}], s{sU} offen{LF}")
    lds_wait(vPa, 0, 1, vSg)
    a(f"""
    ds_read_b128 {vr(AF,4)}, v{T}
    ds_read_b128 {vr(AF+4,4)}, v{T} offset:1024
    s_cmp_eq_u32 s{S_NH}, 0
    s_cbranch_scc0 {l3}
    v_mov_b32 v{T+4}, s{sDS}
    v_cmp_eq_u32 vcc, 0, v0
    s_nop 1
    v_cndmask_b32 v{T+4}, 0, v{T+4}, vcc
    v_add_f32 v{ACC}, v{ACC}, v{T+4}
    s_waitcnt lgkmcnt(0)
    """)
    wr = lambda reg, beta: f"ds_write_b128 v{vG}, {vr(reg,4)} offset:{KPLL + 512 + 256*beta}"
    for k in range(8): a(f"v_add_f32 v{ACC+k}, v{ACC+k}, v{AF+k}")
    for k in range(4): a(f"v_cvt_pk_bf16_f32 v{BF+k}, v{ACC+7-2*k}, v{ACC+6-2*k}")
    a(wr(BF, 0))
    a(f"""
    s_branch {l4}
    {l3}:
    v_and_b32 v{T+4}, 1, v0
    v_cmp_eq_u32 vcc, 0, v{T+4}
    s_waitcnt lgkmcnt(0)
    """)
    for k in range(7): a(f"v_add_f32 v{ACC+8+k}, v{ACC+8+k}, v{AF+k}")
    g0, g4, g8 = ACC + 8, ACC + 9, ACC + 10
    a(f"""
    v_cvt_pk_bf16_f32 v{BF}, v{g8}, v{g8}
    v_cvt_pk_bf16_f32 v{BF+1}, v{g4}, v{g4}
    v_cvt_pk_bf16_f32 v{BF+2}, v{g4}, v{g0}
    v_cvt_pk_bf16_f32 v{BF+3}, v{g0}, v{g0}
    """)
    a(wr(BF, 1))
    for beta in (2, 3):
        g0 = ACC + 11 + 2 * (beta - 2); g8 = g0 + 1; R = BF + 4 * (beta - 1)
        a(f"""
        v_cndmask_b32 v{T+4}, v{g8}, v{g0}, vcc
        v_cvt_pk_bf16_f32 v{R}, v{g8}, v{g8}
        v_cvt_pk_bf16_f32 v{R+1}, v{g8}, v{T+4}
        v_cvt_pk_bf16_f32 v{R+2}, v{g0}, v{g0}
        v_cvt_pk_bf16_f32 v{R+3}, v{g0}, v{g0}
        """)
        a(wr(R, beta))
    a(f"{l4}:")
    pair_signal(2)
    T = 2
    FR = [16, 48]
    a(f"""
    v_lshlrev_b32 v{T}, 4, v0
    v_add_u32 v{T}, s{S_PRIV}, v{T}
    """)
    lds_wait(vPa, 0, 2, vSg)
    for i in range(9):
        a(f"s_waitcnt vmcnt({8 - i})")
        if i == 8: a("s_mov_b32 exec_hi, 0")
        a(f"ds_write_b128 v{T}, {vr(LD+4*i,4)} offset:{1024*i}")
    a("s_mov_b64 exec, -1")
    stamp(3)
    def reads(buf, dm):
        ins = []
        R = FR[buf]
        for sg in range(2):
            for kp in range(2):
                for i2 in range(2):
                    ins.append(f"ds_read_b64 {vr(R + (2*sg+kp)*4 + 2*i2, 2)}, v{vAa} offset:{sg*4*S1 + 64*dm + 32*(1-kp) + 8*i2}")
        for xo in range(2):
            for kp in range(2):
                ins.append(f"ds_read_b128 {vr(R + 16 + (2*xo+kp)*4, 4)}, v{vXa} offset:{KPLL + 2*kp*SP + 512*xo + 16*(2-dm)}")
        return [ins[k] for k in [0, 1, 8, 10, 4, 5, 2, 3, 9, 11, 6, 7]]
    def mf(buf):
        R = FR[buf]
        A = lambda sg, kp: vr(R + (2*sg+kp)*4, 4)
        Xf = lambda xo, kp: vr(R + 16 + (2*xo+kp)*4, 4)
        o = []
        for kp in range(2):
            o.append(f"v_mfma_f32_32x32x16_bf16 {vr(CA[0],16)}, {A(0,kp)}, {Xf(0,kp)}, {vr(CA[0],16)}")
            o.append(f"v_mfma_f32_32x32x16_bf16 {vr(CA[1],16)}, {A(0,kp)}, {Xf(1,kp)}, {vr(CA[1],16)}")
            o.append(f"v_mfma_f32_32x32x16_bf16 {vr(CA[1],16)}, {A(1,kp)}, {Xf(0,kp)}, {vr(CA[1],16)}")
        return o
    for r in reads(0, 0): a(r)
    a(f"s_mov_b32 s{sIt}, 0")
    loop = a.newlabel("Lcv")
    a(f"{loop}:\ns_waitcnt lgkmcnt(0)")
    for t in interleave(mf(0), reads(1, 1), per=3): a(t)
    a("s_waitcnt lgkmcnt(0)")
    for t in interleave(mf(1), reads(0, 2), per=3): a(t)
    a(f"""
    v_add_u32 v{vAa}, 128, v{vAa}
    v_subrev_u32 v{vXa}, 32, v{vXa}
    s_add_u32 s{sIt}, s{sIt}, 1
    s_cmp_lt_u32 s{sIt}, 8
    s_cbranch_scc1 {loop}
    s_waitcnt lgkmcnt(0)
    """)
    stamp(4)
    a("s_setprio 3")
    l1 = a.newlabel("Lcx"); l2 = a.newlabel("Lcx")
    F = FR[0]
    a(f"""
    s_xor_b32 s{S_T+6}, s{S_BW}, 1
    s_mul_i32 s{S_T+6}, s{S_T+6}, {PRIVB}
    v_lshlrev_b32 v{T+1}, 4, v0
    v_add_u32 v{T+2}, s{S_T+6}, v{T+1}
    v_and_b32 v{T+3}, 31, v0
    v_lshlrev_b32 v{T+3}, 6, v{T+3}
    v_lshrrev_b32 v{T+4}, 5, v0
    v_lshl_add_u32 v{T+3}, v{T+4}, 5, v{T+3}
    v_add_u32 v{T+3}, s{S_PRIV}, v{T+3}
    s_lshl_b32 s{sU}, s{sCh}, 12
    s_lshl_b32 s{S_T+5}, s{S_NH}, 11
    s_add_u32 s{sU}, s{sU}, s{S_T+5}
    s_add_u32 s{sU}, s{sU}, {YTB}
    s_lshl_b32 s{sFl}, s{sD}, 5
    s_add_u32 s{sFl}, s{sFl}, {FY}
    s_cmp_eq_u32 s{S_NH}, 0
    s_cbranch_scc1 {l1}
    """)
    for k in range(4): a(f"ds_write_b128 v{T}, {vr(CA[0]+4*k,4)} offset:{1024*k}")
    for k in range(16): a(f"v_mov_b32 v{F+k}, v{CA[1]+k}")
    a(f"s_branch {l2}\n{l1}:")
    for k in range(4): a(f"ds_write_b128 v{T}, {vr(CA[1]+4*k,4)} offset:{1024*k}")
    for k in range(16): a(f"v_mov_b32 v{F+k}, v{CA[0]+k}")
    a(f"{l2}:")
    pair_signal(3)
    lds_wait(vPa, 0, 3, vSg)
    for k in range(4): a(f"ds_read_b128 {vr(F+16+4*k,4)}, v{T+2} offset:{1024*k}")
    a("s_waitcnt lgkmcnt(0)")
    for k in range(16): a(f"v_add_f32 v{F+k}, v{F+k}, v{F+16+k}")
    for k in range(8): a(f"v_cvt_pk_bf16_f32 v{F+32+k}, v{F+2*k}, v{F+2*k+1}")
    a(f"""
    ds_write_b128 v{T+3}, {vr(F+32,4)} offset:4096
    ds_write_b128 v{T+3}, {vr(F+36,4)} offset:4112
    ds_read_b128 {vr(F,4)}, v{T} offset:4096
    ds_read_b128 {vr(F+4,4)}, v{T} offset:5120
    s_waitcnt lgkmcnt(1)
    buffer_store_dwordx4 {vr(F,4)}, v{T+1}, s[{S_WS}:{S_WS+3}], s{sU} offen{SF}
    s_waitcnt lgkmcnt(0)
    buffer_store_dwordx4 {vr(F+4,4)}, v{T+1}, s[{S_WS}:{S_WS+3}], s{sU} offen offset:1024{SF}
    """)
    group_publish(C_PY, sFl, S_T + 10, vSyB, T + 4)
    lds_wait(vSyB, 56, 4, vSg)
    vWa = T + 6
    a(f"""
    v_lshrrev_b32 v{T}, 3, v0
    v_and_b32 v{T+1}, 7, v0
    v_bfe_u32 v{T+2}, v0, 4, 1
    v_lshlrev_b32 v{T+2}, 2, v{T+2}
    v_xor_b32 v{T+1}, v{T+1}, v{T+2}
    v_lshlrev_b32 v{T+1}, 4, v{T+1}
    v_mul_u32_u24 v{vWa}, 896, v{T}
    v_add_u32 v{vWa}, v{vWa}, v{T+1}
    s_mul_i32 s{S_T+5}, s{S_BW}, {112*896}
    s_lshl_b32 s{S_T+6}, s{S_J}, 7
    s_add_u32 s{S_T+5}, s{S_T+5}, s{S_T+6}
    s_mul_i32 s{S_T+6}, s{S_BW}, {14*1024}
    s_add_u32 s{S_T+6}, s{S_T+6}, {WOL}
    s_mov_b32 s{sIt}, 0
    """)
    loop = a.newlabel("Lwo")
    a(f"""
    {loop}:
    s_mov_b32 m0, s{S_T+6}
    s_add_u32 s{S_T+6}, s{S_T+6}, 1024
    buffer_load_dwordx4 v{vWa}, s[{S_WO}:{S_WO+3}], s{S_T+5} offen lds
    s_add_u32 s{S_T+5}, s{S_T+5}, {8*896}
    s_add_u32 s{sIt}, s{sIt}, 1
    s_cmp_lt_u32 s{sIt}, 14
    s_cbranch_scc1 {loop}
    v_mov_b32 v{T}, 0
    v_mov_b32 v{T+1}, 0
    v_lshlrev_b32 v{T+2}, 3, v0
    v_add_u32 v{T+2}, {WOL + 448*128}, v{T+2}
    ds_write_b64 v{T+2}, {vr(T,2)}
    ; ---- y transpose
    s_lshl_b32 s{S_T+5}, s{S_J}, 12
    s_add_u32 s{S_T+5}, s{S_T+5}, {FY}
    v_and_b32 v{T+4}, 31, v0
    v_lshlrev_b32 v{T+4}, 7, v{T+4}
    v_add_u32 v{T+4}, s{S_T+5}, v{T+4}
    s_lshl_b32 s{sU}, s{S_J}, 18
    s_lshl_b32 s{S_T+5}, s{S_RB}, 7
    s_add_u32 s{sU}, s{sU}, s{S_T+5}
    s_add_u32 s{sU}, s{sU}, {YTB}
    """)
    group_wait(C_WY, S_T + 10, 3, T + 4, vSyB, T + 5, 8)
    tr_load(S_WS, sU, 4096, 16, flags=LF)
    a(f"""
    s_mul_i32 s{sU}, s{S_RB}, {64*1792}
    s_lshl_b32 s{S_T+5}, s{S_J}, 7
    s_add_u32 s{sU}, s{sU}, s{S_T+5}
    s_add_u32 s{sU}, s{sU}, 896
    s_waitcnt vmcnt(0)
    """)
    tr_finish(S_OUT, sU, 1792, 16, 4096)
    a("s_waitcnt vmcnt(0) lgkmcnt(0)")
    stamp(5)
    stamp_save(0, 6)
    stamp_flush()
    a("s_endpgm")

prologue()
a(f"s_setprio 2\ns_cmp_ge_u32 s{S_I}, 28\ns_cbranch_scc1 L_idle")
gemm()
a("L_attn:")
sFl = attention()
a(f"s_cmp_lt_u32 s{S_I}, 28\ns_cbranch_scc1 L_op")
publish(sFl, 10)
a("s_endpgm\nL_op:")
outproj(sFl)
a("s_endpgm\nL_idle:")
idle_prefetch()
a("s_branch L_attn")
role_b()
a("L_end:\ns_endpgm")

HDR = open('concat_heads__mha_block__ssm_conv_s4d__prompt.s.ref').read().split("; Override launch")[0]
out = HDR + "; @launch grid=(256,1,1) block=(512,1,1) lds=163840\n" + '.amdgcn_target "amdgcn-amd-amdhsa--gfx950"\n'
out += khead(KN) + a.text() + kdesc(KN, 256, 102)
open(sys.argv[1], "w").write(out)
```

```python
import sys, math, struct
STAMPS = '--stamps' in sys.argv
OPT = dict(x.split('=') for x in sys.argv[2:] if '=' in x)
CS = (28 ** -0.5) * math.log2(math.e)
LOG2E = math.log2(math.e)
KN = "concat_heads__mha_block__ssm_conv_s4d__prompt_kernel"

class Asm:
    def __init__(self): self.lines = []; self.uid = 0
    def __call__(self, s):
        for l in s.split("\n"):
            l = l.strip()
            if not l: continue
            self.lines.append(l if (l.endswith(":") and " " not in l) else "    " + l)
    def lab(self, p="L"):
        self.uid += 1
        return f"{p}_{self.uid}"
    def text(self): return "\n".join(self.lines) + "\n"
a = Asm()
def vr(r, n=1): return f"v{r}" if n == 1 else f"v[{r}:{r+n-1}]"
def sr(r, n=1): return f"s{r}" if n == 1 else f"s[{r}:{r+n-1}]"
def f32(x): return hex(struct.unpack("<I", struct.pack("<f", x))[0])
MFMA = "v_mfma_f32_32x32x16_bf16"

QBUF, KBUF, VBUF, OBUF, UTB, YTB, FLG, STAMP = 0, 0x200000, 0x400000, 0x600000, 0x800000, 0xA00000, 0xC00000, 0xF00000
WS_SIZE = 0x1000000
TILEB = 28672
UROW = 4224
F1 = FLG
FU = FLG + 0x1C000
FY = FU + 0x7000
FO = FY + 0x7000
FH = FO + 0x20000
KA_X, KA_WQKV, KA_WO, KA_U, KA_LOGA, KA_AIM, KA_CR, KA_CI, KA_LOGDT, KA_DSKIP, KA_OUT, KA_DBG, KA_WS = [8 * i for i in range(13)]

S3 = 3
S_WS, S_X, S_W, S_WO, S_U, S_OUT, S_DBG, S_KV = 4, 8, 12, 16, 20, 24, 28, 32
S_WAVE, S_J, S_RB, S_H, S_B, S_I, S_BW, S_C, S_NH, S_PRIV, S_NONCE, sD, sLD, sDS = range(36, 50)
S_T = 50
S_KA = 64
XO = [76 + i for i in range(7)]; WO_ = [83 + i for i in range(7)]
sM, sMB, sRot, sXb, sWb, sF1 = 90, 91, 92, 93, 94, 95
def kp(off): return f"s[{S_KA + off//4}:{S_KA + off//4 + 1}]"

PRIVB = 8704
SP = 1568
KPLB = 4 * SP
KPLL = 0
PRIV0 = 2 * KPLB
RING = PRIV0 + 4 * PRIVB
XCH = RING
WOL = RING + 49152
SYNC = RING + 114688
C_GD, C_PAIR, C_WU, C_PY, C_WY = 0, 16, 32, 36, 40
SF = " sc1"
LF = " sc1"
SPIN_MAX = 50000

VST = 253
def stamp(idx):
    if STAMPS: a(f"{'s_memtime' if OPT.get('cyc') else 's_memrealtime'} s[{64+2*idx}:{65+2*idx}]")
def stamp_save(bank, n):
    if not STAMPS: return
    a("s_waitcnt lgkmcnt(0)")
    for i in range(n): a(f"v_writelane_b32 v{VST}, s{64+2*i}, {bank*6+i}")
def stamp_flush():
    if not STAMPS: return
    a(f"s_lshl_b32 s62, s2, 3\ns_add_u32 s62, s62, s{S_WAVE}\ns_lshl_b32 s62, s62, 8\ns_add_u32 s62, s62, {STAMP}")
    a(f"v_lshlrev_b32 v254, 2, v0\nbuffer_store_dword v{VST}, v254, s[{S_WS}:{S_WS+3}], s62 offen")

class Q:
    def __init__(self, cap): self.q = []; self.cap = cap
    def issue(self, tag): self.q.append(tag)
    def wait_for(self, tag):
        idx = max(i for i, t in enumerate(self.q) if t == tag)
        return min(len(self.q) - 1 - idx, self.cap)

def srd(dst, ka_off, size):
    src = S_KA + ka_off // 4
    a(f"s_mov_b32 s{dst}, s{src}\ns_mov_b32 s{dst+1}, s{src+1}\ns_mov_b32 s{dst+2}, {size}\ns_mov_b32 s{dst+3}, 0x00020000")

def load_nonce(vT): return f"buffer_load_dword v{vT}, off, s[{S_DBG}:{S_DBG+3}], 0 sc1"
def get_nonce(vT, cnt=0):
    L = a.lab("Lnon"); D = a.lab("Lnon")
    a(f"""
    s_mov_b32 s{S3}, 0
    s_waitcnt vmcnt({cnt})
    {L}:
    v_readfirstlane_b32 s{S_NONCE}, v{vT}
    s_add_u32 s{S3}, s{S3}, 1
    s_cmp_lg_u32 s{S_NONCE}, 0
    s_cbranch_scc1 {D}
    s_cmp_gt_u32 s{S3}, {SPIN_MAX}
    s_cbranch_scc1 {D}
    s_sleep 8
    {load_nonce(vT)}
    s_waitcnt vmcnt(0)
    s_branch {L}
    {D}:
    """)

def poll(vA, vT, sleep, few=6):
    L = a.lab("Lpoll"); D = a.lab("Lpoll")
    a(f"""
    s_mov_b32 s{S3}, 0
    {L}:
    buffer_load_dword v{vT}, v{vA}, s[{S_WS}:{S_WS+3}], 0 offen sc1
    s_add_u32 s{S3}, s{S3}, 1
    s_cmp_gt_u32 s{S3}, {SPIN_MAX}
    s_cbranch_scc1 {D}
    s_waitcnt vmcnt(0)
    v_cmp_ne_u32 vcc, s{S_NONCE}, v{vT}
    s_cbranch_vccz {D}
    s_mov_b64 exec, vcc
    s_bcnt1_i32_b64 s{S_T+13}, vcc
    s_cmp_le_u32 s{S_T+13}, {few}
    s_cbranch_scc1 {L}
    s_sleep {sleep}
    s_branch {L}
    {D}:
    s_mov_b64 exec, -1
    """)

def publish(sOff, vT):
    a(f"""
    v_mov_b32 v{vT}, s{S_NONCE}
    s_waitcnt vmcnt(0)
    s_mov_b64 exec, 1
    buffer_store_dword v{vT}, off, s[{S_WS}:{S_WS+3}], s{sOff} sc1
    s_mov_b64 exec, -1
    """)

def lds_wait(vaddr, off, k, vT, sleep=0):
    L = a.lab("Lpw"); D = a.lab("Lpw")
    a(f"""
    {L}:
    ds_read_b32 v{vT}, v{vaddr} offset:{off}
    s_waitcnt lgkmcnt(0)
    v_readfirstlane_b32 s{S3}, v{vT}
    s_cmp_ge_u32 s{S3}, {k}
    s_cbranch_scc1 {D}
    {f"s_sleep {sleep}" if sleep else ""}
    s_branch {L}
    {D}:
    """)

def group_publish(cnt, sOff, sLast, vSy, vT):
    L = a.lab("Lgp")
    a(f"""
    v_mov_b32 v{vT}, 1
    s_waitcnt vmcnt(0)
    s_mov_b64 exec, 1
    ds_add_rtn_u32 v{vT}, v{vSy}, v{vT} offset:{cnt}
    v_mov_b32 v{vT+1}, s{S_NONCE}
    s_waitcnt lgkmcnt(0)
    v_readfirstlane_b32 s{sLast}, v{vT}
    s_cmp_lg_u32 s{sLast}, 3
    s_cbranch_scc1 {L}
    buffer_store_dword v{vT+1}, off, s[{S_WS}:{S_WS+3}], s{sOff} sc1
    {L}:
    s_mov_b64 exec, -1
    """)

def group_wait(word, sSel, sel, vFa, vSy, vT, sleep):
    L = a.lab("Lgw"); D = a.lab("Lgw")
    a(f"s_cmp_lg_u32 s{sSel}, {sel}\ns_cbranch_scc1 {L}\ns_mov_b32 exec_hi, 0")
    poll(vFa, vT, sleep, 0)
    a(f"""
    v_mov_b32 v{vT}, 1
    s_mov_b64 exec, 1
    ds_write_b32 v{vSy}, v{vT} offset:{word}
    s_mov_b64 exec, -1
    s_branch {D}
    {L}:
    """)
    lds_wait(vSy, word, 1, vT, 3)
    a(f"{D}:")

stream = []
for c in range(7): stream += [("x", c), ("k", c), ("v", c)]
stream += [("q", c) for c in range(7)]
sizes = [3] * 7 + [2, 2, 2, 1]
NS = len(sizes)
first = [sum(sizes[:i]) for i in range(NS + 1)]
slot_of = {n: s for s in range(NS) for n in range(first[s], first[s + 1])}
NA = int(OPT.get('na', 3))
vXa, vXb, vWa, vWb = 2, 3, 4, 5
def dma(n):
    kind, c = stream[n]
    base = RING + (n % 14) * 8192
    secoff = dict(k=896, v=1792)
    ins = []
    for half in range(2):
        blk = [f"s_add_u32 m0, s{sM}, {base + half * 1024}"]
        if kind == "x":
            blk += ["s_nop 0", f"buffer_load_dwordx4 v{vXa if half == 0 else vXb}, s[{S_X}:{S_X+3}], s{XO[c]} offen lds"]
        elif kind == "q":
            blk += ["s_nop 0", f"buffer_load_dwordx4 v{vWa if half == 0 else vWb}, s[{S_W}:{S_W+3}], s{WO_[c]} offen lds"]
        else:
            blk += [f"s_add_u32 s{sMB}, s{WO_[c]}, {secoff[kind]}" if half == 0 else "s_nop 0",
                    f"buffer_load_dwordx4 v{vWa if half == 0 else vWb}, s[{S_W}:{S_W+3}], s{sMB} offen lds"]
        ins.append("\n".join(blk))
    return ins
def offsets(c):
    a(f"""
    s_lshl_b32 s{XO[c]}, s{sRot}, 7
    s_add_u32 s{XO[c]}, s{XO[c]}, s{sXb}
    s_mul_i32 s{WO_[c]}, s{sRot}, {64*2688}
    s_add_u32 s{WO_[c]}, s{WO_[c]}, s{sWb}
    s_add_u32 s{sRot}, s{sRot}, 1
    s_cmp_eq_u32 s{sRot}, 7
    s_cselect_b32 s{sRot}, 0, s{sRot}
    """)
```

```python
from base import *
C_AX, C_AH = 44, 48

def prologue():
    T = S_T
    a(f"""
    s_cmp_ge_u32 s2, 256
    s_cbranch_scc1 L_end
    s_load_dwordx16 s[{S_KA}:{S_KA+15}], s[0:1], 0
    s_load_dwordx8 s[{S_KA+16}:{S_KA+23}], s[0:1], 64
    s_load_dwordx2 s[{S_KA+24}:{S_KA+25}], s[0:1], 96
    v_lshrrev_b32 v1, 6, v0
    s_and_b32 s{T}, s2, 7
    s_lshr_b32 s{S_I}, s2, 3
    s_add_u32 s{S_I}, s{S_I}, 28
    s_and_b32 s{S_I}, s{S_I}, 31
    v_readfirstlane_b32 s{S_WAVE}, v1
    v_and_b32 v0, 63, v0
    {'v_mov_b32 v253, -1' if STAMPS else ''}
    s_and_b32 s{T+2}, s{S_I}, 1
    s_lshl_b32 s{S_H}, s{T}, 1
    s_add_u32 s{S_H}, s{S_H}, s{T+2}
    s_lshr_b32 s{S_B}, s2, 4
    v_lshlrev_b32 v6, 2, v0
    v_add_u32 v7, {SYNC}, v6
    v_mov_b32 v8, 0
    ds_write_b32 v7, v8
    s_cmp_ge_u32 s{S_I}, 28
    s_cbranch_scc1 L_idle
    s_and_b32 s{T+2}, s{T}, 1
    s_mul_i32 s{T+2}, s{T+2}, 28
    s_add_u32 s{T+2}, s{T+2}, s{S_I}
    s_lshr_b32 s{S_J}, s{T+2}, 3
    s_and_b32 s{T+2}, s{T+2}, 7
    s_lshr_b32 s{S_RB}, s{T}, 1
    s_lshl_b32 s{S_RB}, s{S_RB}, 3
    s_add_u32 s{S_RB}, s{S_RB}, s{T+2}
    s_and_b32 s{S_BW}, s{S_WAVE}, 3
    s_lshr_b32 s{S_C}, s{S_BW}, 1
    s_and_b32 s{S_NH}, s{S_BW}, 1
    s_lshl_b32 s{sD}, s{S_J}, 5
    s_add_u32 s{sD}, s{sD}, s{S_RB}
    s_lshl_b32 s{sD}, s{sD}, 2
    s_add_u32 s{T+3}, s{sD}, s{S_BW}
    s_lshl_b32 s{T+3}, s{T+3}, 8
    v_add_u32 v6, s{T+3}, v6
    v_lshrrev_b32 v14, 3, v0
    v_and_b32 v15, 7, v0
    s_lshl_b32 s{sM}, s{S_BW}, 4
    v_add_u32 v1, s{sM}, v14
    v_lshrrev_b32 v14, 1, v14
    v_xor_b32 v{vXa}, v15, v14
    v_lshlrev_b32 v{vXa}, 4, v{vXa}
    v_mul_u32_u24 v{vXb}, 896, v1
    v_add_u32 v{vXa}, v{vXa}, v{vXb}
    v_xor_b32 v{vXb}, 64, v{vXa}
    v_add_u32 v{vXb}, {8*896}, v{vXb}
    v_and_b32 v14, 1, v14
    v_lshlrev_b32 v14, 2, v14
    v_xor_b32 v14, v15, v14
    v_lshlrev_b32 v14, 4, v14
    v_mul_u32_u24 v{vWa}, 2688, v1
    v_add_u32 v{vWa}, v{vWa}, v14
    v_add_u32 v{vWb}, {8*2688}, v{vWa}
    s_lshl_b32 s{sM}, s{S_BW}, 11
    s_lshl_b32 s{sMB}, s{S_J}, 1
    s_add_u32 s{sRot}, s{T+2}, s{sMB}
    s_mul_i32 s{sMB}, s{sRot}, 37
    s_lshr_b32 s{sMB}, s{sMB}, 8
    s_mul_i32 s{sMB}, s{sMB}, 7
    s_sub_u32 s{sRot}, s{sRot}, s{sMB}
    s_mul_i32 s{sXb}, s{S_RB}, {64*896}
    s_lshl_b32 s{sWb}, s{S_J}, 7
    s_cmp_ge_u32 s{S_WAVE}, 4
    s_cbranch_scc1 L_B
    """)

def gemm():
    vXr = [6, 7, 8, 9]; vXh = [245, 246, 247, 248]
    vWlo, vWhi, vKst, vVst = 10, 11, 12, 13
    vT0, vT1, vT2 = 14, 15, 1
    XF, WF = 16, 128
    ACC = dict(k=192, v=208, q=224)
    vSy, vOne, vNon = 240, 241, 243
    sKst, sVst, sV2, sQst, sCS, sA, sB_ = [S_T + i for i in range(7)]
    a("s_setprio 2\ns_waitcnt lgkmcnt(0)")
    srd(S_X, KA_X, 1835008); srd(S_W, KA_WQKV, 1204224); srd(S_WS, KA_WS, WS_SIZE); srd(S_DBG, KA_DBG, 256)
    stamp(0)
    vm = Q(63); lg = Q(15)
    for c in range(NA):
        offsets(c)
        if c == 0: a("s_barrier")
        for n in range(first[c], first[c + 1]):
            for t in dma(n): a(t); vm.issue(("d", c))
        if c == 0:
            a(f"""
            v_and_b32 v{vT0}, 31, v0
            v_lshrrev_b32 v{vT1}, 5, v0
            v_lshrrev_b32 v{vT2}, 1, v{vT0}
            v_and_b32 v{vT2}, 7, v{vT2}
            v_xor_b32 v{vT2}, v{vT2}, v{vT1}
            v_lshlrev_b32 v{vT2}, 4, v{vT2}
            v_lshl_add_u32 v{vXr[0]}, v{vT0}, 7, v{vT2}
            s_lshl_b32 s{sA}, s{S_C}, 12
            v_xor_b32 v{vXr[1]}, 32, v{vXr[0]}
            v_xor_b32 v{vXr[2]}, 64, v{vXr[0]}
            v_xor_b32 v{vXr[3]}, 96, v{vXr[0]}
            s_add_u32 s{sA}, s{sA}, {RING}
            v_add_u32 v{vXr[0]}, s{sA}, v{vXr[0]}
            v_add_u32 v{vXr[1]}, s{sA}, v{vXr[1]}
            v_add_u32 v{vXr[2]}, s{sA}, v{vXr[2]}
            v_add_u32 v{vXr[3]}, s{sA}, v{vXr[3]}
            v_add_u32 v{vXh[0]}, 0x10000, v{vXr[0]}
            v_add_u32 v{vXh[1]}, 0x10000, v{vXr[1]}
            v_add_u32 v{vXh[2]}, 0x10000, v{vXr[2]}
            v_add_u32 v{vXh[3]}, 0x10000, v{vXr[3]}
            v_bfe_u32 v{vT2}, v0, 2, 2
            v_lshl_add_u32 v{vWlo}, v{vT1}, 3, v{vT2}
            v_lshlrev_b32 v{vWlo}, 7, v{vWlo}
            v_lshrrev_b32 v{vT2}, 1, v{vT2}
            v_xor_b32 v{vT2}, s{S_NH}, v{vT2}
            v_lshl_add_u32 v{vWlo}, v{vT2}, 6, v{vWlo}
            v_bfe_u32 v{vT2}, v0, 4, 1
            v_lshl_add_u32 v{vWlo}, v{vT2}, 5, v{vWlo}
            v_and_b32 v{vT2}, 1, v0
            v_lshl_add_u32 v{vWlo}, v{vT2}, 4, v{vWlo}
            v_bfe_u32 v{vT2}, v0, 1, 1
            v_lshl_add_u32 v{vWlo}, v{vT2}, 3, v{vWlo}
            v_add_u32 v{vWlo}, {RING}, v{vWlo}
            v_add_u32 v{vWhi}, 0x10000, v{vWlo}
            """)
        if c == 1:
            a(f"""
            v_lshlrev_b32 v{vKst}, 4, v0
            v_and_b32 v{vVst}, 0x13, v{vT0}
            v_bfe_u32 v{vT2}, v{vT0}, 2, 1
            v_lshl_add_u32 v{vVst}, v{vT2}, 3, v{vVst}
            v_bfe_u32 v{vT2}, v{vT0}, 3, 1
            v_lshl_add_u32 v{vVst}, v{vT2}, 2, v{vVst}
            v_lshlrev_b32 v{vVst}, 4, v{vVst}
            v_mul_u32_u24 v{vT2}, 7168, v{vT1}
            v_add_u32 v{vVst}, v{vVst}, v{vT2}
            s_lshl_b32 s{sA}, s{S_RB}, 1
            s_add_u32 s{sA}, s{sA}, s{S_C}
            s_lshl_b32 s{sB_}, s{S_J}, 1
            s_add_u32 s{sB_}, s{sB_}, s{S_NH}
            s_lshl_b32 s{sF1}, s{sB_}, 6
            s_add_u32 s{sF1}, s{sF1}, s{sA}
            s_lshl_b32 s{sF1}, s{sF1}, 7
            s_add_u32 s{sF1}, s{sF1}, {F1}
            s_mul_i32 s{sA}, s{sA}, {TILEB}
            s_lshl_b32 s{sQst}, s{sB_}, 11
            s_add_u32 s{sQst}, s{sQst}, s{sA}
            s_add_u32 s{sKst}, s{sQst}, {KBUF}
            s_lshl_b32 s{sVst}, s{sB_}, 9
            s_add_u32 s{sVst}, s{sVst}, s{sA}
            s_add_u32 s{sVst}, s{sVst}, {VBUF}
            s_add_u32 s{sV2}, s{sVst}, 14336
            s_mov_b32 s{sCS}, {f32(CS)}
            v_mov_b32 v{vSy}, {SYNC}
            v_mov_b32 v{vOne}, 1
            """)
    def frags(s):
        w = [n for n in range(first[s], first[s + 1]) if stream[n][0] != "x"]
        if s < 7: return [(stream[n][0], stream[n][1], kp_, n) for kp_ in range(4) for n in w]
        return [(stream[n][0], stream[n][1], kp_, n) for n in w for kp_ in range(4)]
    def reads(s):
        buf = WF + (s % 2) * 32
        out = []
        for fi, (kind, c, k_, n) in enumerate(frags(s)):
            if kind == "k":
                off = ((n - 1) % 14) * 8192
                out.append(f"ds_read_b128 {vr(XF + (4 * c + k_) * 4, 4)}, v{(vXh if off >= 65536 else vXr)[k_]} offset:{off & 0xffff}")
            off = (n % 14) * 8192
            va = vWhi if off >= 65536 else vWlo
            for i2 in range(2):
                out.append(f"ds_read_b64_tr_b16 {vr(buf + fi * 4 + i2 * 2, 2)}, v{va} offset:{(off & 0xffff) + k_ * 2048 + i2 * 512}")
        return out
    def mfmas(s):
        buf = WF + (s % 2) * 32
        ins = []
        for fi, (kind, c, k_, n) in enumerate(frags(s)):
            acc = ACC[kind]
            w = vr(buf + fi * 4, 4); x = vr(XF + (4 * c + k_) * 4, 4)
            cc = "0" if (c == 0 and k_ == 0) else vr(acc, 16)
            ins.append(f"{MFMA} {vr(acc,16)}, {x}, {w}, {cc}" if kind == "v" else f"{MFMA} {vr(acc,16)}, {w}, {x}, {cc}")
        return ins
    def epi(kind):
        acc = ACC[kind]
        ins = []
        if kind == "k": ins += [f"v_mul_f32 v{acc+i}, s{sCS}, v{acc+i}" for i in range(16)]
        ins += [f"v_cvt_pk_bf16_f32 v{acc+i}, v{acc+2*i}, v{acc+2*i+1}" for i in range(8)]
        if kind == "v":
            ins.append(f"buffer_store_dwordx4 {vr(acc,4)}, v{vVst}, s[{S_WS}:{S_WS+3}], s{sVst} offen{SF}")
            ins.append(f"buffer_store_dwordx4 {vr(acc+4,4)}, v{vVst}, s[{S_WS}:{S_WS+3}], s{sV2} offen{SF}")
        else:
            so = sKst if kind == "k" else sQst
            ins.append(f"buffer_store_dwordx4 {vr(acc,4)}, v{vKst}, s[{S_WS}:{S_WS+3}], s{so} offen{SF}")
            ins.append(f"buffer_store_dwordx4 {vr(acc+4,4)}, v{vKst}, s[{S_WS}:{S_WS+3}], s{so} offen offset:1024{SF}")
        return ins
    SS = [int(x) for x in OPT.get('ss', '0,3,7,10').split(',')]
    for s in range(NS):
        a(f"; ---- slot {s}")
        a(f"s_waitcnt vmcnt({vm.wait_for(('d', s))}) lgkmcnt(0)" if s < NA else "s_waitcnt lgkmcnt(0)")
        a("s_barrier")
        if s in SS: stamp(1 + SS.index(s))
        m = mfmas(s - 1) if s >= 1 else []
        rd = reads(s)
        ep = []
        if s == 8: ep = epi("k")
        if s == 9: ep = epi("v")
        if s == 5: ep = [load_nonce(vNon)]
        if not m:
            for t in rd: a(t)
            continue
        n = len(m)
        gaps = [[] for _ in range(n)]
        for k, r in enumerate(rd): gaps[min(k // 3, n - 1)].append(r)
        for k, r in enumerate(ep): gaps[2 + k * (n - 2) // len(ep)].append(r)
        for k in range(n):
            a(m[k])
            for t in gaps[k]: a(t)
    a("s_waitcnt lgkmcnt(0)")
    for t in mfmas(NS - 1): a(t)
    a(f"""
    s_mov_b64 exec, 1
    ds_add_u32 v{vSy}, v{vOne} offset:{C_GD}
    s_mov_b64 exec, -1
    """)
    get_nonce(vNon, 4)
    a("s_nop 3")
    for t in epi("q"): a(t)
    publish(sF1, vT0)
    stamp(5)
    stamp_save(0, 6)

def attention():
    vKa, vVa, vVb = 2, 3, 4
    vT0, vT1, vT2, vL = 5, 6, 7, 1
    Qr, O, S, P = 8, 40, [104, 120], [136, 144]
    KB = [152 + 16 * i for i in range(4)]
    VB = [160 + 16 * i for i in range(4)]
    vSy, vOne = 216, 217
    sK, sCnt, sOst, sFl = S_T, S_T + 1, S_T + 2, S_T + 3
    sMask = S_T + 4
    sQ = [S_T + 6 + i for i in range(4)]
    sA, sB_ = S_T + 10, S_T + 11
    a(f"""
    L_attn:
    s_setprio 2
    s_mov_b32 s{S_KV}, s{S_WS}
    s_mov_b32 s{S_KV+1}, s{S_WS+1}
    s_mov_b32 s{S_KV+2}, {WS_SIZE}
    s_mov_b32 s{S_KV+3}, 0x00020000
    s_mul_i32 s{sA}, s{S_H}, 7
    s_lshr_b32 s{sA}, s{sA}, 1
    v_bfe_u32 v{vT0}, v0, 4, 1
    v_and_b32 v{vT1}, 15, v0
    s_lshl_b32 s{sB_}, s{S_WAVE}, 4
    v_add_u32 v{vT1}, s{sB_}, v{vT1}
    v_bfe_u32 v{vT2}, v0, 2, 1
    v_and_b32 v{vL}, 3, v0
    s_lshl_b32 s{sB_}, s{S_B}, 2
    v_add_u32 v{vL}, s{sB_}, v{vL}
    v_cmp_gt_u32 vcc, 32, v0
    s_add_u32 s{sB_}, s{sA}, 3
    s_lshr_b32 s{sB_}, s{sB_}, 2
    v_cndmask_b32 v{vT0}, v{vT2}, v{vT0}, vcc
    v_cndmask_b32 v{vT1}, v{vL}, v{vT1}, vcc
    s_lshr_b32 s{sCnt}, s{sA}, 2
    v_add_u32 v{vT0}, s{sCnt}, v{vT0}
    v_min_u32 v{vT0}, s{sB_}, v{vT0}
    v_lshl_add_u32 v{vT0}, v{vT0}, 6, v{vT1}
    v_lshlrev_b32 v{vT0}, 7, v{vT0}
    v_add_u32 v{vL}, {F1}, v{vT0}
    s_lshl_b32 s{sA}, s{sA}, 9
    v_lshlrev_b32 v{vKa}, 4, v0
    v_add_u32 v{vKa}, s{sA}, v{vKa}
    """)
    for q in range(4):
        a(f"""
        s_add_u32 s{sQ[q]}, s{S_WAVE}, {q+1}
        s_and_b32 s{sQ[q]}, s{sQ[q]}, 3
        s_lshl_b32 s{sA}, s{S_B}, 2
        s_add_u32 s{sQ[q]}, s{sQ[q]}, s{sA}
        s_mul_i32 s{sQ[q]}, s{sQ[q]}, {TILEB}
        """)
    a(f"""
    v_and_b32 v{vT0}, 31, v0
    v_lshrrev_b32 v{vT1}, 5, v0
    v_and_b32 v{vVa}, 0x13, v{vT0}
    v_bfe_u32 v{vT2}, v{vT0}, 2, 1
    v_lshl_add_u32 v{vVa}, v{vT2}, 3, v{vVa}
    v_bfe_u32 v{vT2}, v{vT0}, 3, 1
    v_lshl_add_u32 v{vVa}, v{vT2}, 2, v{vVa}
    v_lshlrev_b32 v{vVa}, 4, v{vVa}
    v_mul_u32_u24 v{vT2}, 7168, v{vT1}
    v_add_u32 v{vVa}, v{vVa}, v{vT2}
    s_mul_i32 s{sA}, s{S_H}, 448
    s_add_u32 s{sA}, s{sA}, {VBUF - KBUF}
    v_add_u32 v{vVa}, s{sA}, v{vVa}
    v_add_u32 v{vVb}, 14336, v{vVa}
    s_mul_i32 s{sK}, s{S_WAVE}, {16 * TILEB}
    s_add_u32 s{sK}, s{sK}, {KBUF}
    s_mov_b32 s{sMask}, 0x0fffffff
    s_mov_b32 s{sMask+1}, 0x0fffffff
    v_mov_b32 v{vT2}, 0x3f803f80
    v_cmp_eq_u32 vcc, 28, v{vT0}
    v_mov_b32 v{vSy}, {SYNC}
    v_mov_b32 v{vOne}, 1
    v_cndmask_b32 v{vT2}, 0, v{vT2}, vcc
    """)
    for b in range(4):
        for i in range(8): a(f"v_mov_b32 v{VB[b]+i}, v{vT2}")
    for i in range(64): a(f"v_mov_b32 v{O+i}, 0")
    for i in range(8): a(f"v_mov_b32 v{P[1]+i}, 0")
    for i in range(12, 16): a(f"v_mov_b32 v{S[1]+i}, 0")
    stamp(0)
    a("s_mov_b32 exec_hi, 0xff")
    poll(vL, vT0, int(OPT.get('psl', 6)), int(OPT.get('few', 8)))
    stamp(1)
    def ldK(b, so, srd_=S_KV):
        return (f"buffer_load_dwordx4 {vr(KB[b],4)}, v{vKa}, s[{srd_}:{srd_+3}], s{so} offen{LF}\n"
                f"buffer_load_dwordx4 {vr(KB[b]+4,4)}, v{vKa}, s[{srd_}:{srd_+3}], s{so} offen offset:1024{LF}")
    def ldV(b, so, srd_=S_KV):
        return (f"s_mov_b64 exec, s[{sMask}:{sMask+1}]\n"
                f"buffer_load_dwordx4 {vr(VB[b],4)}, v{vVa}, s[{srd_}:{srd_+3}], s{so} offen{LF}\n"
                f"buffer_load_dwordx4 {vr(VB[b]+4,4)}, v{vVb}, s[{srd_}:{srd_+3}], s{so} offen{LF}\n"
                f"s_mov_b64 exec, -1")
    def ldQ(q):
        a(f"buffer_load_dwordx4 {vr(Qr+8*q,4)}, v{vKa}, s[{S_WS}:{S_WS+3}], s{sQ[q]} offen{LF}")
        a(f"buffer_load_dwordx4 {vr(Qr+8*q+4,4)}, v{vKa}, s[{S_WS}:{S_WS+3}], s{sQ[q]} offen offset:1024{LF}")
    ldQ(0); a(ldK(0, sK))
    for q in (1, 2, 3): ldQ(q)
    for t in range(4):
        if t: a(ldK(t, sK))
        if t < 3:
            a(ldV(t, sK))
            a(f"s_add_u32 s{sK}, s{sK}, {TILEB}")
    def fixq(qs, n):
        lab = a.lab("Lqz"); lab2 = a.lab("Lqz")
        a(f"""
        s_bitcmp0_b32 s{S_H}, 0
        s_waitcnt vmcnt({n})
        s_cbranch_scc1 {lab}
        s_mov_b32 exec_hi, 0
        """)
        for q in qs: a(f"v_mov_b32 v{Qr+8*q}, 0\nv_mov_b32 v{Qr+8*q+1}, 0")
        a(f"s_branch {lab2}\n{lab}:\ns_mov_b32 exec_lo, 0")
        for q in qs: a(f"v_mov_b32 v{Qr+8*q+6}, 0\nv_mov_b32 v{Qr+8*q+7}, 0")
        a(f"{lab2}:\ns_mov_b64 exec, -1")
    fixq([0], 20)
    def qk(u):
        i, q = (u // 4) % 4, u % 4
        s = S[u % 2]
        return [f"{MFMA} {vr(s,16)}, {vr(KB[i],4)}, {vr(Qr+8*q,4)}, 0",
                f"{MFMA} {vr(s,16)}, {vr(KB[i]+4,4)}, {vr(Qr+8*q+4,4)}, {vr(s,16)}"]
    def pv(u):
        i, q = (u // 4) % 4, u % 4
        p = P[u % 2]; o = O + 16 * q
        return [f"{MFMA} {vr(o,16)}, {vr(VB[i],4)}, {vr(p,4)}, {vr(o,16)}",
                f"{MFMA} {vr(o,16)}, {vr(VB[i]+4,4)}, {vr(p+4,4)}, {vr(o,16)}"]
    a(f"s_waitcnt vmcnt(18)\ns_mov_b32 s{sCnt}, 0\ns_nop 1")
    stamp(2)
    for m in qk(0): a(m)
    fixq([1, 2, 3], 12)
    a("s_nop 3")
    loop = a.lab("Lattn")
    a(f".p2align 6\n{loop}:")
    cvt = lambda d, s_: f"v_cvt_pk_bf16_f32 v{d}, v{s_}, v{s_+1}"
    for u in range(16):
        i, q = u // 4, u % 4
        s = S[u % 2]; p = P[u % 2]; sp = S[(u + 1) % 2]; pp = P[(u + 1) % 2]
        m = pv(u - 1)[:1] + qk(u + 1) + pv(u - 1)[1:]
        extra = {k: [] for k in range(16)}
        if q == 0: extra[14].append("s_waitcnt vmcnt(10)")
        if q == 1: extra[5].append(ldV((i + 3) % 4, sK))
        if q == 3:
            extra[2].append("s_waitcnt vmcnt(10)")
            if i == 0: extra[0].append(f"s_cmp_eq_u32 s{sCnt}, 3\ns_cselect_b32 s{S_KV+2}, 0, s{S_KV+2}")
            extra[1].append(f"s_add_u32 s{sK}, s{sK}, {TILEB}")
            extra[5].append(ldK(i, sK))
        if u == 15:
            extra[9].append(f"s_add_u32 s{sCnt}, s{sCnt}, 1")
            extra[10].append(f"s_cmp_lt_u32 s{sCnt}, 4")
        if u == 6:
            extra[9].append(f"s_mov_b64 exec, 1\nds_add_u32 v{vSy}, v{vOne} offset:{C_AH}\ns_mov_b64 exec, -1")
        for g in range(4):
            a(m[g])
            if g == 0: a(cvt(pp + 6, sp + 12) + "\n" + cvt(pp + 7, sp + 14))
            else: a(cvt(p + 2 * g - 2, s + 4 * g - 4) + "\n" + cvt(p + 2 * g - 1, s + 4 * g - 2))
            for k in range(4 * g, 4 * g + 4):
                a(f"v_exp_f32 v{s+k}, v{s+k}")
                for l in extra[k]: a(l)
    a(f"s_cbranch_scc1 {loop}")
    a(pv(15)[0])
    a(cvt(P[1] + 6, S[1] + 12) + "\n" + cvt(P[1] + 7, S[1] + 14))
    a(f"v_lshlrev_b32 v{vT0}, 4, v0\ns_nop 0")
    a(pv(15)[1])
    stamp(3)
    for q in range(3):
        a(f"""
        s_add_u32 s{sA}, s{S_WAVE}, {q+1}
        s_and_b32 s{sA}, s{sA}, 3
        s_mul_i32 s{sA}, s{sA}, 12288
        v_add_u32 v{vT1}, s{sA}, v{vT0}
        """)
        for k in range(4): a(f"ds_write_b128 v{vT1}, {vr(O+16*q+4*k,4)} offset:{XCH + q*4096 + k*1024}")
    a(f"""
    s_mov_b64 exec, 1
    ds_add_u32 v{vSy}, v{vOne} offset:{C_AX}
    s_mov_b64 exec, -1
    s_mul_i32 s{sA}, s{S_WAVE}, 12288
    v_add_u32 v{vT1}, s{sA}, v{vT0}
    s_lshl_b32 s{sOst}, s{S_B}, 2
    s_add_u32 s{sOst}, s{sOst}, s{S_WAVE}
    s_lshl_b32 s{sOst}, s{sOst}, 4
    s_add_u32 s{sOst}, s{sOst}, s{S_H}
    s_lshl_b32 s{sFl}, s{sOst}, 7
    s_add_u32 s{sFl}, s{sFl}, {FO}
    s_lshl_b32 s{sOst}, s{sOst}, 11
    s_add_u32 s{sOst}, s{sOst}, {OBUF}
    """)
    lds_wait(vSy, C_AX, 4, vT2)
    for q in range(3):
        for k in range(4): a(f"ds_read_b128 {vr(O+16*q+4*k,4)}, v{vT1} offset:{XCH + q*4096 + k*1024}")
    F = O + 48
    stamp(4)
    for q in range(3):
        a(f"s_waitcnt lgkmcnt({8 - 4*q})")
        for k in range(0, 16, 2): a(f"v_pk_add_f32 {vr(F+k,2)}, {vr(F+k,2)}, {vr(O+16*q+k,2)}")
    a(f"""
    L_norm:
    v_mov_b32 v{vT1}, v{F+12}
    v_mov_b32 v{vL}, v{F+12}
    s_mov_b32 s{sA}, {f32(2.0**-40)}
    s_mov_b32 s{sB_}, {f32(2.0**40)}
    v_permlane32_swap_b32 v{vT1}, v{vL}
    s_nop 0
    v_rcp_f32 v{vT1}, v{vL}
    v_cmp_nle_f32 vcc, s{sA}, v{vL}
    v_cmp_nge_f32 s[{sQ[0]}:{sQ[0]+1}], s{sB_}, v{vL}
    s_or_b64 vcc, vcc, s[{sQ[0]}:{sQ[0]+1}]
    s_cbranch_vccnz L_slow
    L_norm2:
    v_cmp_gt_u32 vcc, 32, v0
    s_nop 1
    v_cndmask_b32 v{vT2}, 0, v{vT1}, vcc
    """)
    for k in range(16): a(f"v_mul_f32 v{F+k}, v{F+k}, v{vT1 if k < 12 else vT2}")
    for k in range(8): a(f"v_cvt_pk_bf16_f32 v{O+k}, v{F+2*k}, v{F+2*k+1}")
    a(f"buffer_store_dwordx4 {vr(O,4)}, v{vT0}, s[{S_WS}:{S_WS+3}], s{sOst} offen{SF}")
    a(f"buffer_store_dwordx4 {vr(O+4,4)}, v{vT0}, s[{S_WS}:{S_WS+3}], s{sOst} offen offset:1024{SF}")
    publish(sFl, vT2)
    stamp(5)
    stamp_save(1, 6)
    stamp_flush()
    a("s_endpgm")
    s0 = S[0]; p0 = P[0]; Q3 = Qr + 24; vM = O
    l1 = a.lab("Lsl"); l2 = a.lab("Lsl")
    qk3 = (f"{MFMA} {vr(s0,16)}, {vr(KB[0],4)}, {vr(Q3,4)}, 0\n"
           f"{MFMA} {vr(s0,16)}, {vr(KB[0]+4,4)}, {vr(Q3+4,4)}, {vr(s0,16)}\ns_nop 15")
    a(f"""
    L_slow:
    s_cmp_eq_u32 s{sCnt}, 99
    s_cbranch_scc1 L_norm2
    s_mov_b32 s{sK}, {KBUF}
    v_mov_b32 v{vM}, 0xff800000
    {l1}:
    {ldK(0, sK, S_WS)}
    s_waitcnt vmcnt(0)
    {qk3}
    """)
    for k in range(0, 16, 2): a(f"v_max3_f32 v{vM}, v{s0+k}, v{s0+k+1}, v{vM}")
    a(f"""
    s_add_u32 s{sK}, s{sK}, {TILEB}
    s_cmp_lt_u32 s{sK}, {KBUF + 64 * TILEB}
    s_cbranch_scc1 {l1}
    v_mov_b32 v{vM+1}, v{vM}
    s_nop 1
    v_permlane32_swap_b32 v{vM}, v{vM+1}
    s_nop 1
    v_max_f32 v{vM}, v{vM}, v{vM+1}
    s_mov_b32 s{sK}, {KBUF}
    """)
    for k in range(16): a(f"v_mov_b32 v{F+k}, 0")
    a(f"""
    {l2}:
    {ldK(0, sK, S_WS)}
    {ldV(0, sK, S_WS)}
    s_waitcnt vmcnt(0)
    {qk3}
    """)
    for k in range(16): a(f"v_sub_f32 v{s0+k}, v{s0+k}, v{vM}")
    for k in range(16): a(f"v_exp_f32 v{s0+k}, v{s0+k}")
    a("s_nop 0")
    for k in range(8): a(cvt(p0 + k, s0 + 2 * k))
    a(f"""
    s_nop 1
    {MFMA} {vr(F,16)}, {vr(VB[0],4)}, {vr(p0,4)}, {vr(F,16)}
    {MFMA} {vr(F,16)}, {vr(VB[0]+4,4)}, {vr(p0+4,4)}, {vr(F,16)}
    s_add_u32 s{sK}, s{sK}, {TILEB}
    s_cmp_lt_u32 s{sK}, {KBUF + 64 * TILEB}
    s_cbranch_scc1 {l2}
    s_mov_b32 s{sCnt}, 99
    s_nop 15
    s_branch L_norm
    """)

def idle():
    l7 = a.lab("Lw7")
    a(f"""
    L_idle:
    s_cmp_ge_u32 s{S_WAVE}, 4
    s_cbranch_scc1 {l7}
    s_lshl_b32 s{S_T+5}, s2, 7
    s_add_u32 s{S_T+5}, s{S_T+5}, {FH}
    v_mov_b32 v12, s{S_T+5}
    v_mov_b32 v13, 0
    s_waitcnt lgkmcnt(0)
    """)
    srd(S_WS, KA_WS, WS_SIZE); srd(S_DBG, KA_DBG, 256)
    a("s_barrier")
    get_nonce(13, 0)
    a("s_mov_b64 exec, 1")
    poll(12, 13, 8, 0)
    a(f"""
    s_branch L_attn
    {l7}:
    s_cmp_lg_u32 s{S_WAVE}, 7
    s_cbranch_scc1 L_end
    s_getpc_b64 s[{S_T+4}:{S_T+5}]
    Lpc:
    s_sub_u32 s{S_T+4}, s{S_T+4}, Lpc-{KN}
    s_subb_u32 s{S_T+5}, s{S_T+5}, 0
    s_memrealtime s[{S_T+10}:{S_T+11}]
    v_lshlrev_b32 v2, 7, v0
    v_add_u32 v3, 8192, v2
    v_add_u32 v4, 16384, v2
    v_min_u32 v4, L_end-{KN}, v4
    s_waitcnt lgkmcnt(0)
    s_cmp_lg_u32 s2, 0
    s_cbranch_scc1 Lnn
    """)
    srd(S_DBG, KA_DBG, 256)
    a(f"""
    s_or_b32 s{S_T+10}, s{S_T+10}, 1
    v_mov_b32 v8, s{S_T+10}
    s_mov_b64 exec, 1
    buffer_store_dword v8, off, s[{S_DBG}:{S_DBG+3}], 0 sc1
    s_mov_b64 exec, -1
    Lnn:
    global_load_dword v12, v2, s[{S_T+4}:{S_T+5}]
    global_load_dword v13, v3, s[{S_T+4}:{S_T+5}]
    global_load_dword v14, v4, s[{S_T+4}:{S_T+5}]
    s_endpgm
    """)
```

```python
from base import *
from rolea import C_AH
vSg, vMy, vPa, vSyB = 200, 201, 202, 203
def pair_signal(k):
    a(f"v_mov_b32 v{vSg}, {k}\ns_mov_b64 exec, 1\nds_write_b32 v{vMy}, v{vSg}\ns_mov_b64 exec, -1")
def pair_wait(k): lds_wait(vPa, 0, k, vSg)

def cmul(d, x, y, pk):
    if pk:
        return [f"v_pk_mul_f32 {vr(d,2)}, {vr(x,2)}, {vr(y,2)} op_sel:[0,0] op_sel_hi:[1,0]",
                f"v_pk_fma_f32 {vr(d,2)}, {vr(x,2)}, {vr(y,2)}, {vr(d,2)} op_sel:[1,1,0] op_sel_hi:[0,1,1] neg_lo:[0,1,0]"]
    return [f"v_mul_f32 v{d}, v{x}, v{y}", f"v_mul_f32 v{d+1}, v{x+1}, v{y}",
            f"v_fma_f32 v{d}, -v{x+1}, v{y+1}, v{d}", f"v_fmac_f32 v{d+1}, v{x}, v{y+1}"]

RAW, PRM, vDT, vFA, KT = 12, 16, 20, 21, 22
def kgen_valu(it, P):
    E1, E2, E4, E8, E256, E16 = 28, 30, 32, 34, 36, 38
    X, Y, Z, W = 40, 42, 44, 46
    LA, AI, CR, CI = PRM, PRM + 1, PRM + 2, PRM + 3
    T = KT; vA_, vB_ = T, T + 1
    G = []
    def raw(txt):
        for l in txt.strip().split("\n"): G.append(lambda pk, l=l.strip(): [l])
    for k in range(4):
        raw(f"v_lshlrev_b32 v{PRM+k}, 16, v{RAW+k}" if it == 0 else f"v_and_b32 v{PRM+k}, 0xffff0000, v{RAW+k}")
    raw(f"""v_mul_f32 v{vA_}, {f32(LOG2E)}, v{LA}
    v_exp_f32 v{vA_}, v{vA_}
    v_mul_f32 v{vB_}, v{AI}, v{vDT}
    v_cvt_pk_bf16_f32 v{vA_}, v{vA_}, v{vA_}
    v_and_b32 v{vA_}, 0xffff0000, v{vA_}
    v_mul_f32 v{vA_}, v{vA_}, v{vDT}
    v_mul_f32 v{vA_}, {f32(-LOG2E)}, v{vA_}
    v_mul_f32 v{vB_}, 0.15915494, v{vB_}
    v_add_f32 v{T+2}, v{vDT}, v{vDT}
    v_mul_f32 v{X}, v{CR}, v{T+2}
    v_mul_f32 v{X+1}, v{CI}, v{T+2}""")
    for E, t in ((E1, 1.0), (E8, 8.0), (E256, 256.0)):
        raw(f"""v_mul_f32 v{T+2}, {f32(t)}, v{vA_}
        v_mul_f32 v{T+3}, {f32(t)}, v{vB_}
        v_exp_f32 v{T+2}, v{T+2}
        v_fract_f32 v{T+3}, v{T+3}
        v_cos_f32 v{E}, v{T+3}
        v_sin_f32 v{E+1}, v{T+3}
        v_mul_f32 v{E}, v{E}, v{T+2}
        v_mul_f32 v{E+1}, v{E+1}, v{T+2}""")
    wr = []; nxtp = [P]
    def put(src, rows, conj):
        t = nxtp[0]; nxtp[0] += 1
        raw(f"v_cvt_pk_bf16_f32 v{t}, v{src}, {'-' if conj else ''}v{src+1}")
        for r in rows: wr.append(f"ds_write_addtid_b32 v{t} offset:{r*272}")
    def cm(d, x, y): G.append(lambda pk: cmul(d, x, y, pk))
    rho = lambda v, h: 8 * (v >> 2) + 4 * h + (v & 3)
    cm(E2, E1, E1); cm(E4, E2, E2); cm(E16, E8, E8)
    cm(Z, X, E256)
    put(X, [rho(0, 0)], True)
    cur, nxt = X, Y
    for k in range(1, 8):
        cm(nxt, cur, E1); put(nxt, [rho(k, 0)], True)
        cur, nxt = nxt, cur
    rows1 = [[0, 1], [2], [3, 4, 5], [6], [7]]
    put(Z, [rho(v, 1) for v in rows1[0]], True)
    cur, nxt = Z, X
    for k in range(1, 5):
        cm(nxt, cur, E2); put(nxt, [rho(v, 1) for v in rows1[k]], True)
        cur, nxt = nxt, (Y if nxt == X else X)
    H, Hn = Z, W
    for B in (2, 3):
        cm(Hn, H, E256); H, Hn = Hn, H
        put(H, [rho(8, B & 1)], True)
        cm(X, H, E4); put(X, [rho(9, B & 1)], True)
        cm(Y, H, E8); put(Y, [rho(10, B & 1)], True)
    for B in (4, 5, 6, 7):
        v0_ = 11 if B < 6 else 13
        cm(Hn, H, E256); H, Hn = Hn, H
        put(H, [rho(v0_, B & 1)], True)
        cm(X, H, E8); put(X, [rho(v0_ + 1, B & 1)], True)
    roww = list(wr); wr.clear()
    wr.append(f"ds_write_addtid_b32 v{KT+5} offset:0")
    put(E8, [1], False); put(E16, [2], False)
    ch = {1: E8, 0: E16}; pool = {1: [X, Y], 0: [Z, W]}
    for j in range(3, 32):
        par = j & 1
        d = pool[par][0]; pool[par].reverse()
        cm(d, ch[par], E16); put(d, [j], False)
        ch[par] = d
    assert nxtp[0] == P + 58
    return G, roww, list(wr)

def tr_addr(T, dpitch):
    a(f"""
    v_lshlrev_b32 v{T}, 4, v0
    v_add_u32 v{T}, s{S_PRIV}, v{T}
    v_lshrrev_b32 v{T+2}, 4, v0
    v_and_b32 v{T+3}, 15, v0
    v_lshlrev_b32 v{T+1}, 9, v{T+2}
    v_lshl_add_u32 v{T+1}, v{T+3}, 3, v{T+1}
    v_add_u32 v{T+1}, s{S_PRIV}, v{T+1}
    v_mul_u32_u24 v{T+3}, 144, v{T+3}
    v_lshl_add_u32 v{T+3}, v{T+2}, 5, v{T+3}
    v_add_u32 v{T+3}, s{S_PRIV}, v{T+3}
    v_lshrrev_b32 v{T+2}, 3, v0
    v_mul_u32_u24 v{T+4}, 144, v{T+2}
    v_mul_u32_u24 v{T+2}, {dpitch}, v{T+2}
    v_and_b32 v{T+5}, 7, v0
    v_lshl_add_u32 v{T+4}, v{T+5}, 4, v{T+4}
    v_add_u32 v{T+4}, s{S_PRIV}, v{T+4}
    v_lshl_add_u32 v{T+2}, v{T+5}, 4, v{T+2}
    """)
def tr_lds(T, R, LO):
    a(f"ds_write_b128 v{T}, {vr(R,4)} offset:{LO}\nds_write_b128 v{T}, {vr(R+4,4)} offset:{LO+1024}")
    for i in range(4): a(f"ds_read_b64_tr_b16 {vr(R+2*i,2)}, v{T+1} offset:{LO + i*128}")
    a(f"""
    s_waitcnt lgkmcnt(0)
    ds_write_b128 v{T+3}, {vr(R,4)} offset:{LO}
    ds_write_b128 v{T+3}, {vr(R+4,4)} offset:{LO+16}
    ds_read_b128 {vr(R,4)}, v{T+4} offset:{LO}
    ds_read_b128 {vr(R+4,4)}, v{T+4} offset:{LO+8*144}
    """)

def role_b():
    T = 6
    P = [48, 108]; AF = 216; CA = [216, 232]; ACC = 28
    vNon, vZ, vG, vWl, vFu, vAa, vXa_, vWw = 204, 205, 206, 207, 208, 209, 210, 211
    sU, sIt, sUw, sCh, sFl, sLast, sWin = S_T, S_T + 4, S_T + 7, S_T + 8, S_T + 9, S_T + 10, S_T + 11
    S1 = 4160
    UR = 168; UT_ = 176; LD = 184
    a(f"""
    L_B:
    v_lshrrev_b32 v7, 1, v0
    v_mul_u32_u24 v7, 896, v7
    v_and_b32 v8, 1, v0
    v_lshl_add_u32 v7, v8, 4, v7
    s_lshl_b32 s{S_T+5}, s{S_BW}, 5
    s_add_u32 s{S_T+5}, s{S_T+5}, s{sXb}
    s_add_u32 s{S_T+5}, s{S_T+5}, s{sWb}
    v_add_u32 v7, s{S_T+5}, v7
    v_add_u32 v8, {32*896}, v7
    s_waitcnt lgkmcnt(0)
    global_load_dword v{RAW}, v6, {kp(KA_LOGA)}
    global_load_dword v{RAW+1}, v6, {kp(KA_AIM)}
    global_load_dword v{RAW+2}, v6, {kp(KA_CR)}
    global_load_dword v{RAW+3}, v6, {kp(KA_CI)}
    global_load_dwordx4 {vr(UR,4)}, v7, {kp(KA_U)}
    global_load_dwordx4 {vr(UR+4,4)}, v8, {kp(KA_U)}
    s_load_dword s{sLD}, {kp(KA_LOGDT)}, s{sD}
    s_load_dword s{sDS}, {kp(KA_DSKIP)}, s{sD}
    s_barrier
    """)
    srd(S_X, KA_X, 1835008); srd(S_W, KA_WQKV, 1204224); srd(S_DBG, KA_DBG, 256)
    srd(S_WS, KA_WS, WS_SIZE); srd(S_WO, KA_WO, 401408); srd(S_OUT, KA_OUT, 3670016)
    for c in range(7): offsets(c)
    a(f"""
    s_mul_i32 s{S_PRIV}, s{S_BW}, {PRIVB}
    s_add_u32 s{S_PRIV}, s{S_PRIV}, {PRIV0}
    s_lshl_b32 s{S_T+6}, s{S_BW}, 2
    s_add_u32 s{S_T+6}, s{S_T+6}, {SYNC + C_PAIR}
    v_mov_b32 v{vMy}, s{S_T+6}
    v_xor_b32 v{vPa}, 4, v{vMy}
    v_mov_b32 v{vSyB}, {SYNC}
    s_mul_i32 s{sWin}, s{S_C}, {2*PRIVB}
    s_add_u32 s{sWin}, s{sWin}, {PRIV0}
    v_and_b32 v{T}, 3, v0
    v_bfe_u32 v{T+1}, v0, 3, 2
    v_lshl_add_u32 v{T}, v{T+1}, 2, v{T}
    v_bfe_u32 v{T+1}, v0, 2, 1
    v_lshl_add_u32 v{T}, v{T+1}, 4, v{T}
    v_lshrrev_b32 v{T+1}, 5, v0
    v_lshlrev_b32 v{T+2}, 3, v{T+1}
    v_sub_u32 v{T}, v{T}, v{T+2}
    v_add_u32 v{T}, 9, v{T}
    v_sub_u32 v{T+2}, 0, v{T}
    v_and_b32 v{T+2}, 3, v{T+2}
    v_add_lshl_u32 v{T}, v{T}, v{T+2}, 1
    v_mul_u32_u24 v{T+2}, {S1}, v{T+2}
    s_lshl_b32 s{S_T+5}, s{S_NH}, 10
    s_add_u32 s{S_T+5}, s{S_T+5}, s{sWin}
    v_add3_u32 v{vAa}, v{T}, v{T+2}, s{S_T+5}
    v_lshlrev_b32 v{vWl}, 4, v0
    s_lshl_b32 s{S_T+5}, s{S_NH}, 11
    s_add_u32 s{S_T+5}, s{S_T+5}, s{sWin}
    v_add_u32 v{vWw}, s{S_T+5}, v{vWl}
    v_and_b32 v{T}, 31, v0
    v_mul_u32_u24 v{vFA}, 272, v{T}
    v_lshl_add_u32 v{vFA}, v{T+1}, 4, v{vFA}
    v_add_u32 v{vFA}, s{S_PRIV}, v{vFA}
    v_lshlrev_b32 v{vFu}, 7, v{T}
    v_lshlrev_b32 v{T}, 4, v{T}
    v_mul_u32_u24 v{T+2}, {SP}, v{T+1}
    s_mul_i32 s{S_T+6}, s{S_C}, {KPLB}
    s_lshl_b32 s{S_T+5}, s{S_NH}, 8
    s_sub_u32 s{S_T+5}, s{S_T+6}, s{S_T+5}
    s_add_u32 s{S_T+5}, s{S_T+5}, {30*16}
    v_add3_u32 v{vXa_}, v{T}, v{T+2}, s{S_T+5}
    v_and_b32 v{T}, 3, v0
    v_mul_u32_u24 v{T}, {SP}, v{T}
    v_lshrrev_b32 v{T+1}, 2, v0
    v_lshl_add_u32 v{T}, v{T+1}, 4, v{T}
    v_add_u32 v{vG}, s{S_T+6}, v{T}
    v_lshrrev_b32 v{T}, 4, v0
    v_mul_u32_u24 v{T}, {S1}, v{T}
    v_and_b32 v{T+1}, 15, v0
    v_lshl_add_u32 v{T}, v{T+1}, 2, v{T}
    v_add_u32 v{vZ}, s{sWin}, v{T}
    s_lshr_b32 s{sCh}, s{sD}, 1
    s_add_u32 s{sCh}, s{sCh}, s{S_C}
    s_lshl_b32 s{S_T+5}, s{S_J}, 12
    s_add_u32 s{S_T+5}, s{S_T+5}, {FU}
    v_add_u32 v{vFu}, s{S_T+5}, v{vFu}
    s_mul_i32 s{sUw}, s{sCh}, {UROW}
    s_lshl_b32 s{S_T+5}, s{S_NH}, 11
    s_add_u32 s{sUw}, s{sUw}, s{S_T+5}
    s_add_u32 s{sUw}, s{sUw}, {UTB + 128 - 8}
    v_mov_b32 v{KT+5}, 0x3f80
    s_waitcnt lgkmcnt(0)
    s_lshl_b32 s{S3}, s{S_C}, 4
    s_lshr_b32 s{sLD}, s{sLD}, s{S3}
    s_lshl_b32 s{sLD}, s{sLD}, 16
    s_lshr_b32 s{sDS}, s{sDS}, s{S3}
    s_lshl_b32 s{sDS}, s{sDS}, 16
    v_mov_b32 v{KT}, {f32(LOG2E)}
    v_mul_f32 v{vDT}, s{sLD}, v{KT}
    v_exp_f32 v{vDT}, v{vDT}
    s_nop 0
    v_cvt_pk_bf16_f32 v{vDT}, v{vDT}, v{vDT}
    v_and_b32 v{vDT}, 0xffff0000, v{vDT}
    s_lshl_b32 s{sU}, s{S_J}, 2
    s_add_u32 s{sU}, s{sU}, s{S_BW}
    s_mul_i32 s{sU}, s{sU}, {16*UROW}
    s_lshl_b32 s{S_T+5}, s{S_RB}, 7
    s_add_u32 s{sU}, s{sU}, s{S_T+5}
    s_add_u32 s{sU}, s{sU}, {UTB + 128}
    s_add_u32 s{S_T+1}, s{sU}, {8*UROW}
    s_lshl_b32 s{sFl}, s{sD}, 5
    s_add_u32 s{sFl}, s{sFl}, {FU}
    """)
    tr_addr(UT_, UROW)
    a("s_waitcnt vmcnt(2)")
    stamp(0)
    G0, rw0, cw0 = kgen_valu(0, P[0]); G1, rw1, cw1 = kgen_valu(1, P[1])
    G = G0 + G1
    npre = int(len(G) * float(OPT.get('pre', 0.6)))
    n1 = int(len(G) * float(OPT.get('pre1', 0.15)))
    for g in G[:n1]:
        for t in g(True): a(t)
    a("s_waitcnt vmcnt(0)")
    tr_lds(UT_, UR, 0)
    for g in G[n1:npre]:
        for t in g(True): a(t)
    rest = G[npre:]
    lz = a.lab("Lz")
    a(f"""
    s_waitcnt lgkmcnt(0)
    buffer_store_dwordx4 {vr(UR,4)}, v{UT_+2}, s[{S_WS}:{S_WS+3}], s{sU} offen{SF}
    buffer_store_dwordx4 {vr(UR+4,4)}, v{UT_+2}, s[{S_WS}:{S_WS+3}], s{S_T+1} offen{SF}
    {load_nonce(vNon)}
    s_cmp_lg_u32 s{S_RB}, 0
    s_cbranch_scc1 {lz}
    v_mov_b32 v{LD}, 0
    v_mov_b32 v{LD+1}, 0
    v_mov_b32 v{LD+2}, 0
    v_mov_b32 v{LD+3}, 0
    s_sub_u32 s{sU}, s{sU}, 128
    s_sub_u32 s{S_T+1}, s{S_T+1}, 128
    buffer_store_dwordx4 {vr(LD,4)}, v{UT_+2}, s[{S_WS}:{S_WS+3}], s{sU} offen{SF}
    buffer_store_dwordx4 {vr(LD,4)}, v{UT_+2}, s[{S_WS}:{S_WS+3}], s{S_T+1} offen{SF}
    {lz}:
    """)
    stamp(1)
    vm = Q(63)
    nxt = first[NA]
    nsl = int(OPT.get('nsl', 7))
    PS, WSL = int(OPT.get('ps', 7)), int(OPT.get('wsl', 9))
    def wloads():
        for g in range(2):
            a(f"buffer_load_dwordx2 {vr(LD+8*g+2,2)}, v{vWl}, s[{S_WS}:{S_WS+3}], s{sUw} offen offset:{1024*g}{LF}")
            a(f"buffer_load_dwordx4 {vr(LD+8*g+4,4)}, v{vWl}, s[{S_WS}:{S_WS+3}], s{sUw} offen offset:{1024*g+8}{LF}")
    for s in range(NS):
        if s >= NA: a(f"s_waitcnt vmcnt({vm.wait_for(('d', s))})")
        a("s_barrier")
        if s == NA:
            get_nonce(vNon, 63)
            lp = a.lab("Lfu")
            a(f"""
            v_mov_b32 v{T}, s{S_NONCE}
            s_cmp_lg_u32 s{S_BW}, 0
            s_cbranch_scc1 {lp}
            s_mov_b64 exec, 1
            buffer_store_dword v{T}, off, s[{S_WS}:{S_WS+3}], s{sFl} sc1
            s_mov_b64 exec, -1
            {lp}:
            """)
        lim = min(28, 14 + first[s])
        while nxt < lim:
            for t in dma(nxt): a(t); vm.issue(("d", slot_of[nxt]))
            nxt += 1
        if s == PS:
            a(f"""
            s_mov_b32 exec_hi, 0
            s_bitcmp1_b32 s{S_NH}, 0
            s_cselect_b32 exec_lo, 0xffff8000, 0xffff
            buffer_load_dword v{T+1}, v{vFu}, s[{S_WS}:{S_WS+3}], 0 offen sc1
            s_mov_b64 exec, -1
            """.replace("s_cselect_b32 exec_lo, 0xffff8000, 0xffff", f"s_mov_b32 s{S_T+2}, 0xffff\ns_cselect_b32 s{S_T+2}, 0xffff8000, s{S_T+2}\ns_mov_b32 exec_lo, s{S_T+2}"))
            vm.issue("pu")
        if s == NS - 2:
            lh = a.lab("Lh")
            a(f"""
            s_sub_u32 s{S_T+5}, s2, 32
            s_lshl_b32 s{S_T+6}, s{S_BW}, 5
            s_add_u32 s{S_T+6}, s{S_T+6}, s{S_T+5}
            s_lshl_b32 s{S_T+5}, s{S_T+5}, 7
            s_add_u32 s{S_T+5}, s{S_T+5}, {FH}
            s_cmp_ge_u32 s{S_T+6}, 32
            s_cbranch_scc1 {lh}
            s_mov_b64 exec, 1
            buffer_store_dword v{T}, off, s[{S_WS}:{S_WS+3}], s{S_T+5} sc1
            s_mov_b64 exec, -1
            {lh}:
            """)
        if s < nsl:
            for g in rest[len(rest) * s // nsl: len(rest) * (s + 1) // nsl]:
                for t in g(False): a(t)
    stamp(2)
    lok = a.lab("Lok")
    a(f"""
    s_mov_b32 m0, s{S_PRIV}
    s_mov_b32 exec_hi, 0
    s_mov_b32 exec_lo, s{S_T+2}
    s_waitcnt vmcnt({vm.wait_for("pu")})
    v_cmp_ne_u32 vcc, s{S_NONCE}, v{T+1}
    s_cbranch_vccz {lok}
    """)
    poll(vFu, T + 1, 4, 0)
    a(f"{lok}:\ns_mov_b64 exec, -1")
    wloads()
    def lds_part(it, rw, cw):
        for w in rw: a(w)
        for s in range(8): a(f"ds_read_b128 {vr(AF+4*s,4)}, v{vFA} offset:{32*s}")
        for w in cw: a(w)
        for s in range(8): a(f"ds_read_b128 {vr(P[it]+4*s,4)}, v{vFA} offset:{32*s}")
    def mf_part(it, fill):
        for s in range(8):
            a(f"{MFMA} {vr(ACC,16)}, {vr(AF+4*s,4)}, {vr(P[it]+4*s,4)}, {'0' if (s == 0 and it == 0) else vr(ACC,16)}")
            for w in fill[4*s:4*s+4]: a(w)
    lds_part(0, rw0, cw0)
    a("s_waitcnt lgkmcnt(0)")
    mf_part(0, rw1)
    lds_part(1, [], cw1)
    C1 = 48
    for g in range(2):
        d = lambda k: LD + 8 * g + 4 + k
        o = C1 + 12 * g
        a(f"s_waitcnt vmcnt({2 - 2*g})")
        for k in range(4): a(f"v_alignbit_b32 v{o+k}, v{d(k)}, v{d(k-1)}, 16")
        for k in range(4): a(f"v_mov_b32 v{o+4+k}, v{d(k-1)}")
        a(f"v_alignbit_b32 v{o+8}, v{d(-1)}, v{d(-2)}, 16")
        for k in range(1, 4): a(f"v_mov_b32 v{o+8+k}, v{o+k-1}")
    a("s_waitcnt lgkmcnt(0)")
    mf_part(1, [])
    Gs, BF = 80, 100
    a(f"""
    v_add_u32 v{T}, s{S_PRIV}, v{vWl}
    v_mov_b32 v{BF+16}, 0
    v_mov_b32 v{BF+17}, 0
    v_mov_b32 v{BF+18}, 0
    v_mov_b32 v{BF+19}, 0
    s_nop 6
    """)
    for k in range(4): a(f"ds_write_b128 v{T}, {vr(ACC+4*k,4)} offset:{1024*k}")
    pair_signal(1)
    for i in range(32): a(f"v_mov_b32 v{CA[0]+i}, 0")
    pair_wait(1)
    for i, o in enumerate([0, PRIVB]):
        for k in range(2): a(f"ds_read_b128 {vr(Gs+8*i+4*k,4)}, v{vWw} offset:{o + 1024*k}")
    pair_signal(2)
    a("s_waitcnt lgkmcnt(0)")
    for k in range(8): a(f"v_add_f32 v{Gs+k}, v{Gs+k}, v{Gs+8+k}")
    l3 = a.lab("Lkx"); l4 = a.lab("Lkx")
    wr = lambda reg, beta: f"ds_write_b128 v{vG}, {vr(reg,4)} offset:{KPLL + 512 + 256*beta}"
    a(f"""
    s_cmp_eq_u32 s{S_NH}, 0
    s_cbranch_scc0 {l3}
    v_mov_b32 v{T+4}, s{sDS}
    v_cmp_eq_u32 vcc, 0, v0
    s_nop 1
    v_cndmask_b32 v{T+4}, 0, v{T+4}, vcc
    v_add_f32 v{Gs}, v{Gs}, v{T+4}
    """)
    for k in range(4): a(f"v_cvt_pk_bf16_f32 v{BF+k}, v{Gs+7-2*k}, v{Gs+6-2*k}")
    a(wr(BF, 0)); a(wr(BF + 16, -1)); a(wr(BF + 16, -2))
    a(f"""
    s_branch {l4}
    {l3}:
    v_and_b32 v{T+4}, 1, v0
    v_cmp_eq_u32 vcc, 0, v{T+4}
    v_cvt_pk_bf16_f32 v{BF}, v{Gs+2}, v{Gs+2}
    v_cvt_pk_bf16_f32 v{BF+1}, v{Gs+1}, v{Gs+1}
    v_cvt_pk_bf16_f32 v{BF+2}, v{Gs+1}, v{Gs}
    v_cvt_pk_bf16_f32 v{BF+3}, v{Gs}, v{Gs}
    """)
    for beta in (2, 3):
        g0 = Gs + 3 + 2 * (beta - 2); g8 = g0 + 1; R = BF + 4 * (beta - 1)
        a(f"""
        v_cndmask_b32 v{T+4}, v{g8}, v{g0}, vcc
        v_cvt_pk_bf16_f32 v{R}, v{g8}, v{g8}
        v_cvt_pk_bf16_f32 v{R+1}, v{g8}, v{T+4}
        v_cvt_pk_bf16_f32 v{R+2}, v{g0}, v{g0}
        v_cvt_pk_bf16_f32 v{R+3}, v{g0}, v{g0}
        """)
    for beta in (1, 2, 3): a(wr(BF + 4 * (beta - 1), beta))
    a(f"{l4}:")
    pair_wait(2)
    a(f"ds_write_b32 v{vZ}, v{BF+16}")
    for g in range(2):
        a(f"ds_write_b128 v{vWw}, {vr(LD+8*g+4,4)} offset:{64 + 1024*g}")
        for c in range(1, 4): a(f"ds_write_b128 v{vWw}, {vr(C1+12*g+4*(c-1),4)} offset:{64 + 1024*g + c*S1}")
    pair_signal(3)
    pair_wait(3)
    stamp(3)
    FR = [120, 152]
    def reads(buf, dm):
        ins = []
        R = FR[buf]
        for sg in range(2):
            for k_ in range(2):
                for i2 in range(2):
                    ins.append(f"ds_read_b64 {vr(R + (2*sg+k_)*4 + 2*i2, 2)}, v{vAa} offset:{sg*2048 + 64*dm + 32*(1-k_) + 8*i2}")
        for xo in range(2):
            for k_ in range(2):
                ins.append(f"ds_read_b128 {vr(R + 16 + (2*xo+k_)*4, 4)}, v{vXa_} offset:{KPLL + 2*k_*SP + 512*xo + 16*(2-dm)}")
        return [ins[k] for k in [0, 1, 8, 10, 4, 5, 2, 3, 9, 11, 6, 7]]
    def mf(buf, fill):
        R = FR[buf]
        A = lambda sg, k_: vr(R + (2*sg+k_)*4, 4)
        Xf = lambda xo, k_: vr(R + 16 + (2*xo+k_)*4, 4)
        o = []
        for k_ in range(2):
            o.append(f"{MFMA} {vr(CA[0],16)}, {A(0,k_)}, {Xf(0,k_)}, {vr(CA[0],16)}")
            o.append(f"{MFMA} {vr(CA[1],16)}, {A(0,k_)}, {Xf(1,k_)}, {vr(CA[1],16)}")
            o.append(f"{MFMA} {vr(CA[1],16)}, {A(1,k_)}, {Xf(0,k_)}, {vr(CA[1],16)}")
        for k, m in enumerate(o):
            a(m)
            for t in fill[3*k:3*k+3]: a(t)
    for r in reads(0, 0): a(r)
    a(f"s_mov_b32 s{sIt}, 0")
    loop = a.lab("Lcv")
    a(f"{loop}:\ns_waitcnt lgkmcnt(0)")
    mf(0, reads(1, 1))
    a("s_waitcnt lgkmcnt(0)")
    mf(1, reads(0, 2) + [f"v_add_u32 v{vAa}, 128, v{vAa}", f"v_subrev_u32 v{vXa_}, 32, v{vXa_}", f"s_add_u32 s{sIt}, s{sIt}, 1", f"s_cmp_lt_u32 s{sIt}, 8"])
    a(f"s_cbranch_scc1 {loop}")
    stamp(4)
    a("s_setprio 3")
    l1 = a.lab("Lcx"); l2 = a.lab("Lcx")
    F = 16
    pair_signal(4)
    a(f"""
    s_xor_b32 s{S_T+6}, s{S_BW}, 1
    s_mul_i32 s{S_T+6}, s{S_T+6}, {PRIVB}
    s_add_u32 s{S_T+6}, s{S_T+6}, {PRIV0}
    v_add_u32 v{T+2}, s{S_T+6}, v{vWl}
    v_and_b32 v{T+3}, 31, v0
    v_lshlrev_b32 v{T+3}, 6, v{T+3}
    v_lshrrev_b32 v{T+4}, 5, v0
    v_lshl_add_u32 v{T+3}, v{T+4}, 5, v{T+3}
    v_add_u32 v{T+3}, s{S_PRIV}, v{T+3}
    s_lshl_b32 s{sU}, s{sCh}, 12
    s_lshl_b32 s{S_T+5}, s{S_NH}, 11
    s_add_u32 s{sU}, s{sU}, s{S_T+5}
    s_add_u32 s{sU}, s{sU}, {YTB}
    s_lshl_b32 s{sFl}, s{sD}, 5
    s_add_u32 s{sFl}, s{sFl}, {FY}
    """)
    pair_wait(4)
    a(f"s_cmp_eq_u32 s{S_NH}, 0\ns_cbranch_scc1 {l1}")
    for k in range(4): a(f"ds_write_b128 v{T}, {vr(CA[0]+4*k,4)} offset:{1024*k}")
    for k in range(16): a(f"v_mov_b32 v{CA[0]+k}, v{CA[1]+k}")
    a(f"s_branch {l2}\n{l1}:")
    for k in range(4): a(f"ds_write_b128 v{T}, {vr(CA[1]+4*k,4)} offset:{1024*k}")
    a(f"{l2}:")
    pair_signal(5)
    pair_wait(5)
    for k in range(4): a(f"ds_read_b128 {vr(F+4*k,4)}, v{T+2} offset:{1024*k}")
    a("s_waitcnt lgkmcnt(0)")
    for k in range(16): a(f"v_add_f32 v{F+k}, v{F+k}, v{CA[0]+k}")
    for k in range(8): a(f"v_cvt_pk_bf16_f32 v{F+k}, v{F+2*k}, v{F+2*k+1}")
    a(f"""
    ds_write_b128 v{T+3}, {vr(F,4)} offset:4096
    ds_write_b128 v{T+3}, {vr(F+4,4)} offset:4112
    ds_read_b128 {vr(F+8,4)}, v{T} offset:4096
    ds_read_b128 {vr(F+12,4)}, v{T} offset:5120
    s_waitcnt lgkmcnt(1)
    buffer_store_dwordx4 {vr(F+8,4)}, v{vWl}, s[{S_WS}:{S_WS+3}], s{sU} offen{SF}
    s_waitcnt lgkmcnt(0)
    buffer_store_dwordx4 {vr(F+12,4)}, v{vWl}, s[{S_WS}:{S_WS+3}], s{sU} offen offset:1024{SF}
    """)
    group_publish(C_PY, sFl, sLast, vSyB, T + 4)
    lds_wait(vSyB, C_GD, 4, vSg)
    loop = a.lab("Lwo")
    a(f"""
    v_lshrrev_b32 v{T}, 3, v0
    v_and_b32 v{T+1}, 7, v0
    v_bfe_u32 v{T+2}, v0, 4, 1
    v_lshlrev_b32 v{T+2}, 2, v{T+2}
    v_xor_b32 v{T+1}, v{T+1}, v{T+2}
    v_lshlrev_b32 v{T+1}, 4, v{T+1}
    v_mul_u32_u24 v{T+3}, 896, v{T}
    v_add_u32 v{T+3}, v{T+3}, v{T+1}
    v_mov_b32 v{T}, 0
    v_mov_b32 v{T+1}, 0
    v_lshlrev_b32 v{T+2}, 3, v0
    v_add_u32 v{T+2}, {WOL + 448*128}, v{T+2}
    ds_write_b64 v{T+2}, {vr(T,2)}
    s_mul_i32 s{S_T+5}, s{S_BW}, {112*896}
    s_add_u32 s{S_T+5}, s{S_T+5}, s{sWb}
    s_mul_i32 s{S_T+6}, s{S_BW}, {14*1024}
    s_add_u32 s{S_T+6}, s{S_T+6}, {WOL}
    s_mov_b32 s{sIt}, 0
    {loop}:
    s_mov_b32 m0, s{S_T+6}
    s_add_u32 s{S_T+6}, s{S_T+6}, 1024
    buffer_load_dwordx4 v{T+3}, s[{S_WO}:{S_WO+3}], s{S_T+5} offen lds
    s_add_u32 s{S_T+5}, s{S_T+5}, {8*896}
    s_add_u32 s{sIt}, s{sIt}, 1
    s_cmp_lt_u32 s{sIt}, 14
    s_cbranch_scc1 {loop}
    v_add_u32 v{vFu}, {FY - FU}, v{vFu}
    v_mov_b32 v{T}, 1
    s_waitcnt vmcnt(0)
    s_mov_b64 exec, 1
    ds_add_u32 v{vSyB}, v{T} offset:{C_WU}
    s_mov_b64 exec, -1
    """)
    group_wait(C_WY, sLast, 3, vFu, vSyB, T + 5, 16)
    R = 16; LO = 4096
    a(f"""
    s_lshl_b32 s{sU}, s{S_J}, 18
    s_lshl_b32 s{S_T+5}, s{S_RB}, 7
    s_add_u32 s{sU}, s{sU}, s{S_T+5}
    s_lshl_b32 s{S_T+5}, s{S_BW}, 5
    s_add_u32 s{sU}, s{sU}, s{S_T+5}
    s_add_u32 s{sU}, s{sU}, {YTB}
    s_add_u32 s{S_T+5}, s{sU}, {32*4096}
    v_lshrrev_b32 v{T}, 1, v0
    v_lshlrev_b32 v{T}, 12, v{T}
    v_and_b32 v{T+1}, 1, v0
    v_lshl_add_u32 v{T}, v{T+1}, 4, v{T}
    buffer_load_dwordx4 {vr(R,4)}, v{T}, s[{S_WS}:{S_WS+3}], s{sU} offen{LF}
    buffer_load_dwordx4 {vr(R+4,4)}, v{T}, s[{S_WS}:{S_WS+3}], s{S_T+5} offen{LF}
    s_lshl_b32 s{sU}, s{S_RB}, 2
    s_add_u32 s{sU}, s{sU}, s{S_BW}
    s_mul_i32 s{sU}, s{sU}, {16*1792}
    s_add_u32 s{sU}, s{sU}, s{sWb}
    s_add_u32 s{sU}, s{sU}, 896
    s_add_u32 s{S_T+5}, s{sU}, {8*1792}
    """)
    tr_addr(T, 1792)
    a("s_waitcnt vmcnt(0)")
    tr_lds(T, R, LO)
    OSF = OPT.get('osf', '').replace('_', ' ')
    a(f"""
    s_waitcnt lgkmcnt(1)
    buffer_store_dwordx4 {vr(R,4)}, v{T+2}, s[{S_OUT}:{S_OUT+3}], s{sU} offen{OSF}
    s_waitcnt lgkmcnt(0)
    buffer_store_dwordx4 {vr(R+4,4)}, v{T+2}, s[{S_OUT}:{S_OUT+3}], s{S_T+5} offen{OSF}
    """)
    stamp(5)
    stamp_save(0, 6)
    outproj()

def outproj():
    T = 6
    vWr, vFa, vSt, vWl, vAd = 12, 13, 14, 207, 15
    ACC = 32; B0 = 48
    sO, sTodo, sNeed, sHh, sA, sOut = S_T, S_T + 1, S_T + 2, S_T + 3, S_T + 4, S_T + 5
    a(f"""
    v_lshrrev_b32 v{T+1}, 5, v0
    v_bfe_u32 v{T+2}, v0, 2, 2
    v_lshl_add_u32 v{vWr}, v{T+1}, 3, v{T+2}
    v_lshlrev_b32 v{vWr}, 7, v{vWr}
    v_lshrrev_b32 v{T+2}, 1, v{T+2}
    v_xor_b32 v{T+2}, s{S_NH}, v{T+2}
    v_lshl_add_u32 v{vWr}, v{T+2}, 6, v{vWr}
    v_and_b32 v{T+2}, 1, v0
    v_lshl_add_u32 v{vWr}, v{T+2}, 5, v{vWr}
    v_bfe_u32 v{T+2}, v0, 4, 1
    v_lshl_add_u32 v{vWr}, v{T+2}, 4, v{vWr}
    v_bfe_u32 v{T+2}, v0, 1, 1
    v_lshl_add_u32 v{vWr}, v{T+2}, 3, v{vWr}
    v_add_u32 v{vWr}, {WOL}, v{vWr}
    s_lshl_b32 s{sO}, s{S_RB}, 1
    s_add_u32 s{sO}, s{sO}, s{S_C}
    s_mul_i32 s{sOut}, s{sO}, {32*1792}
    s_add_u32 s{sOut}, s{sOut}, s{sWb}
    s_lshl_b32 s{sA}, s{S_NH}, 6
    s_add_u32 s{sOut}, s{sOut}, s{sA}
    s_lshl_b32 s{sA}, s{sO}, 11
    s_add_u32 s{sA}, s{sA}, {FO}
    v_lshlrev_b32 v{vFa}, 7, v0
    v_add_u32 v{vFa}, s{sA}, v{vFa}
    s_lshl_b32 s{sO}, s{sO}, 15
    s_add_u32 s{sO}, s{sO}, {OBUF}
    v_and_b32 v{T}, 31, v0
    v_mul_u32_u24 v{vSt}, 1792, v{T}
    v_lshl_add_u32 v{vSt}, v{T+1}, 5, v{vSt}
    s_mov_b32 s{sNeed}, 0xffff
    s_mov_b32 s{sTodo}, 0
    """)
    for k in range(16): a(f"v_mov_b32 v{ACC+k}, 0")
    a("s_setprio 0")
    lds_wait(vSyB, C_WU, 4, vSg, 4)
    lds_wait(vSyB, C_AH, int(OPT.get('ah', 13)), vSg, 16)
    stamp(0)
    LP = a.lab("Lop"); LR = a.lab("Lor"); LD_ = a.lab("Lod")
    W = [a.lab("Low") for _ in range(9)]
    a(f"""
    s_setprio 3
    s_mov_b32 s{S3}, 0
    {LP}:
    s_mov_b32 exec_hi, 0
    s_mov_b32 exec_lo, s{sNeed}
    buffer_load_dword v{T}, v{vFa}, s[{S_WS}:{S_WS+3}], 0 offen sc1
    s_add_u32 s{S3}, s{S3}, 1
    s_cmp_gt_u32 s{S3}, {SPIN_MAX}
    s_cbranch_scc1 {LD_}
    s_waitcnt vmcnt(0)
    v_cmp_eq_u32 vcc, s{S_NONCE}, v{T}
    s_mov_b64 exec, -1
    s_mov_b32 s{sTodo}, vcc_lo
    s_cmp_lg_u32 s{sTodo}, 0
    s_cbranch_scc1 {LR}
    s_sleep {OPT.get('osl', 2)}
    s_branch {LP}
    {LR}:
    s_andn2_b32 s{sNeed}, s{sNeed}, s{sTodo}
    """)
    for k in range(8):
        R = B0 + 16 * k
        if k: a(f"s_cmp_eq_u32 s{sTodo}, 0\ns_cbranch_scc1 {W[k]}")
        a(f"""
        s_ff1_i32_b32 s{sHh}, s{sTodo}
        s_bitset0_b32 s{sTodo}, s{sHh}
        s_lshl_b32 s{sA}, s{sHh}, 11
        s_add_u32 s{sA}, s{sA}, s{sO}
        s_mul_i32 s{sHh}, s{sHh}, {28*128}
        buffer_load_dwordx4 {vr(R,4)}, v{vWl}, s[{S_WS}:{S_WS+3}], s{sA} offen{LF}
        buffer_load_dwordx4 {vr(R+4,4)}, v{vWl}, s[{S_WS}:{S_WS+3}], s{sA} offen offset:1024{LF}
        v_add_u32 v{vAd}, s{sHh}, v{vWr}
        """)
        for f in range(2):
            for i2 in range(2): a(f"ds_read_b64_tr_b16 {vr(R+8+4*f+2*i2,2)}, v{vAd} offset:{(16*f+4*i2)*128}")
    for k in range(8, 0, -1):
        R = B0 + 16 * (k - 1)
        a(f"""
        {W[k]}:
        s_waitcnt vmcnt(0) lgkmcnt(0)
        {MFMA} {vr(ACC,16)}, {vr(R+8,4)}, {vr(R,4)}, {vr(ACC,16)}
        {MFMA} {vr(ACC,16)}, {vr(R+12,4)}, {vr(R+4,4)}, {vr(ACC,16)}
        """)
    a(f"""
    s_cmp_lg_u32 s{sTodo}, 0
    s_cbranch_scc1 {LR}
    s_cmp_lg_u32 s{sNeed}, 0
    s_cbranch_scc1 {LP}
    {LD_}:
    s_mov_b64 exec, -1
    s_nop 7
    """)
    stamp(1)
    OSF = OPT.get('osf', '').replace('_', ' ')
    for k in range(8): a(f"v_cvt_pk_bf16_f32 v{ACC+k}, v{ACC+2*k}, v{ACC+2*k+1}")
    a(f"buffer_store_dwordx4 {vr(ACC,4)}, v{vSt}, s[{S_OUT}:{S_OUT+3}], s{sOut} offen{OSF}")
    a(f"buffer_store_dwordx4 {vr(ACC+4,4)}, v{vSt}, s[{S_OUT}:{S_OUT+3}], s{sOut} offen offset:16{OSF}")
    if STAMPS: a("s_waitcnt vmcnt(0)")
    stamp(2)
    stamp_save(1, 3)
    stamp_flush()
    a("s_endpgm")
```

```python
import sys
from base import *
import rolea, roleb
rolea.prologue()
rolea.gemm()
rolea.attention()
roleb.role_b()
rolea.idle()
a("L_end:\ns_endpgm")
HDR = open('concat_heads__mha_block__ssm_conv_s4d__prompt.s.ref').read().split("; Override launch")[0]
out = HDR + "; @launch grid=(256,1,1) block=(512,1,1) lds=163840\n" + '.amdgcn_target "amdgcn-amd-amdhsa--gfx950"\n'
out += f""".text
.globl {KN}
.p2align 8
.type {KN},@function
{KN}:
""" + a.text() + f""".section .rodata,"a"
.p2align 6
.amdhsa_kernel {KN}
  .amdhsa_next_free_vgpr 256
  .amdhsa_next_free_sgpr 102
  .amdhsa_accum_offset 256
  .amdhsa_group_segment_fixed_size 0
  .amdhsa_kernarg_size 104
  .amdhsa_user_sgpr_count 2
  .amdhsa_user_sgpr_kernarg_segment_ptr 1
  .amdhsa_system_sgpr_workgroup_id_x 1
.end_amdhsa_kernel
"""
open(sys.argv[1], "w").write(out)
```

```python
import sys, math, struct
STAMPS = '--stamps' in sys.argv
OPT = dict(x.split('=') for x in sys.argv[2:] if '=' in x)
CS = (28 ** -0.5) * math.log2(math.e)
LOG2E = math.log2(math.e)
KN = "concat_heads__mha_block__ssm_conv_s4d__prompt_kernel"

class Asm:
    def __init__(self): self.lines = []; self.uid = 0
    def __call__(self, s):
        for l in s.split("\n"):
            l = l.strip()
            if not l: continue
            self.lines.append(l if (l.endswith(":") and " " not in l) else "    " + l)
    def lab(self, p="L"):
        self.uid += 1
        return f"{p}_{self.uid}"
    def text(self): return "\n".join(self.lines) + "\n"
a = Asm()
def vr(r, n=1): return f"v{r}" if n == 1 else f"v[{r}:{r+n-1}]"
def sr(r, n=1): return f"s{r}" if n == 1 else f"s[{r}:{r+n-1}]"
def f32(x): return hex(struct.unpack("<I", struct.pack("<f", x))[0])
MFMA = "v_mfma_f32_32x32x16_bf16"

QBUF, KBUF, VBUF, OBUF, UTB, YTB, FLG, STAMP = 0, 0x200000, 0x400000, 0x5E0000, 0x800000, 0xA00000, 0xC00000, 0xF00000
WS_SIZE = 0x1000000
TILEB = 28672
UROW = 4224
F1 = FLG
FU = FLG + 0x1C000
FY = FU + 0x7000
FO = FY + 0x7000
FH = FO + 0x20000
KA_X, KA_WQKV, KA_WO, KA_U, KA_LOGA, KA_AIM, KA_CR, KA_CI, KA_LOGDT, KA_DSKIP, KA_OUT, KA_DBG, KA_WS = [8 * i for i in range(13)]

S3 = 3
S_WS, S_X, S_W, S_WO, S_U, S_OUT, S_DBG, S_KV = 4, 8, 12, 16, 20, 24, 28, 32
S_WAVE, S_J, S_RB, S_H, S_B, S_I, S_BW, S_C, S_NH, S_PRIV, S_NONCE, sD, sLD, sDS = range(36, 50)
S_T = 50
S_KA = 64
XO = [76 + i for i in range(7)]; WO_ = [83 + i for i in range(7)]
sM, sMB, sRot, sXb, sWb, sF1 = 90, 91, 92, 93, 94, 95
def kp(off): return f"s[{S_KA + off//4}:{S_KA + off//4 + 1}]"

PRIVB = 8704
SP = 1568
KPLB = 4 * SP
KPLL = 0
PRIV0 = 2 * KPLB
RING = PRIV0 + 4 * PRIVB
XCH = RING
WOL = RING + 49152
SYNC = RING + 114688
C_GD, C_PAIR, C_WU, C_PY, C_WY = 0, 16, 32, 36, 40
SF = " sc1"
LF = " sc1"
SPIN_MAX = 50000

VST = 253
def stamp(idx):
    if STAMPS: a(f"{'s_memtime' if OPT.get('cyc') else 's_memrealtime'} s[{64+2*idx}:{65+2*idx}]")
def stamp_save(bank, n):
    if not STAMPS: return
    a("s_waitcnt lgkmcnt(0)")
    for i in range(n): a(f"v_writelane_b32 v{VST}, s{64+2*i}, {bank*6+i}")
def stamp_flush():
    if not STAMPS: return
    a(f"s_lshl_b32 s62, s2, 3\ns_add_u32 s62, s62, s{S_WAVE}\ns_lshl_b32 s62, s62, 8\ns_add_u32 s62, s62, {STAMP}")
    a(f"v_lshlrev_b32 v254, 2, v0\nbuffer_store_dword v{VST}, v254, s[{S_WS}:{S_WS+3}], s62 offen")

class Q:
    def __init__(self, cap): self.q = []; self.cap = cap
    def issue(self, tag): self.q.append(tag)
    def wait_for(self, tag):
        idx = max(i for i, t in enumerate(self.q) if t == tag)
        return min(len(self.q) - 1 - idx, self.cap)

def srd(dst, ka_off, size):
    src = S_KA + ka_off // 4
    a(f"s_mov_b32 s{dst}, s{src}\ns_mov_b32 s{dst+1}, s{src+1}\ns_mov_b32 s{dst+2}, {size}\ns_mov_b32 s{dst+3}, 0x00020000")

def load_nonce(vT): return f"buffer_load_dword v{vT}, off, s[{S_DBG}:{S_DBG+3}], 0 sc1"
def get_nonce(vT, cnt=0):
    L = a.lab("Lnon"); D = a.lab("Lnon")
    a(f"""
    s_mov_b32 s{S3}, 0
    s_waitcnt vmcnt({cnt})
    {L}:
    v_readfirstlane_b32 s{S_NONCE}, v{vT}
    s_add_u32 s{S3}, s{S3}, 1
    s_cmp_lg_u32 s{S_NONCE}, 0
    s_cbranch_scc1 {D}
    s_cmp_gt_u32 s{S3}, {SPIN_MAX}
    s_cbranch_scc1 {D}
    s_sleep 8
    {load_nonce(vT)}
    s_waitcnt vmcnt(0)
    s_branch {L}
    {D}:
    """)

def poll(vA, vT, sleep, few=6):
    L = a.lab("Lpoll"); D = a.lab("Lpoll")
    a(f"""
    s_mov_b32 s{S3}, 0
    {L}:
    buffer_load_dword v{vT}, v{vA}, s[{S_WS}:{S_WS+3}], 0 offen sc1
    s_add_u32 s{S3}, s{S3}, 1
    s_cmp_gt_u32 s{S3}, {SPIN_MAX}
    s_cbranch_scc1 {D}
    s_waitcnt vmcnt(0)
    v_cmp_ne_u32 vcc, s{S_NONCE}, v{vT}
    s_cbranch_vccz {D}
    s_mov_b64 exec, vcc
    s_bcnt1_i32_b64 s{S_T+13}, vcc
    s_cmp_le_u32 s{S_T+13}, {few}
    s_cbranch_scc1 {L}
    s_sleep {sleep}
    s_branch {L}
    {D}:
    s_mov_b64 exec, -1
    """)

def publish(sOff, vT):
    a(f"""
    v_mov_b32 v{vT}, s{S_NONCE}
    s_waitcnt vmcnt(0)
    s_mov_b64 exec, 1
    buffer_store_dword v{vT}, off, s[{S_WS}:{S_WS+3}], s{sOff} sc1
    s_mov_b64 exec, -1
    """)

def lds_wait(vaddr, off, k, vT, sleep=0):
    L = a.lab("Lpw"); D = a.lab("Lpw")
    a(f"""
    {L}:
    ds_read_b32 v{vT}, v{vaddr} offset:{off}
    s_waitcnt lgkmcnt(0)
    v_readfirstlane_b32 s{S3}, v{vT}
    s_cmp_ge_u32 s{S3}, {k}
    s_cbranch_scc1 {D}
    {f"s_sleep {sleep}" if sleep else ""}
    s_branch {L}
    {D}:
    """)

def group_publish(cnt, sOff, sLast, vSy, vT):
    L = a.lab("Lgp")
    a(f"""
    v_mov_b32 v{vT}, 1
    s_waitcnt vmcnt(0)
    s_mov_b64 exec, 1
    ds_add_rtn_u32 v{vT}, v{vSy}, v{vT} offset:{cnt}
    v_mov_b32 v{vT+1}, s{S_NONCE}
    s_waitcnt lgkmcnt(0)
    v_readfirstlane_b32 s{sLast}, v{vT}
    s_cmp_lg_u32 s{sLast}, 3
    s_cbranch_scc1 {L}
    buffer_store_dword v{vT+1}, off, s[{S_WS}:{S_WS+3}], s{sOff} sc1
    {L}:
    s_mov_b64 exec, -1
    """)

def group_wait(word, sSel, sel, vFa, vSy, vT, sleep):
    L = a.lab("Lgw"); D = a.lab("Lgw")
    a(f"s_cmp_lg_u32 s{sSel}, {sel}\ns_cbranch_scc1 {L}\ns_mov_b32 exec_hi, 0")
    poll(vFa, vT, sleep, 0)
    a(f"""
    v_mov_b32 v{vT}, 1
    s_mov_b64 exec, 1
    ds_write_b32 v{vSy}, v{vT} offset:{word}
    s_mov_b64 exec, -1
    s_branch {D}
    {L}:
    """)
    lds_wait(vSy, word, 1, vT, 3)
    a(f"{D}:")

stream = []
for c in range(7): stream += [("x", c), ("k", c), ("v", c)]
stream += [("q", c) for c in range(7)]
sizes = [3] * 7 + [2, 2, 2, 1]
NS = len(sizes)
first = [sum(sizes[:i]) for i in range(NS + 1)]
slot_of = {n: s for s in range(NS) for n in range(first[s], first[s + 1])}
NA = int(OPT.get('na', 3))
vXa, vXb, vWa, vWb = 2, 3, 4, 5
def dma(n):
    kind, c = stream[n]
    base = RING + (n % 14) * 8192
    secoff = dict(k=896, v=1792)
    ins = []
    for half in range(2):
        blk = [f"s_add_u32 m0, s{sM}, {base + half * 1024}"]
        if kind == "x":
            blk += ["s_nop 0", f"buffer_load_dwordx4 v{vXa if half == 0 else vXb}, s[{S_X}:{S_X+3}], s{XO[c]} offen lds"]
        elif kind == "q":
            blk += ["s_nop 0", f"buffer_load_dwordx4 v{vWa if half == 0 else vWb}, s[{S_W}:{S_W+3}], s{WO_[c]} offen lds"]
        else:
            blk += [f"s_add_u32 s{sMB}, s{WO_[c]}, {secoff[kind]}" if half == 0 else "s_nop 0",
                    f"buffer_load_dwordx4 v{vWa if half == 0 else vWb}, s[{S_W}:{S_W+3}], s{sMB} offen lds"]
        ins.append("\n".join(blk))
    return ins
def offsets(c):
    a(f"""
    s_lshl_b32 s{XO[c]}, s{sRot}, 7
    s_add_u32 s{XO[c]}, s{XO[c]}, s{sXb}
    s_mul_i32 s{WO_[c]}, s{sRot}, {64*2688}
    s_add_u32 s{WO_[c]}, s{WO_[c]}, s{sWb}
    s_add_u32 s{sRot}, s{sRot}, 1
    s_cmp_eq_u32 s{sRot}, 7
    s_cselect_b32 s{sRot}, 0, s{sRot}
    """)

def touch(v):
    a(f"""
    v_min_u32 v{v}, 6, v0
    v_cmp_eq_u32 vcc, 3, v{v}
    v_lshlrev_b32 v{v}, 21, v{v}
    v_add_u32 v{v}, 0x1d0000, v{v}
    v_add_u32 v{v+1}, 0x20000, v{v}
    v_cndmask_b32 v{v}, v{v}, v{v+1}, vcc
    buffer_load_dword v{v+1}, v{v}, s[{S_WS}:{S_WS+3}], 0 offen sc1
    buffer_load_dword v{v+2}, off, s[{S_DBG}:{S_DBG+3}], 0 offset:128 sc1
    v_and_b32 v{v}, 1, v0
    v_lshlrev_b32 v{v}, 21, v{v}
    buffer_load_dword v{v+3}, v{v}, s[{S_OUT}:{S_OUT+3}], 0 offen sc1
    buffer_load_dword v{v+4}, off, s[{S_WO}:{S_WO+3}], 0
    """)
```

```python
from base import *
C_AX, C_AH = 44, 48

def prologue():
    T = S_T
    if STAMPS: a("s_memrealtime s[96:97]")
    a(f"""
    s_cmp_ge_u32 s2, 256
    s_cbranch_scc1 L_end
    s_load_dwordx16 s[{S_KA}:{S_KA+15}], s[0:1], 0
    s_load_dwordx8 s[{S_KA+16}:{S_KA+23}], s[0:1], 64
    s_load_dwordx2 s[{S_KA+24}:{S_KA+25}], s[0:1], 96
    v_lshrrev_b32 v1, 6, v0
    s_and_b32 s{T}, s2, 7
    s_lshr_b32 s{S_I}, s2, 3
    s_add_u32 s{S_I}, s{S_I}, 28
    s_and_b32 s{S_I}, s{S_I}, 31
    v_readfirstlane_b32 s{S_WAVE}, v1
    v_and_b32 v0, 63, v0
    {'v_mov_b32 v253, -1' if STAMPS else ''}
    s_and_b32 s{T+2}, s{S_I}, 1
    s_lshl_b32 s{S_H}, s{T}, 1
    s_add_u32 s{S_H}, s{S_H}, s{T+2}
    s_lshr_b32 s{S_B}, s2, 4
    v_lshlrev_b32 v6, 2, v0
    v_add_u32 v7, {SYNC}, v6
    v_mov_b32 v8, 0
    ds_write_b32 v7, v8
    s_cmp_ge_u32 s{S_I}, 28
    s_cbranch_scc1 L_idle
    s_and_b32 s{T+2}, s{T}, 1
    s_mul_i32 s{T+2}, s{T+2}, 28
    s_add_u32 s{T+2}, s{T+2}, s{S_I}
    s_lshr_b32 s{S_J}, s{T+2}, 3
    s_and_b32 s{T+2}, s{T+2}, 7
    s_lshr_b32 s{S_RB}, s{T}, 1
    s_lshl_b32 s{S_RB}, s{S_RB}, 3
    s_add_u32 s{S_RB}, s{S_RB}, s{T+2}
    s_and_b32 s{S_BW}, s{S_WAVE}, 3
    s_lshr_b32 s{S_C}, s{S_BW}, 1
    s_and_b32 s{S_NH}, s{S_BW}, 1
    s_lshl_b32 s{sD}, s{S_J}, 5
    s_add_u32 s{sD}, s{sD}, s{S_RB}
    s_lshl_b32 s{sD}, s{sD}, 2
    s_add_u32 s{T+3}, s{sD}, s{S_BW}
    s_lshl_b32 s{T+3}, s{T+3}, 8
    v_add_u32 v6, s{T+3}, v6
    v_lshrrev_b32 v14, 3, v0
    v_and_b32 v15, 7, v0
    s_lshl_b32 s{sM}, s{S_BW}, 4
    v_add_u32 v1, s{sM}, v14
    v_lshrrev_b32 v14, 1, v14
    v_xor_b32 v{vXa}, v15, v14
    v_lshlrev_b32 v{vXa}, 4, v{vXa}
    v_mul_u32_u24 v{vXb}, 896, v1
    v_add_u32 v{vXa}, v{vXa}, v{vXb}
    v_xor_b32 v{vXb}, 64, v{vXa}
    v_add_u32 v{vXb}, {8*896}, v{vXb}
    v_and_b32 v14, 1, v14
    v_lshlrev_b32 v14, 2, v14
    v_xor_b32 v14, v15, v14
    v_lshlrev_b32 v14, 4, v14
    v_mul_u32_u24 v{vWa}, 2688, v1
    v_add_u32 v{vWa}, v{vWa}, v14
    v_add_u32 v{vWb}, {8*2688}, v{vWa}
    s_lshl_b32 s{sM}, s{S_BW}, 11
    s_lshl_b32 s{sMB}, s{S_J}, 1
    s_add_u32 s{sRot}, s{T+2}, s{sMB}
    s_mul_i32 s{sMB}, s{sRot}, 37
    s_lshr_b32 s{sMB}, s{sMB}, 8
    s_mul_i32 s{sMB}, s{sMB}, 7
    s_sub_u32 s{sRot}, s{sRot}, s{sMB}
    s_mul_i32 s{sXb}, s{S_RB}, {64*896}
    s_lshl_b32 s{sWb}, s{S_J}, 7
    s_cmp_ge_u32 s{S_WAVE}, 4
    s_cbranch_scc1 L_B
    """)

def gemm():
    vXr = [6, 7, 8, 9]; vXh = [245, 246, 247, 248]
    vWlo, vWhi, vKst, vVst = 10, 11, 12, 13
    vT0, vT1, vT2 = 14, 15, 1
    XF, WF = 16, 128
    ACC = dict(k=192, v=208, q=224)
    vSy, vOne, vNon = 240, 241, 243
    sKst, sVst, sV2, sQst, sCS, sA, sB_ = [S_T + i for i in range(7)]
    a("s_setprio 2\ns_waitcnt lgkmcnt(0)")
    srd(S_X, KA_X, 1835008); srd(S_W, KA_WQKV, 1204224); srd(S_WS, KA_WS, WS_SIZE); srd(S_DBG, KA_DBG, 256)
    stamp(0)
    vm = Q(63); lg = Q(15)
    for c in range(NA):
        offsets(c)
        if c == 0: a("s_barrier")
        for n in range(first[c], first[c + 1]):
            for t in dma(n): a(t); vm.issue(("d", c))
        if c == 0:
            a(f"""
            v_and_b32 v{vT0}, 31, v0
            v_lshrrev_b32 v{vT1}, 5, v0
            v_lshrrev_b32 v{vT2}, 1, v{vT0}
            v_and_b32 v{vT2}, 7, v{vT2}
            v_xor_b32 v{vT2}, v{vT2}, v{vT1}
            v_lshlrev_b32 v{vT2}, 4, v{vT2}
            v_lshl_add_u32 v{vXr[0]}, v{vT0}, 7, v{vT2}
            s_lshl_b32 s{sA}, s{S_C}, 12
            v_xor_b32 v{vXr[1]}, 32, v{vXr[0]}
            v_xor_b32 v{vXr[2]}, 64, v{vXr[0]}
            v_xor_b32 v{vXr[3]}, 96, v{vXr[0]}
            s_add_u32 s{sA}, s{sA}, {RING}
            v_add_u32 v{vXr[0]}, s{sA}, v{vXr[0]}
            v_add_u32 v{vXr[1]}, s{sA}, v{vXr[1]}
            v_add_u32 v{vXr[2]}, s{sA}, v{vXr[2]}
            v_add_u32 v{vXr[3]}, s{sA}, v{vXr[3]}
            v_add_u32 v{vXh[0]}, 0x10000, v{vXr[0]}
            v_add_u32 v{vXh[1]}, 0x10000, v{vXr[1]}
            v_add_u32 v{vXh[2]}, 0x10000, v{vXr[2]}
            v_add_u32 v{vXh[3]}, 0x10000, v{vXr[3]}
            v_bfe_u32 v{vT2}, v0, 2, 2
            v_lshl_add_u32 v{vWlo}, v{vT1}, 3, v{vT2}
            v_lshlrev_b32 v{vWlo}, 7, v{vWlo}
            v_lshrrev_b32 v{vT2}, 1, v{vT2}
            v_xor_b32 v{vT2}, s{S_NH}, v{vT2}
            v_lshl_add_u32 v{vWlo}, v{vT2}, 6, v{vWlo}
            v_bfe_u32 v{vT2}, v0, 4, 1
            v_lshl_add_u32 v{vWlo}, v{vT2}, 5, v{vWlo}
            v_and_b32 v{vT2}, 1, v0
            v_lshl_add_u32 v{vWlo}, v{vT2}, 4, v{vWlo}
            v_bfe_u32 v{vT2}, v0, 1, 1
            v_lshl_add_u32 v{vWlo}, v{vT2}, 3, v{vWlo}
            v_add_u32 v{vWlo}, {RING}, v{vWlo}
            v_add_u32 v{vWhi}, 0x10000, v{vWlo}
            """)
        if c == 1:
            a(f"""
            v_lshlrev_b32 v{vKst}, 4, v0
            v_and_b32 v{vVst}, 0x13, v{vT0}
            v_bfe_u32 v{vT2}, v{vT0}, 2, 1
            v_lshl_add_u32 v{vVst}, v{vT2}, 3, v{vVst}
            v_bfe_u32 v{vT2}, v{vT0}, 3, 1
            v_lshl_add_u32 v{vVst}, v{vT2}, 2, v{vVst}
            v_lshlrev_b32 v{vVst}, 4, v{vVst}
            v_mul_u32_u24 v{vT2}, 7168, v{vT1}
            v_add_u32 v{vVst}, v{vVst}, v{vT2}
            s_lshl_b32 s{sA}, s{S_RB}, 1
            s_add_u32 s{sA}, s{sA}, s{S_C}
            s_lshl_b32 s{sB_}, s{S_J}, 1
            s_add_u32 s{sB_}, s{sB_}, s{S_NH}
            s_lshl_b32 s{sF1}, s{sB_}, 6
            s_add_u32 s{sF1}, s{sF1}, s{sA}
            s_lshl_b32 s{sF1}, s{sF1}, 7
            s_add_u32 s{sF1}, s{sF1}, {F1}
            s_mul_i32 s{sA}, s{sA}, {TILEB}
            s_lshl_b32 s{sQst}, s{sB_}, 11
            s_add_u32 s{sQst}, s{sQst}, s{sA}
            s_add_u32 s{sKst}, s{sQst}, {KBUF}
            s_lshl_b32 s{sVst}, s{sB_}, 9
            s_add_u32 s{sVst}, s{sVst}, s{sA}
            s_add_u32 s{sVst}, s{sVst}, {VBUF}
            s_add_u32 s{sV2}, s{sVst}, 14336
            s_mov_b32 s{sCS}, {f32(CS)}
            v_mov_b32 v{vSy}, {SYNC}
            v_mov_b32 v{vOne}, 1
            """)
    def frags(s):
        w = [n for n in range(first[s], first[s + 1]) if stream[n][0] != "x"]
        if s < 7: return [(stream[n][0], stream[n][1], kp_, n) for kp_ in range(4) for n in w]
        return [(stream[n][0], stream[n][1], kp_, n) for n in w for kp_ in range(4)]
    def reads(s):
        buf = WF + (s % 2) * 32
        out = []
        for fi, (kind, c, k_, n) in enumerate(frags(s)):
            if kind == "k":
                off = ((n - 1) % 14) * 8192
                out.append(f"ds_read_b128 {vr(XF + (4 * c + k_) * 4, 4)}, v{(vXh if off >= 65536 else vXr)[k_]} offset:{off & 0xffff}")
            off = (n % 14) * 8192
            va = vWhi if off >= 65536 else vWlo
            for i2 in range(2):
                out.append(f"ds_read_b64_tr_b16 {vr(buf + fi * 4 + i2 * 2, 2)}, v{va} offset:{(off & 0xffff) + k_ * 2048 + i2 * 512}")
        return out
    def mfmas(s):
        buf = WF + (s % 2) * 32
        ins = []
        for fi, (kind, c, k_, n) in enumerate(frags(s)):
            acc = ACC[kind]
            w = vr(buf + fi * 4, 4); x = vr(XF + (4 * c + k_) * 4, 4)
            cc = "0" if (c == 0 and k_ == 0) else vr(acc, 16)
            ins.append(f"{MFMA} {vr(acc,16)}, {x}, {w}, {cc}" if kind == "v" else f"{MFMA} {vr(acc,16)}, {w}, {x}, {cc}")
        return ins
    def epi(kind):
        acc = ACC[kind]
        ins = []
        if kind == "k": ins += [f"v_mul_f32 v{acc+i}, s{sCS}, v{acc+i}" for i in range(16)]
        ins += [f"v_cvt_pk_bf16_f32 v{acc+i}, v{acc+2*i}, v{acc+2*i+1}" for i in range(8)]
        if kind == "v":
            ins.append(f"buffer_store_dwordx4 {vr(acc,4)}, v{vVst}, s[{S_WS}:{S_WS+3}], s{sVst} offen{SF}")
            ins.append(f"buffer_store_dwordx4 {vr(acc+4,4)}, v{vVst}, s[{S_WS}:{S_WS+3}], s{sV2} offen{SF}")
        else:
            so = sKst if kind == "k" else sQst
            ins.append(f"buffer_store_dwordx4 {vr(acc,4)}, v{vKst}, s[{S_WS}:{S_WS+3}], s{so} offen{SF}")
            ins.append(f"buffer_store_dwordx4 {vr(acc+4,4)}, v{vKst}, s[{S_WS}:{S_WS+3}], s{so} offen offset:1024{SF}")
        return ins
    SS = [int(x) for x in OPT.get('ss', '0,3,7,10').split(',')]
    for s in range(NS):
        a(f"; ---- slot {s}")
        a(f"s_waitcnt vmcnt({vm.wait_for(('d', s))}) lgkmcnt(0)" if s < NA else "s_waitcnt lgkmcnt(0)")
        a("s_barrier")
        if s in SS: stamp(1 + SS.index(s))
        m = mfmas(s - 1) if s >= 1 else []
        rd = reads(s)
        ep = []
        if s == 8: ep = epi("k")
        if s == 9: ep = epi("v")
        if s == 5: ep = [load_nonce(vNon)]
        if not m:
            for t in rd: a(t)
            continue
        n = len(m)
        gaps = [[] for _ in range(n)]
        for k, r in enumerate(rd): gaps[min(k // 3, n - 1)].append(r)
        for k, r in enumerate(ep): gaps[2 + k * (n - 2) // len(ep)].append(r)
        for k in range(n):
            a(m[k])
            for t in gaps[k]: a(t)
    a("s_waitcnt lgkmcnt(0)")
    for t in mfmas(NS - 1): a(t)
    a(f"""
    s_mov_b64 exec, 1
    ds_add_u32 v{vSy}, v{vOne} offset:{C_GD}
    s_mov_b64 exec, -1
    """)
    get_nonce(vNon, 4)
    a("s_nop 3")
    for t in epi("q"): a(t)
    publish(sF1, vT0)
    stamp(5)
    stamp_save(0, 6)

def attention():
    vKa, vVa, vVb = 2, 3, 4
    vT0, vT1, vT2, vL = 5, 6, 7, 1
    Qr, O, S, P = 8, 40, [104, 120], [136, 144]
    KB = [152 + 16 * i for i in range(4)]
    VB = [160 + 16 * i for i in range(4)]
    vSy, vOne = 216, 217
    sK, sCnt, sOst, sFl = S_T, S_T + 1, S_T + 2, S_T + 3
    sMask = S_T + 4
    sQ = [S_T + 6 + i for i in range(4)]
    sA, sB_ = S_T + 10, S_T + 11
    a(f"""
    L_attn:
    s_setprio 2
    s_mov_b32 s{S_KV}, s{S_WS}
    s_mov_b32 s{S_KV+1}, s{S_WS+1}
    s_mov_b32 s{S_KV+2}, {WS_SIZE}
    s_mov_b32 s{S_KV+3}, 0x00020000
    s_mul_i32 s{sA}, s{S_H}, 7
    s_lshr_b32 s{sA}, s{sA}, 1
    v_bfe_u32 v{vT0}, v0, 4, 1
    v_and_b32 v{vT1}, 15, v0
    s_lshl_b32 s{sB_}, s{S_WAVE}, 4
    v_add_u32 v{vT1}, s{sB_}, v{vT1}
    v_bfe_u32 v{vT2}, v0, 2, 1
    v_and_b32 v{vL}, 3, v0
    s_lshl_b32 s{sB_}, s{S_B}, 2
    v_add_u32 v{vL}, s{sB_}, v{vL}
    v_cmp_gt_u32 vcc, 32, v0
    s_add_u32 s{sB_}, s{sA}, 3
    s_lshr_b32 s{sB_}, s{sB_}, 2
    v_cndmask_b32 v{vT0}, v{vT2}, v{vT0}, vcc
    v_cndmask_b32 v{vT1}, v{vL}, v{vT1}, vcc
    s_lshr_b32 s{sCnt}, s{sA}, 2
    v_add_u32 v{vT0}, s{sCnt}, v{vT0}
    v_min_u32 v{vT0}, s{sB_}, v{vT0}
    v_lshl_add_u32 v{vT0}, v{vT0}, 6, v{vT1}
    v_lshlrev_b32 v{vT0}, 7, v{vT0}
    v_add_u32 v{vL}, {F1}, v{vT0}
    s_lshl_b32 s{sA}, s{sA}, 9
    v_lshlrev_b32 v{vKa}, 4, v0
    v_add_u32 v{vKa}, s{sA}, v{vKa}
    """)
    for q in range(4):
        a(f"""
        s_add_u32 s{sQ[q]}, s{S_WAVE}, {q+1}
        s_and_b32 s{sQ[q]}, s{sQ[q]}, 3
        s_lshl_b32 s{sA}, s{S_B}, 2
        s_add_u32 s{sQ[q]}, s{sQ[q]}, s{sA}
        s_mul_i32 s{sQ[q]}, s{sQ[q]}, {TILEB}
        """)
    a(f"""
    v_and_b32 v{vT0}, 31, v0
    v_lshrrev_b32 v{vT1}, 5, v0
    v_and_b32 v{vVa}, 0x13, v{vT0}
    v_bfe_u32 v{vT2}, v{vT0}, 2, 1
    v_lshl_add_u32 v{vVa}, v{vT2}, 3, v{vVa}
    v_bfe_u32 v{vT2}, v{vT0}, 3, 1
    v_lshl_add_u32 v{vVa}, v{vT2}, 2, v{vVa}
    v_lshlrev_b32 v{vVa}, 4, v{vVa}
    v_mul_u32_u24 v{vT2}, 7168, v{vT1}
    v_add_u32 v{vVa}, v{vVa}, v{vT2}
    s_mul_i32 s{sA}, s{S_H}, 448
    s_add_u32 s{sA}, s{sA}, {VBUF - KBUF}
    v_add_u32 v{vVa}, s{sA}, v{vVa}
    v_add_u32 v{vVb}, 14336, v{vVa}
    s_mul_i32 s{sK}, s{S_WAVE}, {16 * TILEB}
    s_add_u32 s{sK}, s{sK}, {KBUF}
    s_mov_b32 s{sMask}, 0x0fffffff
    s_mov_b32 s{sMask+1}, 0x0fffffff
    v_mov_b32 v{vT2}, 0x3f803f80
    v_cmp_eq_u32 vcc, 28, v{vT0}
    v_mov_b32 v{vSy}, {SYNC}
    v_mov_b32 v{vOne}, 1
    v_cndmask_b32 v{vT2}, 0, v{vT2}, vcc
    """)
    for b in range(4):
        for i in range(8): a(f"v_mov_b32 v{VB[b]+i}, v{vT2}")
    for i in range(64): a(f"v_mov_b32 v{O+i}, 0")
    for i in range(8): a(f"v_mov_b32 v{P[1]+i}, 0")
    for i in range(12, 16): a(f"v_mov_b32 v{S[1]+i}, 0")
    stamp(0)
    a("s_mov_b32 exec_hi, 0xff")
    poll(vL, vT0, int(OPT.get('psl', 6)), int(OPT.get('few', 8)))
    stamp(1)
    def ldK(b, so, srd_=S_KV):
        return (f"buffer_load_dwordx4 {vr(KB[b],4)}, v{vKa}, s[{srd_}:{srd_+3}], s{so} offen{LF}\n"
                f"buffer_load_dwordx4 {vr(KB[b]+4,4)}, v{vKa}, s[{srd_}:{srd_+3}], s{so} offen offset:1024{LF}")
    def ldV(b, so, srd_=S_KV):
        return (f"s_mov_b64 exec, s[{sMask}:{sMask+1}]\n"
                f"buffer_load_dwordx4 {vr(VB[b],4)}, v{vVa}, s[{srd_}:{srd_+3}], s{so} offen{LF}\n"
                f"buffer_load_dwordx4 {vr(VB[b]+4,4)}, v{vVb}, s[{srd_}:{srd_+3}], s{so} offen{LF}\n"
                f"s_mov_b64 exec, -1")
    def ldQ(q):
        a(f"buffer_load_dwordx4 {vr(Qr+8*q,4)}, v{vKa}, s[{S_WS}:{S_WS+3}], s{sQ[q]} offen{LF}")
        a(f"buffer_load_dwordx4 {vr(Qr+8*q+4,4)}, v{vKa}, s[{S_WS}:{S_WS+3}], s{sQ[q]} offen offset:1024{LF}")
    ldQ(0); a(ldK(0, sK))
    for q in (1, 2, 3): ldQ(q)
    for t in range(4):
        if t: a(ldK(t, sK))
        if t < 3:
            a(ldV(t, sK))
            a(f"s_add_u32 s{sK}, s{sK}, {TILEB}")
    def fixq(qs, n):
        lab = a.lab("Lqz"); lab2 = a.lab("Lqz")
        a(f"""
        s_bitcmp0_b32 s{S_H}, 0
        s_waitcnt vmcnt({n})
        s_cbranch_scc1 {lab}
        s_mov_b32 exec_hi, 0
        """)
        for q in qs: a(f"v_mov_b32 v{Qr+8*q}, 0\nv_mov_b32 v{Qr+8*q+1}, 0")
        a(f"s_branch {lab2}\n{lab}:\ns_mov_b32 exec_lo, 0")
        for q in qs: a(f"v_mov_b32 v{Qr+8*q+6}, 0\nv_mov_b32 v{Qr+8*q+7}, 0")
        a(f"{lab2}:\ns_mov_b64 exec, -1")
    fixq([0], 20)
    def qk(u):
        i, q = (u // 4) % 4, u % 4
        s = S[u % 2]
        return [f"{MFMA} {vr(s,16)}, {vr(KB[i],4)}, {vr(Qr+8*q,4)}, 0",
                f"{MFMA} {vr(s,16)}, {vr(KB[i]+4,4)}, {vr(Qr+8*q+4,4)}, {vr(s,16)}"]
    def pv(u):
        i, q = (u // 4) % 4, u % 4
        p = P[u % 2]; o = O + 16 * q
        return [f"{MFMA} {vr(o,16)}, {vr(VB[i],4)}, {vr(p,4)}, {vr(o,16)}",
                f"{MFMA} {vr(o,16)}, {vr(VB[i]+4,4)}, {vr(p+4,4)}, {vr(o,16)}"]
    a(f"s_waitcnt vmcnt(18)\ns_mov_b32 s{sCnt}, 0\ns_nop 1")
    stamp(2)
    for m in qk(0): a(m)
    fixq([1, 2, 3], 12)
    a("s_nop 3")
    loop = a.lab("Lattn")
    a(f".p2align 6\n{loop}:")
    cvt = lambda d, s_: f"v_cvt_pk_bf16_f32 v{d}, v{s_}, v{s_+1}"
    for u in range(16):
        i, q = u // 4, u % 4
        s = S[u % 2]; p = P[u % 2]; sp = S[(u + 1) % 2]; pp = P[(u + 1) % 2]
        m = pv(u - 1)[:1] + qk(u + 1) + pv(u - 1)[1:]
        extra = {k: [] for k in range(16)}
        if q == 0: extra[14].append("s_waitcnt vmcnt(10)")
        if q == 1: extra[5].append(ldV((i + 3) % 4, sK))
        if q == 3:
            extra[2].append("s_waitcnt vmcnt(10)")
            if i == 0: extra[0].append(f"s_cmp_eq_u32 s{sCnt}, 3\ns_cselect_b32 s{S_KV+2}, 0, s{S_KV+2}")
            extra[1].append(f"s_add_u32 s{sK}, s{sK}, {TILEB}")
            extra[5].append(ldK(i, sK))
        if u == 15:
            extra[9].append(f"s_add_u32 s{sCnt}, s{sCnt}, 1")
            extra[10].append(f"s_cmp_lt_u32 s{sCnt}, 4")
        if u == 6:
            extra[9].append(f"s_mov_b64 exec, 1\nds_add_u32 v{vSy}, v{vOne} offset:{C_AH}\ns_mov_b64 exec, -1")
        for g in range(4):
            a(m[g])
            if g == 0: a(cvt(pp + 6, sp + 12) + "\n" + cvt(pp + 7, sp + 14))
            else: a(cvt(p + 2 * g - 2, s + 4 * g - 4) + "\n" + cvt(p + 2 * g - 1, s + 4 * g - 2))
            for k in range(4 * g, 4 * g + 4):
                a(f"v_exp_f32 v{s+k}, v{s+k}")
                for l in extra[k]: a(l)
    a(f"s_cbranch_scc1 {loop}")
    a(pv(15)[0])
    a(cvt(P[1] + 6, S[1] + 12) + "\n" + cvt(P[1] + 7, S[1] + 14))
    a(f"v_lshlrev_b32 v{vT0}, 4, v0\ns_nop 0")
    a(pv(15)[1])
    stamp(3)
    for q in range(3):
        a(f"""
        s_add_u32 s{sA}, s{S_WAVE}, {q+1}
        s_and_b32 s{sA}, s{sA}, 3
        s_mul_i32 s{sA}, s{sA}, 12288
        v_add_u32 v{vT1}, s{sA}, v{vT0}
        """)
        for k in range(4): a(f"ds_write_b128 v{vT1}, {vr(O+16*q+4*k,4)} offset:{XCH + q*4096 + k*1024}")
    a(f"""
    s_mov_b64 exec, 1
    ds_add_u32 v{vSy}, v{vOne} offset:{C_AX}
    s_mov_b64 exec, -1
    s_mul_i32 s{sA}, s{S_WAVE}, 12288
    v_add_u32 v{vT1}, s{sA}, v{vT0}
    s_lshl_b32 s{sOst}, s{S_B}, 2
    s_add_u32 s{sOst}, s{sOst}, s{S_WAVE}
    s_lshl_b32 s{sOst}, s{sOst}, 4
    s_add_u32 s{sOst}, s{sOst}, s{S_H}
    s_lshl_b32 s{sFl}, s{sOst}, 7
    s_add_u32 s{sFl}, s{sFl}, {FO}
    s_lshl_b32 s{sOst}, s{sOst}, 11
    s_add_u32 s{sOst}, s{sOst}, {OBUF}
    """)
    lds_wait(vSy, C_AX, 4, vT2)
    for q in range(3):
        for k in range(4): a(f"ds_read_b128 {vr(O+16*q+4*k,4)}, v{vT1} offset:{XCH + q*4096 + k*1024}")
    F = O + 48
    stamp(4)
    for q in range(3):
        a(f"s_waitcnt lgkmcnt({8 - 4*q})")
        for k in range(0, 16, 2): a(f"v_pk_add_f32 {vr(F+k,2)}, {vr(F+k,2)}, {vr(O+16*q+k,2)}")
    a(f"""
    L_norm:
    v_mov_b32 v{vT1}, v{F+12}
    v_mov_b32 v{vL}, v{F+12}
    s_mov_b32 s{sA}, {f32(2.0**-40)}
    s_mov_b32 s{sB_}, {f32(2.0**40)}
    v_permlane32_swap_b32 v{vT1}, v{vL}
    s_nop 0
    v_rcp_f32 v{vT1}, v{vL}
    v_cmp_nle_f32 vcc, s{sA}, v{vL}
    v_cmp_nge_f32 s[{sQ[0]}:{sQ[0]+1}], s{sB_}, v{vL}
    s_or_b64 vcc, vcc, s[{sQ[0]}:{sQ[0]+1}]
    s_cbranch_vccnz L_slow
    L_norm2:
    v_cmp_gt_u32 vcc, 32, v0
    s_nop 1
    v_cndmask_b32 v{vT2}, 0, v{vT1}, vcc
    """)
    for k in range(16): a(f"v_mul_f32 v{F+k}, v{F+k}, v{vT1 if k < 12 else vT2}")
    for k in range(8): a(f"v_cvt_pk_bf16_f32 v{O+k}, v{F+2*k}, v{F+2*k+1}")
    a(f"buffer_store_dwordx4 {vr(O,4)}, v{vT0}, s[{S_WS}:{S_WS+3}], s{sOst} offen{SF}")
    a(f"buffer_store_dwordx4 {vr(O+4,4)}, v{vT0}, s[{S_WS}:{S_WS+3}], s{sOst} offen offset:1024{SF}")
    publish(sFl, vT2)
    stamp(5)
    stamp_save(1, 6)
    stamp_flush('A')
    a("s_endpgm")
    s0 = S[0]; p0 = P[0]; Q3 = Qr + 24; vM = O
    l1 = a.lab("Lsl"); l2 = a.lab("Lsl")
    qk3 = (f"{MFMA} {vr(s0,16)}, {vr(KB[0],4)}, {vr(Q3,4)}, 0\n"
           f"{MFMA} {vr(s0,16)}, {vr(KB[0]+4,4)}, {vr(Q3+4,4)}, {vr(s0,16)}\ns_nop 15")
    a(f"""
    L_slow:
    s_cmp_eq_u32 s{sCnt}, 99
    s_cbranch_scc1 L_norm2
    s_mov_b32 s{sK}, {KBUF}
    v_mov_b32 v{vM}, 0xff800000
    {l1}:
    {ldK(0, sK, S_WS)}
    s_waitcnt vmcnt(0)
    {qk3}
    """)
    for k in range(0, 16, 2): a(f"v_max3_f32 v{vM}, v{s0+k}, v{s0+k+1}, v{vM}")
    a(f"""
    s_add_u32 s{sK}, s{sK}, {TILEB}
    s_cmp_lt_u32 s{sK}, {KBUF + 64 * TILEB}
    s_cbranch_scc1 {l1}
    v_mov_b32 v{vM+1}, v{vM}
    s_nop 1
    v_permlane32_swap_b32 v{vM}, v{vM+1}
    s_nop 1
    v_max_f32 v{vM}, v{vM}, v{vM+1}
    s_mov_b32 s{sK}, {KBUF}
    """)
    for k in range(16): a(f"v_mov_b32 v{F+k}, 0")
    a(f"""
    {l2}:
    {ldK(0, sK, S_WS)}
    {ldV(0, sK, S_WS)}
    s_waitcnt vmcnt(0)
    {qk3}
    """)
    for k in range(16): a(f"v_sub_f32 v{s0+k}, v{s0+k}, v{vM}")
    for k in range(16): a(f"v_exp_f32 v{s0+k}, v{s0+k}")
    a("s_nop 0")
    for k in range(8): a(cvt(p0 + k, s0 + 2 * k))
    a(f"""
    s_nop 1
    {MFMA} {vr(F,16)}, {vr(VB[0],4)}, {vr(p0,4)}, {vr(F,16)}
    {MFMA} {vr(F,16)}, {vr(VB[0]+4,4)}, {vr(p0+4,4)}, {vr(F,16)}
    s_add_u32 s{sK}, s{sK}, {TILEB}
    s_cmp_lt_u32 s{sK}, {KBUF + 64 * TILEB}
    s_cbranch_scc1 {l2}
    s_mov_b32 s{sCnt}, 99
    s_nop 15
    s_branch L_norm
    """)

def idle():
    l7 = a.lab("Lw7")
    a(f"""
    L_idle:
    s_cmp_ge_u32 s{S_WAVE}, 4
    s_cbranch_scc1 {l7}
    s_lshl_b32 s{S_T+5}, s2, 7
    s_add_u32 s{S_T+5}, s{S_T+5}, {FH}
    v_mov_b32 v12, s{S_T+5}
    v_mov_b32 v13, 0
    s_waitcnt lgkmcnt(0)
    """)
    srd(S_WS, KA_WS, WS_SIZE); srd(S_DBG, KA_DBG, 256)
    a("s_barrier")
    get_nonce(13, 0)
    a("s_mov_b64 exec, 1")
    poll(12, 13, 8, 0)
    a(f"""
    s_branch L_attn
    {l7}:
    s_cmp_eq_u32 s{S_WAVE}, 6
    s_cbranch_scc1 L_touch
    s_cmp_lg_u32 s{S_WAVE}, 7
    s_cbranch_scc1 L_end
    s_getpc_b64 s[{S_T+4}:{S_T+5}]
    Lpc:
    s_sub_u32 s{S_T+4}, s{S_T+4}, Lpc-{KN}
    s_subb_u32 s{S_T+5}, s{S_T+5}, 0
    s_memrealtime s[{S_T+10}:{S_T+11}]
    v_lshlrev_b32 v2, 7, v0
    v_add_u32 v3, 8192, v2
    v_add_u32 v4, 16384, v2
    v_min_u32 v4, L_end-{KN}, v4
    s_waitcnt lgkmcnt(0)
    s_cmp_lg_u32 s2, 0
    s_cbranch_scc1 Lnn
    """)
    srd(S_DBG, KA_DBG, 256)
    a(f"""
    s_or_b32 s{S_T+10}, s{S_T+10}, 1
    v_mov_b32 v8, s{S_T+10}
    s_mov_b64 exec, 1
    buffer_store_dword v8, off, s[{S_DBG}:{S_DBG+3}], 0 sc1
    s_mov_b64 exec, -1
    Lnn:
    global_load_dword v12, v2, s[{S_T+4}:{S_T+5}]
    global_load_dword v13, v3, s[{S_T+4}:{S_T+5}]
    global_load_dword v14, v4, s[{S_T+4}:{S_T+5}]
    s_endpgm
    """)
    a("L_touch:\ns_waitcnt lgkmcnt(0)")
    if OPT.get('touch', '0') != '0':
        srd(S_WS, KA_WS, WS_SIZE); srd(S_DBG, KA_DBG, 256); srd(S_WO, KA_WO, 401408); srd(S_OUT, KA_OUT, 3670016)
        touch(2)
    a("s_endpgm")
```

```python
from base import *
from rolea import C_AH
vSg, vMy, vPa, vSyB = 200, 201, 202, 203
def pair_signal(k):
    a(f"v_mov_b32 v{vSg}, {k}\ns_mov_b64 exec, 1\nds_write_b32 v{vMy}, v{vSg}\ns_mov_b64 exec, -1")
def pair_wait(k): lds_wait(vPa, 0, k, vSg)

def cmul(d, x, y, pk):
    if pk:
        return [f"v_pk_mul_f32 {vr(d,2)}, {vr(x,2)}, {vr(y,2)} op_sel:[0,0] op_sel_hi:[1,0]",
                f"v_pk_fma_f32 {vr(d,2)}, {vr(x,2)}, {vr(y,2)}, {vr(d,2)} op_sel:[1,1,0] op_sel_hi:[0,1,1] neg_lo:[0,1,0]"]
    return [f"v_mul_f32 v{d}, v{x}, v{y}", f"v_mul_f32 v{d+1}, v{x+1}, v{y}",
            f"v_fma_f32 v{d}, -v{x+1}, v{y+1}, v{d}", f"v_fmac_f32 v{d+1}, v{x}, v{y+1}"]

RAW, PRM, vDT, vFA, KT = 12, 16, 20, 21, 22
def kgen_valu(it, P):
    E1, E2, E4, E8, E256, E16 = 28, 30, 32, 34, 36, 38
    X, Y, Z, W = 40, 42, 44, 46
    LA, AI, CR, CI = PRM, PRM + 1, PRM + 2, PRM + 3
    T = KT; vA_, vB_ = T, T + 1
    G = []
    def raw(txt):
        for l in txt.strip().split("\n"): G.append(lambda pk, l=l.strip(): [l])
    for k in range(4):
        raw(f"v_lshlrev_b32 v{PRM+k}, 16, v{RAW+k}" if it == 0 else f"v_and_b32 v{PRM+k}, 0xffff0000, v{RAW+k}")
    raw(f"""v_mul_f32 v{vA_}, {f32(LOG2E)}, v{LA}
    v_exp_f32 v{vA_}, v{vA_}
    v_mul_f32 v{vB_}, v{AI}, v{vDT}
    v_cvt_pk_bf16_f32 v{vA_}, v{vA_}, v{vA_}
    v_and_b32 v{vA_}, 0xffff0000, v{vA_}
    v_mul_f32 v{vA_}, v{vA_}, v{vDT}
    v_mul_f32 v{vA_}, {f32(-LOG2E)}, v{vA_}
    v_mul_f32 v{vB_}, 0.15915494, v{vB_}
    v_add_f32 v{T+2}, v{vDT}, v{vDT}
    v_mul_f32 v{X}, v{CR}, v{T+2}
    v_mul_f32 v{X+1}, v{CI}, v{T+2}""")
    for E, t in ((E1, 1.0), (E8, 8.0), (E256, 256.0)):
        raw(f"""v_mul_f32 v{T+2}, {f32(t)}, v{vA_}
        v_mul_f32 v{T+3}, {f32(t)}, v{vB_}
        v_exp_f32 v{T+2}, v{T+2}
        v_fract_f32 v{T+3}, v{T+3}
        v_cos_f32 v{E}, v{T+3}
        v_sin_f32 v{E+1}, v{T+3}
        v_mul_f32 v{E}, v{E}, v{T+2}
        v_mul_f32 v{E+1}, v{E+1}, v{T+2}""")
    wr = []; nxtp = [P]
    def put(src, rows, conj):
        t = nxtp[0]; nxtp[0] += 1
        raw(f"v_cvt_pk_bf16_f32 v{t}, v{src}, {'-' if conj else ''}v{src+1}")
        for r in rows: wr.append(f"ds_write_addtid_b32 v{t} offset:{r*272}")
    def cm(d, x, y): G.append(lambda pk: cmul(d, x, y, pk))
    rho = lambda v, h: 8 * (v >> 2) + 4 * h + (v & 3)
    cm(E2, E1, E1); cm(E4, E2, E2); cm(E16, E8, E8)
    cm(Z, X, E256)
    put(X, [rho(0, 0)], True)
    cur, nxt = X, Y
    for k in range(1, 8):
        cm(nxt, cur, E1); put(nxt, [rho(k, 0)], True)
        cur, nxt = nxt, cur
    rows1 = [[0, 1], [2], [3, 4, 5], [6], [7]]
    put(Z, [rho(v, 1) for v in rows1[0]], True)
    cur, nxt = Z, X
    for k in range(1, 5):
        cm(nxt, cur, E2); put(nxt, [rho(v, 1) for v in rows1[k]], True)
        cur, nxt = nxt, (Y if nxt == X else X)
    H, Hn = Z, W
    for B in (2, 3):
        cm(Hn, H, E256); H, Hn = Hn, H
        put(H, [rho(8, B & 1)], True)
        cm(X, H, E4); put(X, [rho(9, B & 1)], True)
        cm(Y, H, E8); put(Y, [rho(10, B & 1)], True)
    for B in (4, 5, 6, 7):
        v0_ = 11 if B < 6 else 13
        cm(Hn, H, E256); H, Hn = Hn, H
        put(H, [rho(v0_, B & 1)], True)
        cm(X, H, E8); put(X, [rho(v0_ + 1, B & 1)], True)
    roww = list(wr); wr.clear()
    wr.append(f"ds_write_addtid_b32 v{KT+5} offset:0")
    put(E8, [1], False); put(E16, [2], False)
    ch = {1: E8, 0: E16}; pool = {1: [X, Y], 0: [Z, W]}
    for j in range(3, 32):
        par = j & 1
        d = pool[par][0]; pool[par].reverse()
        cm(d, ch[par], E16); put(d, [j], False)
        ch[par] = d
    assert nxtp[0] == P + 58
    return G, roww, list(wr)

def tr_addr(T, dpitch):
    a(f"""
    v_lshlrev_b32 v{T}, 4, v0
    v_add_u32 v{T}, s{S_PRIV}, v{T}
    v_lshrrev_b32 v{T+2}, 4, v0
    v_and_b32 v{T+3}, 15, v0
    v_lshlrev_b32 v{T+1}, 9, v{T+2}
    v_lshl_add_u32 v{T+1}, v{T+3}, 3, v{T+1}
    v_add_u32 v{T+1}, s{S_PRIV}, v{T+1}
    v_mul_u32_u24 v{T+3}, 144, v{T+3}
    v_lshl_add_u32 v{T+3}, v{T+2}, 5, v{T+3}
    v_add_u32 v{T+3}, s{S_PRIV}, v{T+3}
    v_lshrrev_b32 v{T+2}, 3, v0
    v_mul_u32_u24 v{T+4}, 144, v{T+2}
    v_mul_u32_u24 v{T+2}, {dpitch}, v{T+2}
    v_and_b32 v{T+5}, 7, v0
    v_lshl_add_u32 v{T+4}, v{T+5}, 4, v{T+4}
    v_add_u32 v{T+4}, s{S_PRIV}, v{T+4}
    v_lshl_add_u32 v{T+2}, v{T+5}, 4, v{T+2}
    """)
def tr_lds(T, R, LO):
    a(f"ds_write_b128 v{T}, {vr(R,4)} offset:{LO}\nds_write_b128 v{T}, {vr(R+4,4)} offset:{LO+1024}")
    for i in range(4): a(f"ds_read_b64_tr_b16 {vr(R+2*i,2)}, v{T+1} offset:{LO + i*128}")
    a(f"""
    s_waitcnt lgkmcnt(0)
    ds_write_b128 v{T+3}, {vr(R,4)} offset:{LO}
    ds_write_b128 v{T+3}, {vr(R+4,4)} offset:{LO+16}
    ds_read_b128 {vr(R,4)}, v{T+4} offset:{LO}
    ds_read_b128 {vr(R+4,4)}, v{T+4} offset:{LO+8*144}
    """)

def role_b():
    T = 6
    P = [48, 108]; AF = 216; CA = [216, 232]; ACC = 28
    vNon, vZ, vG, vWl, vFu, vAa, vXa_, vWw = 204, 205, 206, 207, 208, 209, 210, 211
    sU, sIt, sUw, sCh, sFl, sLast, sWin = S_T, S_T + 4, S_T + 7, S_T + 8, S_T + 9, S_T + 10, S_T + 11
    S1 = 4160
    UR = 168; UT_ = 176; LD = 184
    a(f"""
    L_B:
    v_lshrrev_b32 v7, 1, v0
    v_mul_u32_u24 v7, 896, v7
    v_and_b32 v8, 1, v0
    v_lshl_add_u32 v7, v8, 4, v7
    s_lshl_b32 s{S_T+5}, s{S_BW}, 5
    s_add_u32 s{S_T+5}, s{S_T+5}, s{sXb}
    s_add_u32 s{S_T+5}, s{S_T+5}, s{sWb}
    v_add_u32 v7, s{S_T+5}, v7
    v_add_u32 v8, {32*896}, v7
    s_waitcnt lgkmcnt(0)
    global_load_dword v{RAW}, v6, {kp(KA_LOGA)}
    global_load_dword v{RAW+1}, v6, {kp(KA_AIM)}
    global_load_dword v{RAW+2}, v6, {kp(KA_CR)}
    global_load_dword v{RAW+3}, v6, {kp(KA_CI)}
    global_load_dwordx4 {vr(UR,4)}, v7, {kp(KA_U)}
    global_load_dwordx4 {vr(UR+4,4)}, v8, {kp(KA_U)}
    s_load_dword s{sLD}, {kp(KA_LOGDT)}, s{sD}
    s_load_dword s{sDS}, {kp(KA_DSKIP)}, s{sD}
    s_barrier
    """)
    srd(S_X, KA_X, 1835008); srd(S_W, KA_WQKV, 1204224); srd(S_DBG, KA_DBG, 256)
    srd(S_WS, KA_WS, WS_SIZE); srd(S_WO, KA_WO, 401408); srd(S_OUT, KA_OUT, 3670016)
    for c in range(7): offsets(c)
    a(f"""
    s_mul_i32 s{S_PRIV}, s{S_BW}, {PRIVB}
    s_add_u32 s{S_PRIV}, s{S_PRIV}, {PRIV0}
    s_lshl_b32 s{S_T+6}, s{S_BW}, 2
    s_add_u32 s{S_T+6}, s{S_T+6}, {SYNC + C_PAIR}
    v_mov_b32 v{vMy}, s{S_T+6}
    v_xor_b32 v{vPa}, 4, v{vMy}
    v_mov_b32 v{vSyB}, {SYNC}
    s_mul_i32 s{sWin}, s{S_C}, {2*PRIVB}
    s_add_u32 s{sWin}, s{sWin}, {PRIV0}
    v_and_b32 v{T}, 3, v0
    v_bfe_u32 v{T+1}, v0, 3, 2
    v_lshl_add_u32 v{T}, v{T+1}, 2, v{T}
    v_bfe_u32 v{T+1}, v0, 2, 1
    v_lshl_add_u32 v{T}, v{T+1}, 4, v{T}
    v_lshrrev_b32 v{T+1}, 5, v0
    v_lshlrev_b32 v{T+2}, 3, v{T+1}
    v_sub_u32 v{T}, v{T}, v{T+2}
    v_add_u32 v{T}, 9, v{T}
    v_sub_u32 v{T+2}, 0, v{T}
    v_and_b32 v{T+2}, 3, v{T+2}
    v_add_lshl_u32 v{T}, v{T}, v{T+2}, 1
    v_mul_u32_u24 v{T+2}, {S1}, v{T+2}
    s_lshl_b32 s{S_T+5}, s{S_NH}, 10
    s_add_u32 s{S_T+5}, s{S_T+5}, s{sWin}
    v_add3_u32 v{vAa}, v{T}, v{T+2}, s{S_T+5}
    v_lshlrev_b32 v{vWl}, 4, v0
    s_lshl_b32 s{S_T+5}, s{S_NH}, 11
    s_add_u32 s{S_T+5}, s{S_T+5}, s{sWin}
    v_add_u32 v{vWw}, s{S_T+5}, v{vWl}
    v_and_b32 v{T}, 31, v0
    v_mul_u32_u24 v{vFA}, 272, v{T}
    v_lshl_add_u32 v{vFA}, v{T+1}, 4, v{vFA}
    v_add_u32 v{vFA}, s{S_PRIV}, v{vFA}
    v_lshlrev_b32 v{vFu}, 7, v{T}
    v_lshlrev_b32 v{T}, 4, v{T}
    v_mul_u32_u24 v{T+2}, {SP}, v{T+1}
    s_mul_i32 s{S_T+6}, s{S_C}, {KPLB}
    s_lshl_b32 s{S_T+5}, s{S_NH}, 8
    s_sub_u32 s{S_T+5}, s{S_T+6}, s{S_T+5}
    s_add_u32 s{S_T+5}, s{S_T+5}, {30*16}
    v_add3_u32 v{vXa_}, v{T}, v{T+2}, s{S_T+5}
    v_and_b32 v{T}, 3, v0
    v_mul_u32_u24 v{T}, {SP}, v{T}
    v_lshrrev_b32 v{T+1}, 2, v0
    v_lshl_add_u32 v{T}, v{T+1}, 4, v{T}
    v_add_u32 v{vG}, s{S_T+6}, v{T}
    v_lshrrev_b32 v{T}, 4, v0
    v_mul_u32_u24 v{T}, {S1}, v{T}
    v_and_b32 v{T+1}, 15, v0
    v_lshl_add_u32 v{T}, v{T+1}, 2, v{T}
    v_add_u32 v{vZ}, s{sWin}, v{T}
    s_lshr_b32 s{sCh}, s{sD}, 1
    s_add_u32 s{sCh}, s{sCh}, s{S_C}
    s_lshl_b32 s{S_T+5}, s{S_J}, 12
    s_add_u32 s{S_T+5}, s{S_T+5}, {FU}
    v_add_u32 v{vFu}, s{S_T+5}, v{vFu}
    s_mul_i32 s{sUw}, s{sCh}, {UROW}
    s_lshl_b32 s{S_T+5}, s{S_NH}, 11
    s_add_u32 s{sUw}, s{sUw}, s{S_T+5}
    s_add_u32 s{sUw}, s{sUw}, {UTB + 128 - 8}
    v_mov_b32 v{KT+5}, 0x3f80
    s_waitcnt lgkmcnt(0)
    s_lshl_b32 s{S3}, s{S_C}, 4
    s_lshr_b32 s{sLD}, s{sLD}, s{S3}
    s_lshl_b32 s{sLD}, s{sLD}, 16
    s_lshr_b32 s{sDS}, s{sDS}, s{S3}
    s_lshl_b32 s{sDS}, s{sDS}, 16
    v_mov_b32 v{KT}, {f32(LOG2E)}
    v_mul_f32 v{vDT}, s{sLD}, v{KT}
    v_exp_f32 v{vDT}, v{vDT}
    s_nop 0
    v_cvt_pk_bf16_f32 v{vDT}, v{vDT}, v{vDT}
    v_and_b32 v{vDT}, 0xffff0000, v{vDT}
    s_lshl_b32 s{sU}, s{S_J}, 2
    s_add_u32 s{sU}, s{sU}, s{S_BW}
    s_mul_i32 s{sU}, s{sU}, {16*UROW}
    s_lshl_b32 s{S_T+5}, s{S_RB}, 7
    s_add_u32 s{sU}, s{sU}, s{S_T+5}
    s_add_u32 s{sU}, s{sU}, {UTB + 128}
    s_add_u32 s{S_T+1}, s{sU}, {8*UROW}
    s_lshl_b32 s{sFl}, s{sD}, 5
    s_add_u32 s{sFl}, s{sFl}, {FU}
    """)
    tr_addr(UT_, UROW)
    a("s_waitcnt vmcnt(2)")
    stamp(0)
    G0, rw0, cw0 = kgen_valu(0, P[0]); G1, rw1, cw1 = kgen_valu(1, P[1])
    G = G0 + G1
    npre = int(len(G) * float(OPT.get('pre', 0.6)))
    n1 = int(len(G) * float(OPT.get('pre1', 0.15)))
    for g in G[:n1]:
        for t in g(True): a(t)
    a("s_waitcnt vmcnt(0)")
    tr_lds(UT_, UR, 0)
    for g in G[n1:npre]:
        for t in g(True): a(t)
    rest = G[npre:]
    lz = a.lab("Lz")
    a(f"""
    s_waitcnt lgkmcnt(0)
    buffer_store_dwordx4 {vr(UR,4)}, v{UT_+2}, s[{S_WS}:{S_WS+3}], s{sU} offen{SF}
    buffer_store_dwordx4 {vr(UR+4,4)}, v{UT_+2}, s[{S_WS}:{S_WS+3}], s{S_T+1} offen{SF}
    {load_nonce(vNon)}
    s_cmp_lg_u32 s{S_RB}, 0
    s_cbranch_scc1 {lz}
    v_mov_b32 v{LD}, 0
    v_mov_b32 v{LD+1}, 0
    v_mov_b32 v{LD+2}, 0
    v_mov_b32 v{LD+3}, 0
    s_sub_u32 s{sU}, s{sU}, 128
    s_sub_u32 s{S_T+1}, s{S_T+1}, 128
    buffer_store_dwordx4 {vr(LD,4)}, v{UT_+2}, s[{S_WS}:{S_WS+3}], s{sU} offen{SF}
    buffer_store_dwordx4 {vr(LD,4)}, v{UT_+2}, s[{S_WS}:{S_WS+3}], s{S_T+1} offen{SF}
    {lz}:
    """)
    if OPT.get('touch', '0') == '2':
        lt = a.lab("Lt")
        a(f"s_cmp_lg_u32 s{S_BW}, 1\ns_cbranch_scc1 {lt}")
        touch(248)
        a(f"{lt}:")
    stamp(1)
    vm = Q(63)
    nxt = first[NA]
    nsl = int(OPT.get('nsl', 7))
    PS, WSL = int(OPT.get('ps', 7)), int(OPT.get('wsl', 9))
    def wloads():
        for g in range(2):
            a(f"buffer_load_dwordx2 {vr(LD+8*g+2,2)}, v{vWl}, s[{S_WS}:{S_WS+3}], s{sUw} offen offset:{1024*g}{LF}")
            a(f"buffer_load_dwordx4 {vr(LD+8*g+4,4)}, v{vWl}, s[{S_WS}:{S_WS+3}], s{sUw} offen offset:{1024*g+8}{LF}")
    for s in range(NS):
        if s >= NA: a(f"s_waitcnt vmcnt({vm.wait_for(('d', s))})")
        a("s_barrier")
        if s == NA:
            get_nonce(vNon, 63)
            lp = a.lab("Lfu")
            a(f"""
            v_mov_b32 v{T}, s{S_NONCE}
            s_cmp_lg_u32 s{S_BW}, 0
            s_cbranch_scc1 {lp}
            s_mov_b64 exec, 1
            buffer_store_dword v{T}, off, s[{S_WS}:{S_WS+3}], s{sFl} sc1
            s_mov_b64 exec, -1
            {lp}:
            """)
        lim = min(28, 14 + first[s])
        while nxt < lim:
            for t in dma(nxt): a(t); vm.issue(("d", slot_of[nxt]))
            nxt += 1
        if s == PS:
            a(f"""
            s_mov_b32 exec_hi, 0
            s_bitcmp1_b32 s{S_NH}, 0
            s_cselect_b32 exec_lo, 0xffff8000, 0xffff
            buffer_load_dword v{T+1}, v{vFu}, s[{S_WS}:{S_WS+3}], 0 offen sc1
            s_mov_b64 exec, -1
            """.replace("s_cselect_b32 exec_lo, 0xffff8000, 0xffff", f"s_mov_b32 s{S_T+2}, 0xffff\ns_cselect_b32 s{S_T+2}, 0xffff8000, s{S_T+2}\ns_mov_b32 exec_lo, s{S_T+2}"))
            vm.issue("pu")
        if s == NS - 2:
            lh = a.lab("Lh")
            a(f"""
            s_sub_u32 s{S_T+5}, s2, 32
            s_lshl_b32 s{S_T+6}, s{S_BW}, 5
            s_add_u32 s{S_T+6}, s{S_T+6}, s{S_T+5}
            s_lshl_b32 s{S_T+5}, s{S_T+5}, 7
            s_add_u32 s{S_T+5}, s{S_T+5}, {FH}
            s_cmp_ge_u32 s{S_T+6}, 32
            s_cbranch_scc1 {lh}
            s_mov_b64 exec, 1
            buffer_store_dword v{T}, off, s[{S_WS}:{S_WS+3}], s{S_T+5} sc1
            s_mov_b64 exec, -1
            {lh}:
            """)
        if s < nsl:
            for g in rest[len(rest) * s // nsl: len(rest) * (s + 1) // nsl]:
                for t in g(False): a(t)
    stamp(2)
    lok = a.lab("Lok")
    a(f"""
    s_mov_b32 m0, s{S_PRIV}
    s_mov_b32 exec_hi, 0
    s_mov_b32 exec_lo, s{S_T+2}
    s_waitcnt vmcnt({vm.wait_for("pu")})
    v_cmp_ne_u32 vcc, s{S_NONCE}, v{T+1}
    s_cbranch_vccz {lok}
    """)
    poll(vFu, T + 1, 4, 0)
    a(f"{lok}:\ns_mov_b64 exec, -1")
    wloads()
    def lds_part(it, rw, cw):
        for w in rw: a(w)
        for s in range(8): a(f"ds_read_b128 {vr(AF+4*s,4)}, v{vFA} offset:{32*s}")
        for w in cw: a(w)
        for s in range(8): a(f"ds_read_b128 {vr(P[it]+4*s,4)}, v{vFA} offset:{32*s}")
    def mf_part(it, fill):
        for s in range(8):
            a(f"{MFMA} {vr(ACC,16)}, {vr(AF+4*s,4)}, {vr(P[it]+4*s,4)}, {'0' if (s == 0 and it == 0) else vr(ACC,16)}")
            for w in fill[4*s:4*s+4]: a(w)
    lds_part(0, rw0, cw0)
    a("s_waitcnt lgkmcnt(0)")
    mf_part(0, rw1)
    lds_part(1, [], cw1)
    C1 = 48
    for g in range(2):
        d = lambda k: LD + 8 * g + 4 + k
        o = C1 + 12 * g
        a(f"s_waitcnt vmcnt({2 - 2*g})")
        for k in range(4): a(f"v_alignbit_b32 v{o+k}, v{d(k)}, v{d(k-1)}, 16")
        for k in range(4): a(f"v_mov_b32 v{o+4+k}, v{d(k-1)}")
        a(f"v_alignbit_b32 v{o+8}, v{d(-1)}, v{d(-2)}, 16")
        for k in range(1, 4): a(f"v_mov_b32 v{o+8+k}, v{o+k-1}")
    a("s_waitcnt lgkmcnt(0)")
    mf_part(1, [])
    Gs, BF = 80, 100
    a(f"""
    v_add_u32 v{T}, s{S_PRIV}, v{vWl}
    v_mov_b32 v{BF+16}, 0
    v_mov_b32 v{BF+17}, 0
    v_mov_b32 v{BF+18}, 0
    v_mov_b32 v{BF+19}, 0
    s_nop 6
    """)
    for k in range(4): a(f"ds_write_b128 v{T}, {vr(ACC+4*k,4)} offset:{1024*k}")
    pair_signal(1)
    for i in range(32): a(f"v_mov_b32 v{CA[0]+i}, 0")
    pair_wait(1)
    for i, o in enumerate([0, PRIVB]):
        for k in range(2): a(f"ds_read_b128 {vr(Gs+8*i+4*k,4)}, v{vWw} offset:{o + 1024*k}")
    pair_signal(2)
    a("s_waitcnt lgkmcnt(0)")
    for k in range(8): a(f"v_add_f32 v{Gs+k}, v{Gs+k}, v{Gs+8+k}")
    l3 = a.lab("Lkx"); l4 = a.lab("Lkx")
    wr = lambda reg, beta: f"ds_write_b128 v{vG}, {vr(reg,4)} offset:{KPLL + 512 + 256*beta}"
    a(f"""
    s_cmp_eq_u32 s{S_NH}, 0
    s_cbranch_scc0 {l3}
    v_mov_b32 v{T+4}, s{sDS}
    v_cmp_eq_u32 vcc, 0, v0
    s_nop 1
    v_cndmask_b32 v{T+4}, 0, v{T+4}, vcc
    v_add_f32 v{Gs}, v{Gs}, v{T+4}
    """)
    for k in range(4): a(f"v_cvt_pk_bf16_f32 v{BF+k}, v{Gs+7-2*k}, v{Gs+6-2*k}")
    a(wr(BF, 0)); a(wr(BF + 16, -1)); a(wr(BF + 16, -2))
    a(f"""
    s_branch {l4}
    {l3}:
    v_and_b32 v{T+4}, 1, v0
    v_cmp_eq_u32 vcc, 0, v{T+4}
    v_cvt_pk_bf16_f32 v{BF}, v{Gs+2}, v{Gs+2}
    v_cvt_pk_bf16_f32 v{BF+1}, v{Gs+1}, v{Gs+1}
    v_cvt_pk_bf16_f32 v{BF+2}, v{Gs+1}, v{Gs}
    v_cvt_pk_bf16_f32 v{BF+3}, v{Gs}, v{Gs}
    """)
    for beta in (2, 3):
        g0 = Gs + 3 + 2 * (beta - 2); g8 = g0 + 1; R = BF + 4 * (beta - 1)
        a(f"""
        v_cndmask_b32 v{T+4}, v{g8}, v{g0}, vcc
        v_cvt_pk_bf16_f32 v{R}, v{g8}, v{g8}
        v_cvt_pk_bf16_f32 v{R+1}, v{g8}, v{T+4}
        v_cvt_pk_bf16_f32 v{R+2}, v{g0}, v{g0}
        v_cvt_pk_bf16_f32 v{R+3}, v{g0}, v{g0}
        """)
    for beta in (1, 2, 3): a(wr(BF + 4 * (beta - 1), beta))
    a(f"{l4}:")
    pair_wait(2)
    a(f"ds_write_b32 v{vZ}, v{BF+16}")
    for g in range(2):
        a(f"ds_write_b128 v{vWw}, {vr(LD+8*g+4,4)} offset:{64 + 1024*g}")
        for c in range(1, 4): a(f"ds_write_b128 v{vWw}, {vr(C1+12*g+4*(c-1),4)} offset:{64 + 1024*g + c*S1}")
    pair_signal(3)
    pair_wait(3)
    stamp(3)
    FR = [120, 152]
    def reads(buf, dm):
        ins = []
        R = FR[buf]
        for sg in range(2):
            for k_ in range(2):
                for i2 in range(2):
                    ins.append(f"ds_read_b64 {vr(R + (2*sg+k_)*4 + 2*i2, 2)}, v{vAa} offset:{sg*2048 + 64*dm + 32*(1-k_) + 8*i2}")
        for xo in range(2):
            for k_ in range(2):
                ins.append(f"ds_read_b128 {vr(R + 16 + (2*xo+k_)*4, 4)}, v{vXa_} offset:{KPLL + 2*k_*SP + 512*xo + 16*(2-dm)}")
        return [ins[k] for k in [0, 1, 8, 10, 4, 5, 2, 3, 9, 11, 6, 7]]
    def mf(buf, fill):
        R = FR[buf]
        A = lambda sg, k_: vr(R + (2*sg+k_)*4, 4)
        Xf = lambda xo, k_: vr(R + 16 + (2*xo+k_)*4, 4)
        o = []
        for k_ in range(2):
            o.append(f"{MFMA} {vr(CA[0],16)}, {A(0,k_)}, {Xf(0,k_)}, {vr(CA[0],16)}")
            o.append(f"{MFMA} {vr(CA[1],16)}, {A(0,k_)}, {Xf(1,k_)}, {vr(CA[1],16)}")
            o.append(f"{MFMA} {vr(CA[1],16)}, {A(1,k_)}, {Xf(0,k_)}, {vr(CA[1],16)}")
        for k, m in enumerate(o):
            a(m)
            for t in fill[3*k:3*k+3]: a(t)
    for r in reads(0, 0): a(r)
    a(f"s_mov_b32 s{sIt}, 0")
    loop = a.lab("Lcv")
    a(f"{loop}:\ns_waitcnt lgkmcnt(0)")
    mf(0, reads(1, 1))
    a("s_waitcnt lgkmcnt(0)")
    mf(1, reads(0, 2) + [f"v_add_u32 v{vAa}, 128, v{vAa}", f"v_subrev_u32 v{vXa_}, 32, v{vXa_}", f"s_add_u32 s{sIt}, s{sIt}, 1", f"s_cmp_lt_u32 s{sIt}, 8"])
    a(f"s_cbranch_scc1 {loop}")
    stamp(4)
    a("s_setprio 3")
    l1 = a.lab("Lcx"); l2 = a.lab("Lcx")
    F = 16
    pair_signal(4)
    a(f"""
    s_xor_b32 s{S_T+6}, s{S_BW}, 1
    s_mul_i32 s{S_T+6}, s{S_T+6}, {PRIVB}
    s_add_u32 s{S_T+6}, s{S_T+6}, {PRIV0}
    v_add_u32 v{T+2}, s{S_T+6}, v{vWl}
    v_and_b32 v{T+3}, 31, v0
    v_lshlrev_b32 v{T+3}, 6, v{T+3}
    v_lshrrev_b32 v{T+4}, 5, v0
    v_lshl_add_u32 v{T+3}, v{T+4}, 5, v{T+3}
    v_add_u32 v{T+3}, s{S_PRIV}, v{T+3}
    s_lshl_b32 s{sU}, s{sCh}, 12
    s_lshl_b32 s{S_T+5}, s{S_NH}, 11
    s_add_u32 s{sU}, s{sU}, s{S_T+5}
    s_add_u32 s{sU}, s{sU}, {YTB}
    s_lshl_b32 s{sFl}, s{sD}, 5
    s_add_u32 s{sFl}, s{sFl}, {FY}
    """)
    pair_wait(4)
    a(f"s_cmp_eq_u32 s{S_NH}, 0\ns_cbranch_scc1 {l1}")
    for k in range(4): a(f"ds_write_b128 v{T}, {vr(CA[0]+4*k,4)} offset:{1024*k}")
    for k in range(16): a(f"v_mov_b32 v{CA[0]+k}, v{CA[1]+k}")
    a(f"s_branch {l2}\n{l1}:")
    for k in range(4): a(f"ds_write_b128 v{T}, {vr(CA[1]+4*k,4)} offset:{1024*k}")
    a(f"{l2}:")
    pair_signal(5)
    pair_wait(5)
    for k in range(4): a(f"ds_read_b128 {vr(F+4*k,4)}, v{T+2} offset:{1024*k}")
    a("s_waitcnt lgkmcnt(0)")
    for k in range(16): a(f"v_add_f32 v{F+k}, v{F+k}, v{CA[0]+k}")
    for k in range(8): a(f"v_cvt_pk_bf16_f32 v{F+k}, v{F+2*k}, v{F+2*k+1}")
    a(f"""
    ds_write_b128 v{T+3}, {vr(F,4)} offset:4096
    ds_write_b128 v{T+3}, {vr(F+4,4)} offset:4112
    ds_read_b128 {vr(F+8,4)}, v{T} offset:4096
    ds_read_b128 {vr(F+12,4)}, v{T} offset:5120
    s_waitcnt lgkmcnt(1)
    buffer_store_dwordx4 {vr(F+8,4)}, v{vWl}, s[{S_WS}:{S_WS+3}], s{sU} offen{SF}
    s_waitcnt lgkmcnt(0)
    buffer_store_dwordx4 {vr(F+12,4)}, v{vWl}, s[{S_WS}:{S_WS+3}], s{sU} offen offset:1024{SF}
    """)
    group_publish(C_PY, sFl, sLast, vSyB, T + 4)
    lds_wait(vSyB, C_GD, 4, vSg)
    loop = a.lab("Lwo")
    a(f"""
    v_lshrrev_b32 v{T}, 3, v0
    v_and_b32 v{T+1}, 7, v0
    v_bfe_u32 v{T+2}, v0, 4, 1
    v_lshlrev_b32 v{T+2}, 2, v{T+2}
    v_xor_b32 v{T+1}, v{T+1}, v{T+2}
    v_lshlrev_b32 v{T+1}, 4, v{T+1}
    v_mul_u32_u24 v{T+3}, 896, v{T}
    v_add_u32 v{T+3}, v{T+3}, v{T+1}
    v_mov_b32 v{T}, 0
    v_mov_b32 v{T+1}, 0
    v_lshlrev_b32 v{T+2}, 3, v0
    v_add_u32 v{T+2}, {WOL + 448*128}, v{T+2}
    ds_write_b64 v{T+2}, {vr(T,2)}
    s_mul_i32 s{S_T+5}, s{S_BW}, {112*896}
    s_add_u32 s{S_T+5}, s{S_T+5}, s{sWb}
    s_mul_i32 s{S_T+6}, s{S_BW}, {14*1024}
    s_add_u32 s{S_T+6}, s{S_T+6}, {WOL}
    s_mov_b32 s{sIt}, 0
    {loop}:
    s_mov_b32 m0, s{S_T+6}
    s_add_u32 s{S_T+6}, s{S_T+6}, 1024
    buffer_load_dwordx4 v{T+3}, s[{S_WO}:{S_WO+3}], s{S_T+5} offen lds
    s_add_u32 s{S_T+5}, s{S_T+5}, {8*896}
    s_add_u32 s{sIt}, s{sIt}, 1
    s_cmp_lt_u32 s{sIt}, 14
    s_cbranch_scc1 {loop}
    v_add_u32 v{vFu}, {FY - FU}, v{vFu}
    v_mov_b32 v{T}, 1
    s_waitcnt vmcnt(0)
    s_mov_b64 exec, 1
    ds_add_u32 v{vSyB}, v{T} offset:{C_WU}
    s_mov_b64 exec, -1
    """)
    group_wait(C_WY, sLast, 3, vFu, vSyB, T + 5, 16)
    R = 16; LO = 4096
    a(f"""
    s_lshl_b32 s{sU}, s{S_J}, 18
    s_lshl_b32 s{S_T+5}, s{S_RB}, 7
    s_add_u32 s{sU}, s{sU}, s{S_T+5}
    s_lshl_b32 s{S_T+5}, s{S_BW}, 5
    s_add_u32 s{sU}, s{sU}, s{S_T+5}
    s_add_u32 s{sU}, s{sU}, {YTB}
    s_add_u32 s{S_T+5}, s{sU}, {32*4096}
    v_lshrrev_b32 v{T}, 1, v0
    v_lshlrev_b32 v{T}, 12, v{T}
    v_and_b32 v{T+1}, 1, v0
    v_lshl_add_u32 v{T}, v{T+1}, 4, v{T}
    buffer_load_dwordx4 {vr(R,4)}, v{T}, s[{S_WS}:{S_WS+3}], s{sU} offen{LF}
    buffer_load_dwordx4 {vr(R+4,4)}, v{T}, s[{S_WS}:{S_WS+3}], s{S_T+5} offen{LF}
    s_lshl_b32 s{sU}, s{S_RB}, 2
    s_add_u32 s{sU}, s{sU}, s{S_BW}
    s_mul_i32 s{sU}, s{sU}, {16*1792}
    s_add_u32 s{sU}, s{sU}, s{sWb}
    s_add_u32 s{sU}, s{sU}, 896
    s_add_u32 s{S_T+5}, s{sU}, {8*1792}
    """)
    tr_addr(T, 1792)
    a("s_waitcnt vmcnt(0)")
    tr_lds(T, R, LO)
    OSF = OPT.get('osf', '').replace('_', ' ')
    a(f"""
    s_waitcnt lgkmcnt(1)
    buffer_store_dwordx4 {vr(R,4)}, v{T+2}, s[{S_OUT}:{S_OUT+3}], s{sU} offen{OSF}
    s_waitcnt lgkmcnt(0)
    buffer_store_dwordx4 {vr(R+4,4)}, v{T+2}, s[{S_OUT}:{S_OUT+3}], s{S_T+5} offen{OSF}
    """)
    stamp(5)
    stamp_save(0, 6)
    outproj()

def outproj():
    T = 6
    vWr, vFa, vSt, vWl, vAd = 12, 13, 14, 207, 15
    ACC = 32; B0 = 48
    sO, sTodo, sNeed, sHh, sA, sOut = S_T, S_T + 1, S_T + 2, S_T + 3, S_T + 4, S_T + 5
    a(f"""
    v_lshrrev_b32 v{T+1}, 5, v0
    v_bfe_u32 v{T+2}, v0, 2, 2
    v_lshl_add_u32 v{vWr}, v{T+1}, 3, v{T+2}
    v_lshlrev_b32 v{vWr}, 7, v{vWr}
    v_lshrrev_b32 v{T+2}, 1, v{T+2}
    v_xor_b32 v{T+2}, s{S_NH}, v{T+2}
    v_lshl_add_u32 v{vWr}, v{T+2}, 6, v{vWr}
    v_and_b32 v{T+2}, 1, v0
    v_lshl_add_u32 v{vWr}, v{T+2}, 5, v{vWr}
    v_bfe_u32 v{T+2}, v0, 4, 1
    v_lshl_add_u32 v{vWr}, v{T+2}, 4, v{vWr}
    v_bfe_u32 v{T+2}, v0, 1, 1
    v_lshl_add_u32 v{vWr}, v{T+2}, 3, v{vWr}
    v_add_u32 v{vWr}, {WOL}, v{vWr}
    s_lshl_b32 s{sO}, s{S_RB}, 1
    s_add_u32 s{sO}, s{sO}, s{S_C}
    s_mul_i32 s{sOut}, s{sO}, {32*1792}
    s_add_u32 s{sOut}, s{sOut}, s{sWb}
    s_lshl_b32 s{sA}, s{S_NH}, 6
    s_add_u32 s{sOut}, s{sOut}, s{sA}
    s_lshl_b32 s{sA}, s{sO}, 11
    s_add_u32 s{sA}, s{sA}, {FO}
    v_lshlrev_b32 v{vFa}, 7, v0
    v_add_u32 v{vFa}, s{sA}, v{vFa}
    s_lshl_b32 s{sO}, s{sO}, 15
    s_add_u32 s{sO}, s{sO}, {OBUF}
    v_and_b32 v{T}, 31, v0
    v_mul_u32_u24 v{vSt}, 1792, v{T}
    v_lshl_add_u32 v{vSt}, v{T+1}, 5, v{vSt}
    s_mov_b32 s{sNeed}, 0xffff
    s_mov_b32 s{sTodo}, 0
    """)
    for k in range(16): a(f"v_mov_b32 v{ACC+k}, 0")
    a("s_setprio 0")
    lds_wait(vSyB, C_WU, 4, vSg, 4)
    lds_wait(vSyB, C_AH, int(OPT.get('ah', 13)), vSg, 16)
    stamp(0)
    LP = a.lab("Lop"); LR = a.lab("Lor"); LD_ = a.lab("Lod")
    W = [a.lab("Low") for _ in range(9)]
    a(f"""
    s_setprio 3
    s_mov_b32 s{S3}, 0
    {LP}:
    s_mov_b32 exec_hi, 0
    s_mov_b32 exec_lo, s{sNeed}
    buffer_load_dword v{T}, v{vFa}, s[{S_WS}:{S_WS+3}], 0 offen sc1
    s_add_u32 s{S3}, s{S3}, 1
    s_cmp_gt_u32 s{S3}, {SPIN_MAX}
    s_cbranch_scc1 {LD_}
    s_waitcnt vmcnt(0)
    v_cmp_eq_u32 vcc, s{S_NONCE}, v{T}
    s_mov_b64 exec, -1
    s_mov_b32 s{sTodo}, vcc_lo
    s_cmp_lg_u32 s{sTodo}, 0
    s_cbranch_scc1 {LR}
    s_sleep {OPT.get('osl', 2)}
    s_branch {LP}
    {LR}:
    s_andn2_b32 s{sNeed}, s{sNeed}, s{sTodo}
    """)
    for k in range(8):
        R = B0 + 16 * k
        if k: a(f"s_cmp_eq_u32 s{sTodo}, 0\ns_cbranch_scc1 {W[k]}")
        a(f"""
        s_ff1_i32_b32 s{sHh}, s{sTodo}
        s_bitset0_b32 s{sTodo}, s{sHh}
        s_lshl_b32 s{sA}, s{sHh}, 11
        s_add_u32 s{sA}, s{sA}, s{sO}
        s_mul_i32 s{sHh}, s{sHh}, {28*128}
        buffer_load_dwordx4 {vr(R,4)}, v{vWl}, s[{S_WS}:{S_WS+3}], s{sA} offen{LF}
        buffer_load_dwordx4 {vr(R+4,4)}, v{vWl}, s[{S_WS}:{S_WS+3}], s{sA} offen offset:1024{LF}
        v_add_u32 v{vAd}, s{sHh}, v{vWr}
        """)
        for f in range(2):
            for i2 in range(2): a(f"ds_read_b64_tr_b16 {vr(R+8+4*f+2*i2,2)}, v{vAd} offset:{(16*f+4*i2)*128}")
    for k in range(8, 0, -1):
        R = B0 + 16 * (k - 1)
        a(f"""
        {W[k]}:
        s_waitcnt vmcnt(0) lgkmcnt(0)
        {MFMA} {vr(ACC,16)}, {vr(R+8,4)}, {vr(R,4)}, {vr(ACC,16)}
        {MFMA} {vr(ACC,16)}, {vr(R+12,4)}, {vr(R+4,4)}, {vr(ACC,16)}
        """)
    a(f"""
    s_cmp_lg_u32 s{sTodo}, 0
    s_cbranch_scc1 {LR}
    s_cmp_lg_u32 s{sNeed}, 0
    s_cbranch_scc1 {LP}
    {LD_}:
    s_mov_b64 exec, -1
    s_nop 7
    """)
    stamp(1)
    OSF = OPT.get('osf', '').replace('_', ' ')
    for k in range(8): a(f"v_cvt_pk_bf16_f32 v{ACC+k}, v{ACC+2*k}, v{ACC+2*k+1}")
    a(f"buffer_store_dwordx4 {vr(ACC,4)}, v{vSt}, s[{S_OUT}:{S_OUT+3}], s{sOut} offen{OSF}")
    a(f"buffer_store_dwordx4 {vr(ACC+4,4)}, v{vSt}, s[{S_OUT}:{S_OUT+3}], s{sOut} offen offset:16{OSF}")
    if STAMPS: a("s_waitcnt vmcnt(0)")
    stamp(2)
    stamp_save(1, 3)
    stamp_flush('B')
    a("s_endpgm")
```

```python
import sys, math, struct
STAMPS = '--stamps' in sys.argv
OPT = dict(x.split('=') for x in sys.argv[2:] if '=' in x)
CS = (28 ** -0.5) * math.log2(math.e)
LOG2E = math.log2(math.e)
KN = "concat_heads__mha_block__ssm_conv_s4d__prompt_kernel"

class Asm:
    def __init__(self): self.lines = []; self.uid = 0
    def __call__(self, s):
        for l in s.split("\n"):
            l = l.strip()
            if not l: continue
            self.lines.append(l if (l.endswith(":") and " " not in l) else "    " + l)
    def lab(self, p="L"):
        self.uid += 1
        return f"{p}_{self.uid}"
    def text(self): return "\n".join(self.lines) + "\n"
a = Asm()
def vr(r, n=1): return f"v{r}" if n == 1 else f"v[{r}:{r+n-1}]"
def sr(r, n=1): return f"s{r}" if n == 1 else f"s[{r}:{r+n-1}]"
def f32(x): return hex(struct.unpack("<I", struct.pack("<f", x))[0])
MFMA = "v_mfma_f32_32x32x16_bf16"

QBUF, KBUF, VBUF, OBUF, UTB, YTB, FLG, STAMP = 0, 0x200000, 0x400000, 0x5E0000, 0x800000, 0xA00000, 0xC00000, 0xF00000
WS_SIZE = 0x1000000
TILEB = 28672
UROW = 4224
F1 = FLG
FU = FLG + 0x1C000
FY = FU + 0x7000
FO = FY + 0x7000
FH = FO + 0x20000
KA_X, KA_WQKV, KA_WO, KA_U, KA_LOGA, KA_AIM, KA_CR, KA_CI, KA_LOGDT, KA_DSKIP, KA_OUT, KA_DBG, KA_WS = [8 * i for i in range(13)]

S3 = 3
S_WS, S_X, S_W, S_WO, S_U, S_OUT, S_DBG, S_KV = 4, 8, 12, 16, 20, 24, 28, 32
S_WAVE, S_J, S_RB, S_H, S_B, S_I, S_BW, S_C, S_NH, S_PRIV, S_NONCE, sD, sLD, sDS = range(36, 50)
S_T = 50
S_KA = 64
XO = [76 + i for i in range(7)]; WO_ = [83 + i for i in range(7)]
sM, sMB, sRot, sXb, sWb, sF1 = 90, 91, 92, 93, 94, 95
def kp(off): return f"s[{S_KA + off//4}:{S_KA + off//4 + 1}]"

PRIVB = 8704
SP = 1568
KPLB = 4 * SP
KPLL = 0
PRIV0 = 2 * KPLB
RING = PRIV0 + 4 * PRIVB
XCH = RING
WOL = RING + 49152
SYNC = RING + 114688
C_GD, C_PAIR, C_WU, C_PY, C_WY = 0, 16, 32, 36, 40
SF = " sc1"
LF = " sc1"
SPIN_MAX = 50000

VST = 253
def stamp(idx):
    if STAMPS: a(f"{'s_memtime' if OPT.get('cyc') else 's_memrealtime'} s[{64+2*idx}:{65+2*idx}]")
def stamp_save(bank, n):
    if not STAMPS: return
    a("s_waitcnt lgkmcnt(0)")
    for i in range(n): a(f"v_writelane_b32 v{VST}, s{64+2*i}, {bank*6+i}")
def stamp_flush(role=None):
    if not STAMPS: return
    pr = OPT.get('probe')
    if pr:
        if pr[0] != role: return
        L = a.lab("Lpr"); D = a.lab("Lpr")
        a(f"""
        s_cmp_lg_u32 s2, {OPT.get('pwg', 100)}
        s_cbranch_scc1 {D}
        v_readlane_b32 s62, v{VST}, {pr[1:] if pr[1:] != 'n' else 0}
        {f"s_mov_b32 s62, s{S_NONCE}" if pr[1:] == 'n' else ""}
        s_add_u32 s62, s62, 4000
        {L}:
        s_memrealtime s[60:61]
        s_waitcnt lgkmcnt(0)
        s_sub_u32 s60, s60, s62
        s_cmp_lt_i32 s60, 0
        s_cbranch_scc1 {L}
        {D}:
        """)
        return
    a(f"s_lshl_b32 s62, s2, 3\ns_add_u32 s62, s62, s{S_WAVE}\ns_lshl_b32 s62, s62, 8\ns_add_u32 s62, s62, {STAMP}")
    a(f"v_lshlrev_b32 v254, 2, v0\nbuffer_store_dword v{VST}, v254, s[{S_WS}:{S_WS+3}], s62 offen")

class Q:
    def __init__(self, cap): self.q = []; self.cap = cap
    def issue(self, tag): self.q.append(tag)
    def wait_for(self, tag):
        idx = max(i for i, t in enumerate(self.q) if t == tag)
        return min(len(self.q) - 1 - idx, self.cap)

def srd(dst, ka_off, size):
    src = S_KA + ka_off // 4
    a(f"s_mov_b32 s{dst}, s{src}\ns_mov_b32 s{dst+1}, s{src+1}\ns_mov_b32 s{dst+2}, {size}\ns_mov_b32 s{dst+3}, 0x00020000")

def load_nonce(vT): return f"buffer_load_dword v{vT}, off, s[{S_DBG}:{S_DBG+3}], 0 sc1"
def get_nonce(vT, cnt=0):
    L = a.lab("Lnon"); D = a.lab("Lnon")
    a(f"""
    s_mov_b32 s{S3}, 0
    s_waitcnt vmcnt({cnt})
    {L}:
    v_readfirstlane_b32 s{S_NONCE}, v{vT}
    s_add_u32 s{S3}, s{S3}, 1
    s_cmp_lg_u32 s{S_NONCE}, 0
    s_cbranch_scc1 {D}
    s_cmp_gt_u32 s{S3}, {SPIN_MAX}
    s_cbranch_scc1 {D}
    s_sleep 8
    {load_nonce(vT)}
    s_waitcnt vmcnt(0)
    s_branch {L}
    {D}:
    """)

def poll(vA, vT, sleep, few=6):
    L = a.lab("Lpoll"); D = a.lab("Lpoll")
    a(f"""
    s_mov_b32 s{S3}, 0
    {L}:
    buffer_load_dword v{vT}, v{vA}, s[{S_WS}:{S_WS+3}], 0 offen sc1
    s_add_u32 s{S3}, s{S3}, 1
    s_cmp_gt_u32 s{S3}, {SPIN_MAX}
    s_cbranch_scc1 {D}
    s_waitcnt vmcnt(0)
    v_cmp_ne_u32 vcc, s{S_NONCE}, v{vT}
    s_cbranch_vccz {D}
    s_mov_b64 exec, vcc
    s_bcnt1_i32_b64 s{S_T+13}, vcc
    s_cmp_le_u32 s{S_T+13}, {few}
    s_cbranch_scc1 {L}
    s_sleep {sleep}
    s_branch {L}
    {D}:
    s_mov_b64 exec, -1
    """)

def publish(sOff, vT):
    a(f"""
    v_mov_b32 v{vT}, s{S_NONCE}
    s_waitcnt vmcnt(0)
    s_mov_b64 exec, 1
    buffer_store_dword v{vT}, off, s[{S_WS}:{S_WS+3}], s{sOff} sc1
    s_mov_b64 exec, -1
    """)

def lds_wait(vaddr, off, k, vT, sleep=0):
    L = a.lab("Lpw"); D = a.lab("Lpw")
    a(f"""
    {L}:
    ds_read_b32 v{vT}, v{vaddr} offset:{off}
    s_waitcnt lgkmcnt(0)
    v_readfirstlane_b32 s{S3}, v{vT}
    s_cmp_ge_u32 s{S3}, {k}
    s_cbranch_scc1 {D}
    {f"s_sleep {sleep}" if sleep else ""}
    s_branch {L}
    {D}:
    """)

def group_publish(cnt, sOff, sLast, vSy, vT):
    L = a.lab("Lgp")
    a(f"""
    v_mov_b32 v{vT}, 1
    s_waitcnt vmcnt(0)
    s_mov_b64 exec, 1
    ds_add_rtn_u32 v{vT}, v{vSy}, v{vT} offset:{cnt}
    v_mov_b32 v{vT+1}, s{S_NONCE}
    s_waitcnt lgkmcnt(0)
    v_readfirstlane_b32 s{sLast}, v{vT}
    s_cmp_lg_u32 s{sLast}, 3
    s_cbranch_scc1 {L}
    buffer_store_dword v{vT+1}, off, s[{S_WS}:{S_WS+3}], s{sOff} sc1
    {L}:
    s_mov_b64 exec, -1
    """)

def group_wait(word, sSel, sel, vFa, vSy, vT, sleep):
    L = a.lab("Lgw"); D = a.lab("Lgw")
    a(f"s_cmp_lg_u32 s{sSel}, {sel}\ns_cbranch_scc1 {L}\ns_mov_b32 exec_hi, 0")
    poll(vFa, vT, sleep, 0)
    a(f"""
    v_mov_b32 v{vT}, 1
    s_mov_b64 exec, 1
    ds_write_b32 v{vSy}, v{vT} offset:{word}
    s_mov_b64 exec, -1
    s_branch {D}
    {L}:
    """)
    lds_wait(vSy, word, 1, vT, 3)
    a(f"{D}:")

stream = []
for c in range(7): stream += [("x", c), ("k", c), ("v", c)]
stream += [("q", c) for c in range(7)]
sizes = [3] * 7 + [2, 2, 2, 1]
NS = len(sizes)
first = [sum(sizes[:i]) for i in range(NS + 1)]
slot_of = {n: s for s in range(NS) for n in range(first[s], first[s + 1])}
NA = int(OPT.get('na', 3))
vXa, vXb, vWa, vWb = 2, 3, 4, 5
def dma(n):
    kind, c = stream[n]
    base = RING + (n % 14) * 8192
    secoff = dict(k=896, v=1792)
    ins = []
    for half in range(2):
        blk = [f"s_add_u32 m0, s{sM}, {base + half * 1024}"]
        if kind == "x":
            blk += ["s_nop 0", f"buffer_load_dwordx4 v{vXa if half == 0 else vXb}, s[{S_X}:{S_X+3}], s{XO[c]} offen lds"]
        elif kind == "q":
            blk += ["s_nop 0", f"buffer_load_dwordx4 v{vWa if half == 0 else vWb}, s[{S_W}:{S_W+3}], s{WO_[c]} offen lds"]
        else:
            blk += [f"s_add_u32 s{sMB}, s{WO_[c]}, {secoff[kind]}" if half == 0 else "s_nop 0",
                    f"buffer_load_dwordx4 v{vWa if half == 0 else vWb}, s[{S_W}:{S_W+3}], s{sMB} offen lds"]
        ins.append("\n".join(blk))
    return ins
def offsets(c):
    a(f"""
    s_lshl_b32 s{XO[c]}, s{sRot}, 7
    s_add_u32 s{XO[c]}, s{XO[c]}, s{sXb}
    s_mul_i32 s{WO_[c]}, s{sRot}, {64*2688}
    s_add_u32 s{WO_[c]}, s{WO_[c]}, s{sWb}
    s_add_u32 s{sRot}, s{sRot}, 1
    s_cmp_eq_u32 s{sRot}, 7
    s_cselect_b32 s{sRot}, 0, s{sRot}
    """)

def touch(v):
    a(f"""
    v_min_u32 v{v}, 6, v0
    v_cmp_eq_u32 vcc, 3, v{v}
    v_lshlrev_b32 v{v}, 21, v{v}
    v_add_u32 v{v}, 0x1d0000, v{v}
    v_add_u32 v{v+1}, 0x20000, v{v}
    v_cndmask_b32 v{v}, v{v}, v{v+1}, vcc
    buffer_load_dword v{v+1}, v{v}, s[{S_WS}:{S_WS+3}], 0 offen sc1
    buffer_load_dword v{v+2}, off, s[{S_DBG}:{S_DBG+3}], 0 offset:128 sc1
    v_and_b32 v{v}, 1, v0
    v_lshlrev_b32 v{v}, 21, v{v}
    buffer_load_dword v{v+3}, v{v}, s[{S_OUT}:{S_OUT+3}], 0 offen sc1
    buffer_load_dword v{v+4}, off, s[{S_WO}:{S_WO+3}], 0
    """)
```

```python
import sys, math, struct
STAMPS = '--stamps' in sys.argv
OPT = dict(x.split('=') for x in sys.argv[2:] if '=' in x)
CS = (28 ** -0.5) * math.log2(math.e)
LOG2E = math.log2(math.e)
KN = "concat_heads__mha_block__ssm_conv_s4d__prompt_kernel"

class Asm:
    def __init__(self): self.lines = []; self.uid = 0
    def __call__(self, s):
        for l in s.split("\n"):
            l = l.strip()
            if not l: continue
            self.lines.append(l if (l.endswith(":") and " " not in l) else "    " + l)
    def lab(self, p="L"):
        self.uid += 1
        return f"{p}_{self.uid}"
    def text(self): return "\n".join(self.lines) + "\n"
a = Asm()
def vr(r, n=1): return f"v{r}" if n == 1 else f"v[{r}:{r+n-1}]"
def sr(r, n=1): return f"s{r}" if n == 1 else f"s[{r}:{r+n-1}]"
def f32(x): return hex(struct.unpack("<I", struct.pack("<f", x))[0])
MFMA = "v_mfma_f32_32x32x16_bf16"

QBUF, KBUF, VBUF, OBUF, UTB, YTB, FLG, STAMP = 0, 0x200000, 0x400000, 0x5E0000, 0x800000, 0xA00000, 0xC00000, 0xF00000
WS_SIZE = 0x1000000
TILEB = 28672
UROW = 4224
F1 = FLG
FU = FLG + 0x1C000
FY = FU + 0x7000
FO = FY + 0x7000
FH = FO + 0x20000
KA_X, KA_WQKV, KA_WO, KA_U, KA_LOGA, KA_AIM, KA_CR, KA_CI, KA_LOGDT, KA_DSKIP, KA_OUT, KA_DBG, KA_WS = [8 * i for i in range(13)]

S3 = 3
S_WS, S_X, S_W, S_WO, S_U, S_OUT, S_DBG, S_KV = 4, 8, 12, 16, 20, 24, 28, 32
S_WAVE, S_J, S_RB, S_H, S_B, S_I, S_BW, S_C, S_NH, S_PRIV, S_NONCE, sD, sLD, sDS = range(36, 50)
S_T = 50
S_KA = 64
XO = [76 + i for i in range(7)]; WO_ = [83 + i for i in range(7)]
sM, sMB, sRot, sXb, sWb, sF1 = 90, 91, 92, 93, 94, 95
def kp(off): return f"s[{S_KA + off//4}:{S_KA + off//4 + 1}]"

PRIVB = 8704
SP = 1568
KPLB = 4 * SP
KPLL = 0
PRIV0 = 2 * KPLB
RING = PRIV0 + 4 * PRIVB
XCH = RING
WOL = RING + 49152
SYNC = RING + 114688
C_GD, C_PAIR, C_WU, C_PY, C_WY = 0, 16, 32, 36, 40
SF = " sc1"
LF = " sc1"
SPIN_MAX = 50000

VST = 253
def stamp(idx):
    if STAMPS: a(f"{'s_memtime' if OPT.get('cyc') else 's_memrealtime'} s[{64+2*idx}:{65+2*idx}]")
def stamp_save(bank, n):
    if not STAMPS: return
    a("s_waitcnt lgkmcnt(0)")
    for i in range(n): a(f"v_writelane_b32 v{VST}, s{64+2*i}, {bank*6+i}")
def stamp_flush(role=None):
    if not STAMPS: return
    pr = OPT.get('probe')
    if pr:
        if pr[0] != role: return
        L = a.lab("Lpr"); D = a.lab("Lpr")
        a(f"""
        s_cmp_lg_u32 s2, {OPT.get('pwg', 100)}
        s_cbranch_scc1 {D}
        v_readlane_b32 s62, v{VST}, {pr[1:] if pr[1:] not in 'nf' else 0}
        {f"s_mov_b32 s62, s{S_NONCE}" if pr[1:] == 'n' else ""}
        {"s_mov_b32 s62, s96" if pr[1:] == 'f' else ""}
        s_add_u32 s62, s62, 4000
        {L}:
        s_memrealtime s[60:61]
        s_waitcnt lgkmcnt(0)
        s_sub_u32 s60, s60, s62
        s_cmp_lt_i32 s60, 0
        s_cbranch_scc1 {L}
        {D}:
        """)
        return
    a(f"v_writelane_b32 v{VST}, s96, 18")
    a(f"s_lshl_b32 s62, s2, 3\ns_add_u32 s62, s62, s{S_WAVE}\ns_lshl_b32 s62, s62, 8\ns_add_u32 s62, s62, {STAMP}")
    a(f"v_lshlrev_b32 v254, 2, v0\nbuffer_store_dword v{VST}, v254, s[{S_WS}:{S_WS+3}], s62 offen")

class Q:
    def __init__(self, cap): self.q = []; self.cap = cap
    def issue(self, tag): self.q.append(tag)
    def wait_for(self, tag):
        idx = max(i for i, t in enumerate(self.q) if t == tag)
        return min(len(self.q) - 1 - idx, self.cap)

def srd(dst, ka_off, size):
    src = S_KA + ka_off // 4
    a(f"s_mov_b32 s{dst}, s{src}\ns_mov_b32 s{dst+1}, s{src+1}\ns_mov_b32 s{dst+2}, {size}\ns_mov_b32 s{dst+3}, 0x00020000")

def load_nonce(vT): return f"buffer_load_dword v{vT}, off, s[{S_DBG}:{S_DBG+3}], 0 sc1"
def get_nonce(vT, cnt=0):
    L = a.lab("Lnon"); D = a.lab("Lnon")
    a(f"""
    s_mov_b32 s{S3}, 0
    s_waitcnt vmcnt({cnt})
    {L}:
    v_readfirstlane_b32 s{S_NONCE}, v{vT}
    s_add_u32 s{S3}, s{S3}, 1
    s_cmp_lg_u32 s{S_NONCE}, 0
    s_cbranch_scc1 {D}
    s_cmp_gt_u32 s{S3}, {SPIN_MAX}
    s_cbranch_scc1 {D}
    s_sleep 8
    {load_nonce(vT)}
    s_waitcnt vmcnt(0)
    s_branch {L}
    {D}:
    """)

def poll(vA, vT, sleep, few=6):
    L = a.lab("Lpoll"); D = a.lab("Lpoll")
    a(f"""
    s_mov_b32 s{S3}, 0
    {L}:
    buffer_load_dword v{vT}, v{vA}, s[{S_WS}:{S_WS+3}], 0 offen sc1
    s_add_u32 s{S3}, s{S3}, 1
    s_cmp_gt_u32 s{S3}, {SPIN_MAX}
    s_cbranch_scc1 {D}
    s_waitcnt vmcnt(0)
    v_cmp_ne_u32 vcc, s{S_NONCE}, v{vT}
    s_cbranch_vccz {D}
    s_mov_b64 exec, vcc
    s_bcnt1_i32_b64 s{S_T+13}, vcc
    s_cmp_le_u32 s{S_T+13}, {few}
    s_cbranch_scc1 {L}
    s_sleep {sleep}
    s_branch {L}
    {D}:
    s_mov_b64 exec, -1
    """)

def publish(sOff, vT):
    a(f"""
    v_mov_b32 v{vT}, s{S_NONCE}
    s_waitcnt vmcnt(0)
    s_mov_b64 exec, 1
    buffer_store_dword v{vT}, off, s[{S_WS}:{S_WS+3}], s{sOff} sc1
    s_mov_b64 exec, -1
    """)

def lds_wait(vaddr, off, k, vT, sleep=0):
    L = a.lab("Lpw"); D = a.lab("Lpw")
    a(f"""
    {L}:
    ds_read_b32 v{vT}, v{vaddr} offset:{off}
    s_waitcnt lgkmcnt(0)
    v_readfirstlane_b32 s{S3}, v{vT}
    s_cmp_ge_u32 s{S3}, {k}
    s_cbranch_scc1 {D}
    {f"s_sleep {sleep}" if sleep else ""}
    s_branch {L}
    {D}:
    """)

def group_publish(cnt, sOff, sLast, vSy, vT):
    L = a.lab("Lgp")
    a(f"""
    v_mov_b32 v{vT}, 1
    s_waitcnt vmcnt(0)
    s_mov_b64 exec, 1
    ds_add_rtn_u32 v{vT}, v{vSy}, v{vT} offset:{cnt}
    v_mov_b32 v{vT+1}, s{S_NONCE}
    s_waitcnt lgkmcnt(0)
    v_readfirstlane_b32 s{sLast}, v{vT}
    s_cmp_lg_u32 s{sLast}, 3
    s_cbranch_scc1 {L}
    buffer_store_dword v{vT+1}, off, s[{S_WS}:{S_WS+3}], s{sOff} sc1
    {L}:
    s_mov_b64 exec, -1
    """)

def group_wait(word, sSel, sel, vFa, vSy, vT, sleep):
    L = a.lab("Lgw"); D = a.lab("Lgw")
    a(f"s_cmp_lg_u32 s{sSel}, {sel}\ns_cbranch_scc1 {L}\ns_mov_b32 exec_hi, 0")
    poll(vFa, vT, sleep, 0)
    a(f"""
    v_mov_b32 v{vT}, 1
    s_mov_b64 exec, 1
    ds_write_b32 v{vSy}, v{vT} offset:{word}
    s_mov_b64 exec, -1
    s_branch {D}
    {L}:
    """)
    lds_wait(vSy, word, 1, vT, 3)
    a(f"{D}:")

stream = []
for c in range(7): stream += [("x", c), ("k", c), ("v", c)]
stream += [("q", c) for c in range(7)]
sizes = [3] * 7 + [2, 2, 2, 1]
NS = len(sizes)
first = [sum(sizes[:i]) for i in range(NS + 1)]
slot_of = {n: s for s in range(NS) for n in range(first[s], first[s + 1])}
NA = int(OPT.get('na', 3))
NBAR = int(OPT.get('nbar', 9))
vXa, vXb, vWa, vWb = 2, 3, 4, 5
def dma(n):
    kind, c = stream[n]
    base = RING + (n % 14) * 8192
    secoff = dict(k=896, v=1792)
    ins = []
    for half in range(2):
        blk = [f"s_add_u32 m0, s{sM}, {base + half * 1024}"]
        if kind == "x":
            blk += ["s_nop 0", f"buffer_load_dwordx4 v{vXa if half == 0 else vXb}, s[{S_X}:{S_X+3}], s{XO[c]} offen lds"]
        elif kind == "q":
            blk += ["s_nop 0", f"buffer_load_dwordx4 v{vWa if half == 0 else vWb}, s[{S_W}:{S_W+3}], s{WO_[c]} offen lds"]
        else:
            blk += [f"s_add_u32 s{sMB}, s{WO_[c]}, {secoff[kind]}" if half == 0 else "s_nop 0",
                    f"buffer_load_dwordx4 v{vWa if half == 0 else vWb}, s[{S_W}:{S_W+3}], s{sMB} offen lds"]
        ins.append("\n".join(blk))
    return ins
def offsets(c):
    a(f"""
    s_lshl_b32 s{XO[c]}, s{sRot}, 7
    s_add_u32 s{XO[c]}, s{XO[c]}, s{sXb}
    s_mul_i32 s{WO_[c]}, s{sRot}, {64*2688}
    s_add_u32 s{WO_[c]}, s{WO_[c]}, s{sWb}
    s_add_u32 s{sRot}, s{sRot}, 1
    s_cmp_eq_u32 s{sRot}, 7
    s_cselect_b32 s{sRot}, 0, s{sRot}
    """)

def touch(v):
    a(f"""
    v_min_u32 v{v}, 6, v0
    v_cmp_eq_u32 vcc, 3, v{v}
    v_lshlrev_b32 v{v}, 21, v{v}
    v_add_u32 v{v}, 0x1d0000, v{v}
    v_add_u32 v{v+1}, 0x20000, v{v}
    v_cndmask_b32 v{v}, v{v}, v{v+1}, vcc
    buffer_load_dword v{v+1}, v{v}, s[{S_WS}:{S_WS+3}], 0 offen sc1
    buffer_load_dword v{v+2}, off, s[{S_DBG}:{S_DBG+3}], 0 offset:128 sc1
    v_and_b32 v{v}, 1, v0
    v_lshlrev_b32 v{v}, 21, v{v}
    buffer_load_dword v{v+3}, v{v}, s[{S_OUT}:{S_OUT+3}], 0 offen sc1
    buffer_load_dword v{v+4}, off, s[{S_WO}:{S_WO+3}], 0
    """)
```

```python
from base import *
C_AX, C_AH = 44, 48

def prologue():
    T = S_T
    if STAMPS: a("s_memrealtime s[96:97]")
    a(f"""
    s_cmp_ge_u32 s2, 256
    s_cbranch_scc1 L_end
    s_load_dwordx16 s[{S_KA}:{S_KA+15}], s[0:1], 0
    s_load_dwordx8 s[{S_KA+16}:{S_KA+23}], s[0:1], 64
    s_load_dwordx2 s[{S_KA+24}:{S_KA+25}], s[0:1], 96
    v_lshrrev_b32 v1, 6, v0
    s_and_b32 s{T}, s2, 7
    s_lshr_b32 s{S_I}, s2, 3
    s_add_u32 s{S_I}, s{S_I}, 28
    s_and_b32 s{S_I}, s{S_I}, 31
    v_readfirstlane_b32 s{S_WAVE}, v1
    v_and_b32 v0, 63, v0
    {'v_mov_b32 v253, -1' if STAMPS else ''}
    s_and_b32 s{T+2}, s{S_I}, 1
    s_lshl_b32 s{S_H}, s{T}, 1
    s_add_u32 s{S_H}, s{S_H}, s{T+2}
    s_lshr_b32 s{S_B}, s2, 4
    v_lshlrev_b32 v6, 2, v0
    v_add_u32 v7, {SYNC}, v6
    v_mov_b32 v8, 0
    ds_write_b32 v7, v8
    s_cmp_ge_u32 s{S_I}, 28
    s_cbranch_scc1 L_idle
    s_and_b32 s{T+2}, s{T}, 1
    s_mul_i32 s{T+2}, s{T+2}, 28
    s_add_u32 s{T+2}, s{T+2}, s{S_I}
    s_lshr_b32 s{S_J}, s{T+2}, 3
    s_and_b32 s{T+2}, s{T+2}, 7
    s_lshr_b32 s{S_RB}, s{T}, 1
    s_lshl_b32 s{S_RB}, s{S_RB}, 3
    s_add_u32 s{S_RB}, s{S_RB}, s{T+2}
    s_and_b32 s{S_BW}, s{S_WAVE}, 3
    s_lshr_b32 s{S_C}, s{S_BW}, 1
    s_and_b32 s{S_NH}, s{S_BW}, 1
    s_lshl_b32 s{sD}, s{S_J}, 5
    s_add_u32 s{sD}, s{sD}, s{S_RB}
    s_lshl_b32 s{sD}, s{sD}, 2
    s_add_u32 s{T+3}, s{sD}, s{S_BW}
    s_lshl_b32 s{T+3}, s{T+3}, 8
    v_add_u32 v6, s{T+3}, v6
    v_lshrrev_b32 v14, 3, v0
    v_and_b32 v15, 7, v0
    s_lshl_b32 s{sM}, s{S_BW}, 4
    v_add_u32 v1, s{sM}, v14
    v_lshrrev_b32 v14, 1, v14
    v_xor_b32 v{vXa}, v15, v14
    v_lshlrev_b32 v{vXa}, 4, v{vXa}
    v_mul_u32_u24 v{vXb}, 896, v1
    v_add_u32 v{vXa}, v{vXa}, v{vXb}
    v_xor_b32 v{vXb}, 64, v{vXa}
    v_add_u32 v{vXb}, {8*896}, v{vXb}
    v_and_b32 v14, 1, v14
    v_lshlrev_b32 v14, 2, v14
    v_xor_b32 v14, v15, v14
    v_lshlrev_b32 v14, 4, v14
    v_mul_u32_u24 v{vWa}, 2688, v1
    v_add_u32 v{vWa}, v{vWa}, v14
    v_add_u32 v{vWb}, {8*2688}, v{vWa}
    s_lshl_b32 s{sM}, s{S_BW}, 11
    s_lshl_b32 s{sMB}, s{S_J}, 1
    s_add_u32 s{sRot}, s{T+2}, s{sMB}
    s_mul_i32 s{sMB}, s{sRot}, 37
    s_lshr_b32 s{sMB}, s{sMB}, 8
    s_mul_i32 s{sMB}, s{sMB}, 7
    s_sub_u32 s{sRot}, s{sRot}, s{sMB}
    s_mul_i32 s{sXb}, s{S_RB}, {64*896}
    s_lshl_b32 s{sWb}, s{S_J}, 7
    s_cmp_ge_u32 s{S_WAVE}, 4
    s_cbranch_scc1 L_B
    """)

def gemm():
    vXr = [6, 7, 8, 9]; vXh = [245, 246, 247, 248]
    vWlo, vWhi, vKst, vVst = 10, 11, 12, 13
    vT0, vT1, vT2 = 14, 15, 1
    XF, WF = 16, 128
    ACC = dict(k=192, v=208, q=224)
    vSy, vOne, vNon = 240, 241, 243
    sKst, sVst, sV2, sQst, sCS, sA, sB_ = [S_T + i for i in range(7)]
    a("s_setprio 2\ns_waitcnt lgkmcnt(0)")
    srd(S_X, KA_X, 1835008); srd(S_W, KA_WQKV, 1204224); srd(S_WS, KA_WS, WS_SIZE); srd(S_DBG, KA_DBG, 256)
    stamp(0)
    vm = Q(63); lg = Q(15)
    for c in range(NA):
        offsets(c)
        if c == 0: a("s_barrier")
        for n in range(first[c], first[c + 1]):
            for t in dma(n): a(t); vm.issue(("d", c))
        if c == 0:
            a(f"""
            v_and_b32 v{vT0}, 31, v0
            v_lshrrev_b32 v{vT1}, 5, v0
            v_lshrrev_b32 v{vT2}, 1, v{vT0}
            v_and_b32 v{vT2}, 7, v{vT2}
            v_xor_b32 v{vT2}, v{vT2}, v{vT1}
            v_lshlrev_b32 v{vT2}, 4, v{vT2}
            v_lshl_add_u32 v{vXr[0]}, v{vT0}, 7, v{vT2}
            s_lshl_b32 s{sA}, s{S_C}, 12
            v_xor_b32 v{vXr[1]}, 32, v{vXr[0]}
            v_xor_b32 v{vXr[2]}, 64, v{vXr[0]}
            v_xor_b32 v{vXr[3]}, 96, v{vXr[0]}
            s_add_u32 s{sA}, s{sA}, {RING}
            v_add_u32 v{vXr[0]}, s{sA}, v{vXr[0]}
            v_add_u32 v{vXr[1]}, s{sA}, v{vXr[1]}
            v_add_u32 v{vXr[2]}, s{sA}, v{vXr[2]}
            v_add_u32 v{vXr[3]}, s{sA}, v{vXr[3]}
            v_add_u32 v{vXh[0]}, 0x10000, v{vXr[0]}
            v_add_u32 v{vXh[1]}, 0x10000, v{vXr[1]}
            v_add_u32 v{vXh[2]}, 0x10000, v{vXr[2]}
            v_add_u32 v{vXh[3]}, 0x10000, v{vXr[3]}
            v_bfe_u32 v{vT2}, v0, 2, 2
            v_lshl_add_u32 v{vWlo}, v{vT1}, 3, v{vT2}
            v_lshlrev_b32 v{vWlo}, 7, v{vWlo}
            v_lshrrev_b32 v{vT2}, 1, v{vT2}
            v_xor_b32 v{vT2}, s{S_NH}, v{vT2}
            v_lshl_add_u32 v{vWlo}, v{vT2}, 6, v{vWlo}
            v_bfe_u32 v{vT2}, v0, 4, 1
            v_lshl_add_u32 v{vWlo}, v{vT2}, 5, v{vWlo}
            v_and_b32 v{vT2}, 1, v0
            v_lshl_add_u32 v{vWlo}, v{vT2}, 4, v{vWlo}
            v_bfe_u32 v{vT2}, v0, 1, 1
            v_lshl_add_u32 v{vWlo}, v{vT2}, 3, v{vWlo}
            v_add_u32 v{vWlo}, {RING}, v{vWlo}
            v_add_u32 v{vWhi}, 0x10000, v{vWlo}
            """)
        if c == 1:
            a(f"""
            v_lshlrev_b32 v{vKst}, 4, v0
            v_and_b32 v{vVst}, 0x13, v{vT0}
            v_bfe_u32 v{vT2}, v{vT0}, 2, 1
            v_lshl_add_u32 v{vVst}, v{vT2}, 3, v{vVst}
            v_bfe_u32 v{vT2}, v{vT0}, 3, 1
            v_lshl_add_u32 v{vVst}, v{vT2}, 2, v{vVst}
            v_lshlrev_b32 v{vVst}, 4, v{vVst}
            v_mul_u32_u24 v{vT2}, 7168, v{vT1}
            v_add_u32 v{vVst}, v{vVst}, v{vT2}
            s_lshl_b32 s{sA}, s{S_RB}, 1
            s_add_u32 s{sA}, s{sA}, s{S_C}
            s_lshl_b32 s{sB_}, s{S_J}, 1
            s_add_u32 s{sB_}, s{sB_}, s{S_NH}
            s_lshl_b32 s{sF1}, s{sB_}, 6
            s_add_u32 s{sF1}, s{sF1}, s{sA}
            s_lshl_b32 s{sF1}, s{sF1}, 7
            s_add_u32 s{sF1}, s{sF1}, {F1}
            s_mul_i32 s{sA}, s{sA}, {TILEB}
            s_lshl_b32 s{sQst}, s{sB_}, 11
            s_add_u32 s{sQst}, s{sQst}, s{sA}
            s_add_u32 s{sKst}, s{sQst}, {KBUF}
            s_lshl_b32 s{sVst}, s{sB_}, 9
            s_add_u32 s{sVst}, s{sVst}, s{sA}
            s_add_u32 s{sVst}, s{sVst}, {VBUF}
            s_add_u32 s{sV2}, s{sVst}, 14336
            s_mov_b32 s{sCS}, {f32(CS)}
            v_mov_b32 v{vSy}, {SYNC}
            v_mov_b32 v{vOne}, 1
            """)
    def frags(s):
        w = [n for n in range(first[s], first[s + 1]) if stream[n][0] != "x"]
        if s < 7: return [(stream[n][0], stream[n][1], kp_, n) for kp_ in range(4) for n in w]
        return [(stream[n][0], stream[n][1], kp_, n) for n in w for kp_ in range(4)]
    def reads(s):
        buf = WF + (s % 2) * 32
        out = []
        for fi, (kind, c, k_, n) in enumerate(frags(s)):
            if kind == "k":
                off = ((n - 1) % 14) * 8192
                out.append(f"ds_read_b128 {vr(XF + (4 * c + k_) * 4, 4)}, v{(vXh if off >= 65536 else vXr)[k_]} offset:{off & 0xffff}")
            off = (n % 14) * 8192
            va = vWhi if off >= 65536 else vWlo
            for i2 in range(2):
                out.append(f"ds_read_b64_tr_b16 {vr(buf + fi * 4 + i2 * 2, 2)}, v{va} offset:{(off & 0xffff) + k_ * 2048 + i2 * 512}")
        return out
    def mfmas(s):
        buf = WF + (s % 2) * 32
        ins = []
        for fi, (kind, c, k_, n) in enumerate(frags(s)):
            acc = ACC[kind]
            w = vr(buf + fi * 4, 4); x = vr(XF + (4 * c + k_) * 4, 4)
            cc = "0" if (c == 0 and k_ == 0) else vr(acc, 16)
            ins.append(f"{MFMA} {vr(acc,16)}, {x}, {w}, {cc}" if kind == "v" else f"{MFMA} {vr(acc,16)}, {w}, {x}, {cc}")
        return ins
    def epi(kind):
        acc = ACC[kind]
        ins = []
        if kind == "k": ins += [f"v_mul_f32 v{acc+i}, s{sCS}, v{acc+i}" for i in range(16)]
        ins += [f"v_cvt_pk_bf16_f32 v{acc+i}, v{acc+2*i}, v{acc+2*i+1}" for i in range(8)]
        if kind == "v":
            ins.append(f"buffer_store_dwordx4 {vr(acc,4)}, v{vVst}, s[{S_WS}:{S_WS+3}], s{sVst} offen{SF}")
            ins.append(f"buffer_store_dwordx4 {vr(acc+4,4)}, v{vVst}, s[{S_WS}:{S_WS+3}], s{sV2} offen{SF}")
        else:
            so = sKst if kind == "k" else sQst
            ins.append(f"buffer_store_dwordx4 {vr(acc,4)}, v{vKst}, s[{S_WS}:{S_WS+3}], s{so} offen{SF}")
            ins.append(f"buffer_store_dwordx4 {vr(acc+4,4)}, v{vKst}, s[{S_WS}:{S_WS+3}], s{so} offen offset:1024{SF}")
        return ins
    SS = [int(x) for x in OPT.get('ss', '0,3,7,10').split(',')]
    for s in range(NS):
        a(f"; ---- slot {s}")
        a(f"s_waitcnt vmcnt({vm.wait_for(('d', s))}) lgkmcnt(0)" if s < NA else "s_waitcnt lgkmcnt(0)")
        if s < NBAR: a("s_barrier")
        if s in SS: stamp(1 + SS.index(s))
        m = mfmas(s - 1) if s >= 1 else []
        rd = reads(s)
        ep = []
        if s == 8: ep = epi("k")
        if s == 9: ep = epi("v")
        if s == 5: ep = [load_nonce(vNon)]
        if not m:
            for t in rd: a(t)
            continue
        n = len(m)
        gaps = [[] for _ in range(n)]
        for k, r in enumerate(rd): gaps[min(k // 3, n - 1)].append(r)
        for k, r in enumerate(ep): gaps[2 + k * (n - 2) // len(ep)].append(r)
        for k in range(n):
            a(m[k])
            for t in gaps[k]: a(t)
    a("s_waitcnt lgkmcnt(0)")
    for t in mfmas(NS - 1): a(t)
    a(f"""
    s_mov_b64 exec, 1
    ds_add_u32 v{vSy}, v{vOne} offset:{C_GD}
    s_mov_b64 exec, -1
    """)
    get_nonce(vNon, 4)
    a("s_nop 3")
    for t in epi("q"): a(t)
    publish(sF1, vT0)
    stamp(5)
    stamp_save(0, 6)

def attention():
    vKa, vVa, vVb = 2, 3, 4
    vT0, vT1, vT2, vL = 5, 6, 7, 1
    Qr, O, S, P = 8, 40, [104, 120], [136, 144]
    KB = [152 + 16 * i for i in range(4)]
    VB = [160 + 16 * i for i in range(4)]
    vSy, vOne = 216, 217
    sK, sCnt, sOst, sFl = S_T, S_T + 1, S_T + 2, S_T + 3
    sMask = S_T + 4
    sQ = [S_T + 6 + i for i in range(4)]
    sA, sB_ = S_T + 10, S_T + 11
    a(f"""
    L_attn:
    s_setprio 2
    s_mov_b32 s{S_KV}, s{S_WS}
    s_mov_b32 s{S_KV+1}, s{S_WS+1}
    s_mov_b32 s{S_KV+2}, {WS_SIZE}
    s_mov_b32 s{S_KV+3}, 0x00020000
    s_mul_i32 s{sA}, s{S_H}, 7
    s_lshr_b32 s{sA}, s{sA}, 1
    v_bfe_u32 v{vT0}, v0, 4, 1
    v_and_b32 v{vT1}, 15, v0
    s_lshl_b32 s{sB_}, s{S_WAVE}, 4
    v_add_u32 v{vT1}, s{sB_}, v{vT1}
    v_bfe_u32 v{vT2}, v0, 2, 1
    v_and_b32 v{vL}, 3, v0
    s_lshl_b32 s{sB_}, s{S_B}, 2
    v_add_u32 v{vL}, s{sB_}, v{vL}
    v_cmp_gt_u32 vcc, 32, v0
    s_add_u32 s{sB_}, s{sA}, 3
    s_lshr_b32 s{sB_}, s{sB_}, 2
    v_cndmask_b32 v{vT0}, v{vT2}, v{vT0}, vcc
    v_cndmask_b32 v{vT1}, v{vL}, v{vT1}, vcc
    s_lshr_b32 s{sCnt}, s{sA}, 2
    v_add_u32 v{vT0}, s{sCnt}, v{vT0}
    v_min_u32 v{vT0}, s{sB_}, v{vT0}
    v_lshl_add_u32 v{vT0}, v{vT0}, 6, v{vT1}
    v_lshlrev_b32 v{vT0}, 7, v{vT0}
    v_add_u32 v{vL}, {F1}, v{vT0}
    s_lshl_b32 s{sA}, s{sA}, 9
    v_lshlrev_b32 v{vKa}, 4, v0
    v_add_u32 v{vKa}, s{sA}, v{vKa}
    """)
    for q in range(4):
        a(f"""
        s_add_u32 s{sQ[q]}, s{S_WAVE}, {q+1}
        s_and_b32 s{sQ[q]}, s{sQ[q]}, 3
        s_lshl_b32 s{sA}, s{S_B}, 2
        s_add_u32 s{sQ[q]}, s{sQ[q]}, s{sA}
        s_mul_i32 s{sQ[q]}, s{sQ[q]}, {TILEB}
        """)
    a(f"""
    v_and_b32 v{vT0}, 31, v0
    v_lshrrev_b32 v{vT1}, 5, v0
    v_and_b32 v{vVa}, 0x13, v{vT0}
    v_bfe_u32 v{vT2}, v{vT0}, 2, 1
    v_lshl_add_u32 v{vVa}, v{vT2}, 3, v{vVa}
    v_bfe_u32 v{vT2}, v{vT0}, 3, 1
    v_lshl_add_u32 v{vVa}, v{vT2}, 2, v{vVa}
    v_lshlrev_b32 v{vVa}, 4, v{vVa}
    v_mul_u32_u24 v{vT2}, 7168, v{vT1}
    v_add_u32 v{vVa}, v{vVa}, v{vT2}
    s_mul_i32 s{sA}, s{S_H}, 448
    s_add_u32 s{sA}, s{sA}, {VBUF - KBUF}
    v_add_u32 v{vVa}, s{sA}, v{vVa}
    v_add_u32 v{vVb}, 14336, v{vVa}
    s_mul_i32 s{sK}, s{S_WAVE}, {16 * TILEB}
    s_add_u32 s{sK}, s{sK}, {KBUF}
    s_mov_b32 s{sMask}, 0x0fffffff
    s_mov_b32 s{sMask+1}, 0x0fffffff
    v_mov_b32 v{vT2}, 0x3f803f80
    v_cmp_eq_u32 vcc, 28, v{vT0}
    v_mov_b32 v{vSy}, {SYNC}
    v_mov_b32 v{vOne}, 1
    v_cndmask_b32 v{vT2}, 0, v{vT2}, vcc
    """)
    for b in range(4):
        for i in range(8): a(f"v_mov_b32 v{VB[b]+i}, v{vT2}")
    for i in range(64): a(f"v_mov_b32 v{O+i}, 0")
    for i in range(8): a(f"v_mov_b32 v{P[1]+i}, 0")
    for i in range(12, 16): a(f"v_mov_b32 v{S[1]+i}, 0")
    stamp(0)
    a("s_mov_b32 exec_hi, 0xff")
    poll(vL, vT0, int(OPT.get('psl', 6)), int(OPT.get('few', 8)))
    stamp(1)
    def ldK(b, so, srd_=S_KV):
        return (f"buffer_load_dwordx4 {vr(KB[b],4)}, v{vKa}, s[{srd_}:{srd_+3}], s{so} offen{LF}\n"
                f"buffer_load_dwordx4 {vr(KB[b]+4,4)}, v{vKa}, s[{srd_}:{srd_+3}], s{so} offen offset:1024{LF}")
    def ldV(b, so, srd_=S_KV):
        return (f"s_mov_b64 exec, s[{sMask}:{sMask+1}]\n"
                f"buffer_load_dwordx4 {vr(VB[b],4)}, v{vVa}, s[{srd_}:{srd_+3}], s{so} offen{LF}\n"
                f"buffer_load_dwordx4 {vr(VB[b]+4,4)}, v{vVb}, s[{srd_}:{srd_+3}], s{so} offen{LF}\n"
                f"s_mov_b64 exec, -1")
    def ldQ(q):
        a(f"buffer_load_dwordx4 {vr(Qr+8*q,4)}, v{vKa}, s[{S_WS}:{S_WS+3}], s{sQ[q]} offen{LF}")
        a(f"buffer_load_dwordx4 {vr(Qr+8*q+4,4)}, v{vKa}, s[{S_WS}:{S_WS+3}], s{sQ[q]} offen offset:1024{LF}")
    ldQ(0); a(ldK(0, sK))
    for q in (1, 2, 3): ldQ(q)
    for t in range(4):
        if t: a(ldK(t, sK))
        if t < 3:
            a(ldV(t, sK))
            a(f"s_add_u32 s{sK}, s{sK}, {TILEB}")
    def fixq(qs, n):
        lab = a.lab("Lqz"); lab2 = a.lab("Lqz")
        a(f"""
        s_bitcmp0_b32 s{S_H}, 0
        s_waitcnt vmcnt({n})
        s_cbranch_scc1 {lab}
        s_mov_b32 exec_hi, 0
        """)
        for q in qs: a(f"v_mov_b32 v{Qr+8*q}, 0\nv_mov_b32 v{Qr+8*q+1}, 0")
        a(f"s_branch {lab2}\n{lab}:\ns_mov_b32 exec_lo, 0")
        for q in qs: a(f"v_mov_b32 v{Qr+8*q+6}, 0\nv_mov_b32 v{Qr+8*q+7}, 0")
        a(f"{lab2}:\ns_mov_b64 exec, -1")
    fixq([0], 20)
    def qk(u):
        i, q = (u // 4) % 4, u % 4
        s = S[u % 2]
        return [f"{MFMA} {vr(s,16)}, {vr(KB[i],4)}, {vr(Qr+8*q,4)}, 0",
                f"{MFMA} {vr(s,16)}, {vr(KB[i]+4,4)}, {vr(Qr+8*q+4,4)}, {vr(s,16)}"]
    def pv(u):
        i, q = (u // 4) % 4, u % 4
        p = P[u % 2]; o = O + 16 * q
        return [f"{MFMA} {vr(o,16)}, {vr(VB[i],4)}, {vr(p,4)}, {vr(o,16)}",
                f"{MFMA} {vr(o,16)}, {vr(VB[i]+4,4)}, {vr(p+4,4)}, {vr(o,16)}"]
    a(f"s_waitcnt vmcnt(18)\ns_mov_b32 s{sCnt}, 0\ns_nop 1")
    stamp(2)
    for m in qk(0): a(m)
    fixq([1, 2, 3], 12)
    a("s_nop 3")
    loop = a.lab("Lattn")
    a(f".p2align 6\n{loop}:")
    cvt = lambda d, s_: f"v_cvt_pk_bf16_f32 v{d}, v{s_}, v{s_+1}"
    for u in range(16):
        i, q = u // 4, u % 4
        s = S[u % 2]; p = P[u % 2]; sp = S[(u + 1) % 2]; pp = P[(u + 1) % 2]
        m = pv(u - 1)[:1] + qk(u + 1) + pv(u - 1)[1:]
        extra = {k: [] for k in range(16)}; aft = {g: [] for g in range(4)}
        if q == 0: extra[14].append("s_waitcnt vmcnt(10)")
        if q == 1: aft[1].append(ldV((i + 3) % 4, sK))
        if q == 3:
            extra[2].append("s_waitcnt vmcnt(10)")
            if i == 0: extra[0].append(f"s_cmp_eq_u32 s{sCnt}, 3\ns_cselect_b32 s{S_KV+2}, 0, s{S_KV+2}")
            extra[1].append(f"s_add_u32 s{sK}, s{sK}, {TILEB}")
            kk = ldK(i, sK).split("\n")
            aft[2].append(kk[0]); aft[3].append(kk[1])
        if u == 15:
            extra[9].append(f"s_add_u32 s{sCnt}, s{sCnt}, 1")
            extra[10].append(f"s_cmp_lt_u32 s{sCnt}, 4")
        if u == 6:
            aft[2].append(f"s_mov_b64 exec, 1\nds_add_u32 v{vSy}, v{vOne} offset:{C_AH}\ns_mov_b64 exec, -1")
        for g in range(4):
            a(m[g])
            for l in aft[g]: a(l)
            if g == 0: a(cvt(pp + 6, sp + 12) + "\n" + cvt(pp + 7, sp + 14))
            else: a(cvt(p + 2 * g - 2, s + 4 * g - 4) + "\n" + cvt(p + 2 * g - 1, s + 4 * g - 2))
            for k in range(4 * g, 4 * g + 4):
                a(f"v_exp_f32 v{s+k}, v{s+k}")
                for l in extra[k]: a(l)
    a(f"s_cbranch_scc1 {loop}")
    a(pv(15)[0])
    a(cvt(P[1] + 6, S[1] + 12) + "\n" + cvt(P[1] + 7, S[1] + 14))
    a(f"v_lshlrev_b32 v{vT0}, 4, v0\ns_nop 0")
    a(pv(15)[1])
    stamp(3)
    for q in range(3):
        a(f"""
        s_add_u32 s{sA}, s{S_WAVE}, {q+1}
        s_and_b32 s{sA}, s{sA}, 3
        s_mul_i32 s{sA}, s{sA}, 12288
        v_add_u32 v{vT1}, s{sA}, v{vT0}
        """)
        for k in range(4): a(f"ds_write_b128 v{vT1}, {vr(O+16*q+4*k,4)} offset:{XCH + q*4096 + k*1024}")
    a(f"""
    s_mov_b64 exec, 1
    ds_add_u32 v{vSy}, v{vOne} offset:{C_AX}
    s_mov_b64 exec, -1
    s_mul_i32 s{sA}, s{S_WAVE}, 12288
    v_add_u32 v{vT1}, s{sA}, v{vT0}
    s_lshl_b32 s{sOst}, s{S_B}, 2
    s_add_u32 s{sOst}, s{sOst}, s{S_WAVE}
    s_lshl_b32 s{sOst}, s{sOst}, 4
    s_add_u32 s{sOst}, s{sOst}, s{S_H}
    s_lshl_b32 s{sFl}, s{sOst}, 7
    s_add_u32 s{sFl}, s{sFl}, {FO}
    s_lshl_b32 s{sOst}, s{sOst}, 11
    s_add_u32 s{sOst}, s{sOst}, {OBUF}
    """)
    lds_wait(vSy, C_AX, 4, vT2)
    for q in range(3):
        for k in range(4): a(f"ds_read_b128 {vr(O+16*q+4*k,4)}, v{vT1} offset:{XCH + q*4096 + k*1024}")
    F = O + 48
    stamp(4)
    for q in range(3):
        a(f"s_waitcnt lgkmcnt({8 - 4*q})")
        for k in range(0, 16, 2): a(f"v_pk_add_f32 {vr(F+k,2)}, {vr(F+k,2)}, {vr(O+16*q+k,2)}")
    a(f"""
    L_norm:
    v_mov_b32 v{vT1}, v{F+12}
    v_mov_b32 v{vL}, v{F+12}
    s_mov_b32 s{sA}, {f32(2.0**-40)}
    s_mov_b32 s{sB_}, {f32(2.0**40)}
    v_permlane32_swap_b32 v{vT1}, v{vL}
    s_nop 0
    v_rcp_f32 v{vT1}, v{vL}
    v_cmp_nle_f32 vcc, s{sA}, v{vL}
    v_cmp_nge_f32 s[{sQ[0]}:{sQ[0]+1}], s{sB_}, v{vL}
    s_or_b64 vcc, vcc, s[{sQ[0]}:{sQ[0]+1}]
    s_cbranch_vccnz L_slow
    L_norm2:
    v_cmp_gt_u32 vcc, 32, v0
    s_nop 1
    v_cndmask_b32 v{vT2}, 0, v{vT1}, vcc
    """)
    for k in range(16): a(f"v_mul_f32 v{F+k}, v{F+k}, v{vT1 if k < 12 else vT2}")
    for k in range(8): a(f"v_cvt_pk_bf16_f32 v{O+k}, v{F+2*k}, v{F+2*k+1}")
    a(f"buffer_store_dwordx4 {vr(O,4)}, v{vT0}, s[{S_WS}:{S_WS+3}], s{sOst} offen{SF}")
    a(f"buffer_store_dwordx4 {vr(O+4,4)}, v{vT0}, s[{S_WS}:{S_WS+3}], s{sOst} offen offset:1024{SF}")
    publish(sFl, vT2)
    stamp(5)
    stamp_save(1, 6)
    stamp_flush('A')
    a("s_endpgm")
    s0 = S[0]; p0 = P[0]; Q3 = Qr + 24; vM = O
    l1 = a.lab("Lsl"); l2 = a.lab("Lsl")
    qk3 = (f"{MFMA} {vr(s0,16)}, {vr(KB[0],4)}, {vr(Q3,4)}, 0\n"
           f"{MFMA} {vr(s0,16)}, {vr(KB[0]+4,4)}, {vr(Q3+4,4)}, {vr(s0,16)}\ns_nop 15")
    a(f"""
    L_slow:
    s_cmp_eq_u32 s{sCnt}, 99
    s_cbranch_scc1 L_norm2
    s_mov_b32 s{sK}, {KBUF}
    v_mov_b32 v{vM}, 0xff800000
    {l1}:
    {ldK(0, sK, S_WS)}
    s_waitcnt vmcnt(0)
    {qk3}
    """)
    for k in range(0, 16, 2): a(f"v_max3_f32 v{vM}, v{s0+k}, v{s0+k+1}, v{vM}")
    a(f"""
    s_add_u32 s{sK}, s{sK}, {TILEB}
    s_cmp_lt_u32 s{sK}, {KBUF + 64 * TILEB}
    s_cbranch_scc1 {l1}
    v_mov_b32 v{vM+1}, v{vM}
    s_nop 1
    v_permlane32_swap_b32 v{vM}, v{vM+1}
    s_nop 1
    v_max_f32 v{vM}, v{vM}, v{vM+1}
    s_mov_b32 s{sK}, {KBUF}
    """)
    for k in range(16): a(f"v_mov_b32 v{F+k}, 0")
    a(f"""
    {l2}:
    {ldK(0, sK, S_WS)}
    {ldV(0, sK, S_WS)}
    s_waitcnt vmcnt(0)
    {qk3}
    """)
    for k in range(16): a(f"v_sub_f32 v{s0+k}, v{s0+k}, v{vM}")
    for k in range(16): a(f"v_exp_f32 v{s0+k}, v{s0+k}")
    a("s_nop 0")
    for k in range(8): a(cvt(p0 + k, s0 + 2 * k))
    a(f"""
    s_nop 1
    {MFMA} {vr(F,16)}, {vr(VB[0],4)}, {vr(p0,4)}, {vr(F,16)}
    {MFMA} {vr(F,16)}, {vr(VB[0]+4,4)}, {vr(p0+4,4)}, {vr(F,16)}
    s_add_u32 s{sK}, s{sK}, {TILEB}
    s_cmp_lt_u32 s{sK}, {KBUF + 64 * TILEB}
    s_cbranch_scc1 {l2}
    s_mov_b32 s{sCnt}, 99
    s_nop 15
    s_branch L_norm
    """)

def idle():
    l7 = a.lab("Lw7")
    a(f"""
    L_idle:
    s_cmp_ge_u32 s{S_WAVE}, 4
    s_cbranch_scc1 {l7}
    s_lshl_b32 s{S_T+5}, s2, 7
    s_add_u32 s{S_T+5}, s{S_T+5}, {FH}
    v_mov_b32 v12, s{S_T+5}
    v_mov_b32 v13, 0
    s_waitcnt lgkmcnt(0)
    """)
    srd(S_WS, KA_WS, WS_SIZE); srd(S_DBG, KA_DBG, 256)
    a("s_barrier")
    get_nonce(13, 0)
    a("s_mov_b64 exec, 1")
    poll(12, 13, 8, 0)
    a(f"""
    s_branch L_attn
    {l7}:
    s_cmp_eq_u32 s{S_WAVE}, 6
    s_cbranch_scc1 L_touch
    s_cmp_lg_u32 s{S_WAVE}, 7
    s_cbranch_scc1 L_end
    s_getpc_b64 s[{S_T+4}:{S_T+5}]
    Lpc:
    s_sub_u32 s{S_T+4}, s{S_T+4}, Lpc-{KN}
    s_subb_u32 s{S_T+5}, s{S_T+5}, 0
    s_memrealtime s[{S_T+10}:{S_T+11}]
    v_lshlrev_b32 v2, 7, v0
    v_add_u32 v3, 8192, v2
    v_add_u32 v4, 16384, v2
    v_min_u32 v4, L_end-{KN}, v4
    s_waitcnt lgkmcnt(0)
    s_cmp_lg_u32 s2, 0
    s_cbranch_scc1 Lnn
    """)
    srd(S_DBG, KA_DBG, 256)
    a(f"""
    s_or_b32 s{S_T+10}, s{S_T+10}, 1
    v_mov_b32 v8, s{S_T+10}
    s_mov_b64 exec, 1
    buffer_store_dword v8, off, s[{S_DBG}:{S_DBG+3}], 0 sc1
    s_mov_b64 exec, -1
    Lnn:
    global_load_dword v12, v2, s[{S_T+4}:{S_T+5}]
    global_load_dword v13, v3, s[{S_T+4}:{S_T+5}]
    global_load_dword v14, v4, s[{S_T+4}:{S_T+5}]
    s_endpgm
    """)
    a("L_touch:\ns_waitcnt lgkmcnt(0)")
    if OPT.get('touch', '0') != '0':
        srd(S_WS, KA_WS, WS_SIZE); srd(S_DBG, KA_DBG, 256); srd(S_WO, KA_WO, 401408); srd(S_OUT, KA_OUT, 3670016)
        touch(2)
    a("s_endpgm")
```

```python
from base import *
from rolea import C_AH
vSg, vMy, vPa, vSyB = 200, 201, 202, 203
def pair_signal(k):
    a(f"v_mov_b32 v{vSg}, {k}\ns_mov_b64 exec, 1\nds_write_b32 v{vMy}, v{vSg}\ns_mov_b64 exec, -1")
def pair_wait(k): lds_wait(vPa, 0, k, vSg)

def cmul(d, x, y, pk):
    if pk:
        return [f"v_pk_mul_f32 {vr(d,2)}, {vr(x,2)}, {vr(y,2)} op_sel:[0,0] op_sel_hi:[1,0]",
                f"v_pk_fma_f32 {vr(d,2)}, {vr(x,2)}, {vr(y,2)}, {vr(d,2)} op_sel:[1,1,0] op_sel_hi:[0,1,1] neg_lo:[0,1,0]"]
    return [f"v_mul_f32 v{d}, v{x}, v{y}", f"v_mul_f32 v{d+1}, v{x+1}, v{y}",
            f"v_fma_f32 v{d}, -v{x+1}, v{y+1}, v{d}", f"v_fmac_f32 v{d+1}, v{x}, v{y+1}"]

RAW, PRM, vDT, vFA, KT = 12, 16, 20, 21, 22
def kgen_valu(it, P):
    E1, E2, E4, E8, E256, E16 = 28, 30, 32, 34, 36, 38
    X, Y, Z, W = 40, 42, 44, 46
    LA, AI, CR, CI = PRM, PRM + 1, PRM + 2, PRM + 3
    T = KT; vA_, vB_ = T, T + 1
    G = []
    def raw(txt):
        for l in txt.strip().split("\n"): G.append(lambda pk, l=l.strip(): [l])
    for k in range(4):
        raw(f"v_lshlrev_b32 v{PRM+k}, 16, v{RAW+k}" if it == 0 else f"v_and_b32 v{PRM+k}, 0xffff0000, v{RAW+k}")
    raw(f"""v_mul_f32 v{vA_}, {f32(LOG2E)}, v{LA}
    v_exp_f32 v{vA_}, v{vA_}
    v_mul_f32 v{vB_}, v{AI}, v{vDT}
    v_cvt_pk_bf16_f32 v{vA_}, v{vA_}, v{vA_}
    v_and_b32 v{vA_}, 0xffff0000, v{vA_}
    v_mul_f32 v{vA_}, v{vA_}, v{vDT}
    v_mul_f32 v{vA_}, {f32(-LOG2E)}, v{vA_}
    v_mul_f32 v{vB_}, 0.15915494, v{vB_}
    v_add_f32 v{T+2}, v{vDT}, v{vDT}
    v_mul_f32 v{X}, v{CR}, v{T+2}
    v_mul_f32 v{X+1}, v{CI}, v{T+2}""")
    for E, t in ((E1, 1.0), (E8, 8.0), (E256, 256.0)):
        raw(f"""v_mul_f32 v{T+2}, {f32(t)}, v{vA_}
        v_mul_f32 v{T+3}, {f32(t)}, v{vB_}
        v_exp_f32 v{T+2}, v{T+2}
        v_fract_f32 v{T+3}, v{T+3}
        v_cos_f32 v{E}, v{T+3}
        v_sin_f32 v{E+1}, v{T+3}
        v_mul_f32 v{E}, v{E}, v{T+2}
        v_mul_f32 v{E+1}, v{E+1}, v{T+2}""")
    wr = []; nxtp = [P]
    def put(src, rows, conj):
        t = nxtp[0]; nxtp[0] += 1
        raw(f"v_cvt_pk_bf16_f32 v{t}, v{src}, {'-' if conj else ''}v{src+1}")
        for r in rows: wr.append(f"ds_write_addtid_b32 v{t} offset:{r*272}")
    def cm(d, x, y): G.append(lambda pk: cmul(d, x, y, pk))
    rho = lambda v, h: 8 * (v >> 2) + 4 * h + (v & 3)
    cm(E2, E1, E1); cm(E4, E2, E2); cm(E16, E8, E8)
    cm(Z, X, E256)
    put(X, [rho(0, 0)], True)
    cur, nxt = X, Y
    for k in range(1, 8):
        cm(nxt, cur, E1); put(nxt, [rho(k, 0)], True)
        cur, nxt = nxt, cur
    rows1 = [[0, 1], [2], [3, 4, 5], [6], [7]]
    put(Z, [rho(v, 1) for v in rows1[0]], True)
    cur, nxt = Z, X
    for k in range(1, 5):
        cm(nxt, cur, E2); put(nxt, [rho(v, 1) for v in rows1[k]], True)
        cur, nxt = nxt, (Y if nxt == X else X)
    H, Hn = Z, W
    for B in (2, 3):
        cm(Hn, H, E256); H, Hn = Hn, H
        put(H, [rho(8, B & 1)], True)
        cm(X, H, E4); put(X, [rho(9, B & 1)], True)
        cm(Y, H, E8); put(Y, [rho(10, B & 1)], True)
    for B in (4, 5, 6, 7):
        v0_ = 11 if B < 6 else 13
        cm(Hn, H, E256); H, Hn = Hn, H
        put(H, [rho(v0_, B & 1)], True)
        cm(X, H, E8); put(X, [rho(v0_ + 1, B & 1)], True)
    roww = list(wr); wr.clear()
    wr.append(f"ds_write_addtid_b32 v{KT+5} offset:0")
    put(E8, [1], False); put(E16, [2], False)
    ch = {1: E8, 0: E16}; pool = {1: [X, Y], 0: [Z, W]}
    for j in range(3, 32):
        par = j & 1
        d = pool[par][0]; pool[par].reverse()
        cm(d, ch[par], E16); put(d, [j], False)
        ch[par] = d
    assert nxtp[0] == P + 58
    return G, roww, list(wr)

def tr_addr(T, dpitch):
    a(f"""
    v_lshlrev_b32 v{T}, 4, v0
    v_add_u32 v{T}, s{S_PRIV}, v{T}
    v_lshrrev_b32 v{T+2}, 4, v0
    v_and_b32 v{T+3}, 15, v0
    v_lshlrev_b32 v{T+1}, 9, v{T+2}
    v_lshl_add_u32 v{T+1}, v{T+3}, 3, v{T+1}
    v_add_u32 v{T+1}, s{S_PRIV}, v{T+1}
    v_mul_u32_u24 v{T+3}, 144, v{T+3}
    v_lshl_add_u32 v{T+3}, v{T+2}, 5, v{T+3}
    v_add_u32 v{T+3}, s{S_PRIV}, v{T+3}
    v_lshrrev_b32 v{T+2}, 3, v0
    v_mul_u32_u24 v{T+4}, 144, v{T+2}
    v_mul_u32_u24 v{T+2}, {dpitch}, v{T+2}
    v_and_b32 v{T+5}, 7, v0
    v_lshl_add_u32 v{T+4}, v{T+5}, 4, v{T+4}
    v_add_u32 v{T+4}, s{S_PRIV}, v{T+4}
    v_lshl_add_u32 v{T+2}, v{T+5}, 4, v{T+2}
    """)
def tr_lds(T, R, LO):
    a(f"ds_write_b128 v{T}, {vr(R,4)} offset:{LO}\nds_write_b128 v{T}, {vr(R+4,4)} offset:{LO+1024}")
    for i in range(4): a(f"ds_read_b64_tr_b16 {vr(R+2*i,2)}, v{T+1} offset:{LO + i*128}")
    a(f"""
    s_waitcnt lgkmcnt(0)
    ds_write_b128 v{T+3}, {vr(R,4)} offset:{LO}
    ds_write_b128 v{T+3}, {vr(R+4,4)} offset:{LO+16}
    ds_read_b128 {vr(R,4)}, v{T+4} offset:{LO}
    ds_read_b128 {vr(R+4,4)}, v{T+4} offset:{LO+8*144}
    """)

def role_b():
    T = 6
    P = [48, 108]; AF = 216; CA = [216, 232]; ACC = 84
    vNon, vZ, vG, vWl, vFu, vAa, vXa_, vWw = 204, 205, 206, 207, 208, 209, 210, 211
    sU, sIt, sUw, sCh, sFl, sLast, sWin = S_T, S_T + 4, S_T + 7, S_T + 8, S_T + 9, S_T + 10, S_T + 11
    S1 = 4160
    UR = 168; UT_ = 176; LD = 184
    a(f"""
    L_B:
    v_lshrrev_b32 v7, 1, v0
    v_mul_u32_u24 v7, 896, v7
    v_and_b32 v8, 1, v0
    v_lshl_add_u32 v7, v8, 4, v7
    s_lshl_b32 s{S_T+5}, s{S_BW}, 5
    s_add_u32 s{S_T+5}, s{S_T+5}, s{sXb}
    s_add_u32 s{S_T+5}, s{S_T+5}, s{sWb}
    v_add_u32 v7, s{S_T+5}, v7
    v_add_u32 v8, {32*896}, v7
    s_waitcnt lgkmcnt(0)
    global_load_dword v{RAW}, v6, {kp(KA_LOGA)}
    global_load_dword v{RAW+1}, v6, {kp(KA_AIM)}
    global_load_dword v{RAW+2}, v6, {kp(KA_CR)}
    global_load_dword v{RAW+3}, v6, {kp(KA_CI)}
    global_load_dwordx4 {vr(UR,4)}, v7, {kp(KA_U)}
    global_load_dwordx4 {vr(UR+4,4)}, v8, {kp(KA_U)}
    s_load_dword s{sLD}, {kp(KA_LOGDT)}, s{sD}
    s_load_dword s{sDS}, {kp(KA_DSKIP)}, s{sD}
    s_barrier
    """)
    srd(S_X, KA_X, 1835008); srd(S_W, KA_WQKV, 1204224); srd(S_DBG, KA_DBG, 256)
    srd(S_WS, KA_WS, WS_SIZE); srd(S_WO, KA_WO, 401408); srd(S_OUT, KA_OUT, 3670016)
    for c in range(7): offsets(c)
    a(f"""
    s_mul_i32 s{S_PRIV}, s{S_BW}, {PRIVB}
    s_add_u32 s{S_PRIV}, s{S_PRIV}, {PRIV0}
    s_lshl_b32 s{S_T+6}, s{S_BW}, 2
    s_add_u32 s{S_T+6}, s{S_T+6}, {SYNC + C_PAIR}
    v_mov_b32 v{vMy}, s{S_T+6}
    v_xor_b32 v{vPa}, 4, v{vMy}
    v_mov_b32 v{vSyB}, {SYNC}
    s_mul_i32 s{sWin}, s{S_C}, {2*PRIVB}
    s_add_u32 s{sWin}, s{sWin}, {PRIV0}
    v_and_b32 v{T}, 3, v0
    v_bfe_u32 v{T+1}, v0, 3, 2
    v_lshl_add_u32 v{T}, v{T+1}, 2, v{T}
    v_bfe_u32 v{T+1}, v0, 2, 1
    v_lshl_add_u32 v{T}, v{T+1}, 4, v{T}
    v_lshrrev_b32 v{T+1}, 5, v0
    v_lshlrev_b32 v{T+2}, 3, v{T+1}
    v_sub_u32 v{T}, v{T}, v{T+2}
    v_add_u32 v{T}, 9, v{T}
    v_sub_u32 v{T+2}, 0, v{T}
    v_and_b32 v{T+2}, 3, v{T+2}
    v_add_lshl_u32 v{T}, v{T}, v{T+2}, 1
    v_mul_u32_u24 v{T+2}, {S1}, v{T+2}
    s_lshl_b32 s{S_T+5}, s{S_NH}, 10
    s_add_u32 s{S_T+5}, s{S_T+5}, s{sWin}
    v_add3_u32 v{vAa}, v{T}, v{T+2}, s{S_T+5}
    v_lshlrev_b32 v{vWl}, 4, v0
    s_lshl_b32 s{S_T+5}, s{S_NH}, 11
    s_add_u32 s{S_T+5}, s{S_T+5}, s{sWin}
    v_add_u32 v{vWw}, s{S_T+5}, v{vWl}
    v_and_b32 v{T}, 31, v0
    v_mul_u32_u24 v{vFA}, 272, v{T}
    v_lshl_add_u32 v{vFA}, v{T+1}, 4, v{vFA}
    v_add_u32 v{vFA}, s{S_PRIV}, v{vFA}
    v_lshlrev_b32 v{vFu}, 7, v{T}
    v_lshlrev_b32 v{T}, 4, v{T}
    v_mul_u32_u24 v{T+2}, {SP}, v{T+1}
    s_mul_i32 s{S_T+6}, s{S_C}, {KPLB}
    s_lshl_b32 s{S_T+5}, s{S_NH}, 8
    s_sub_u32 s{S_T+5}, s{S_T+6}, s{S_T+5}
    s_add_u32 s{S_T+5}, s{S_T+5}, {30*16}
    v_add3_u32 v{vXa_}, v{T}, v{T+2}, s{S_T+5}
    v_and_b32 v{T}, 3, v0
    v_mul_u32_u24 v{T}, {SP}, v{T}
    v_lshrrev_b32 v{T+1}, 2, v0
    v_lshl_add_u32 v{T}, v{T+1}, 4, v{T}
    v_add_u32 v{vG}, s{S_T+6}, v{T}
    v_lshrrev_b32 v{T}, 4, v0
    v_mul_u32_u24 v{T}, {S1}, v{T}
    v_and_b32 v{T+1}, 15, v0
    v_lshl_add_u32 v{T}, v{T+1}, 2, v{T}
    v_add_u32 v{vZ}, s{sWin}, v{T}
    s_lshr_b32 s{sCh}, s{sD}, 1
    s_add_u32 s{sCh}, s{sCh}, s{S_C}
    s_lshl_b32 s{S_T+5}, s{S_J}, 12
    s_add_u32 s{S_T+5}, s{S_T+5}, {FU}
    v_add_u32 v{vFu}, s{S_T+5}, v{vFu}
    s_mul_i32 s{sUw}, s{sCh}, {UROW}
    s_lshl_b32 s{S_T+5}, s{S_NH}, 11
    s_add_u32 s{sUw}, s{sUw}, s{S_T+5}
    s_add_u32 s{sUw}, s{sUw}, {UTB + 128 - 8}
    v_mov_b32 v{KT+5}, 0x3f80
    s_waitcnt lgkmcnt(0)
    s_lshl_b32 s{S3}, s{S_C}, 4
    s_lshr_b32 s{sLD}, s{sLD}, s{S3}
    s_lshl_b32 s{sLD}, s{sLD}, 16
    s_lshr_b32 s{sDS}, s{sDS}, s{S3}
    s_lshl_b32 s{sDS}, s{sDS}, 16
    v_mov_b32 v{KT}, {f32(LOG2E)}
    v_mul_f32 v{vDT}, s{sLD}, v{KT}
    v_exp_f32 v{vDT}, v{vDT}
    s_nop 0
    v_cvt_pk_bf16_f32 v{vDT}, v{vDT}, v{vDT}
    v_and_b32 v{vDT}, 0xffff0000, v{vDT}
    s_lshl_b32 s{sU}, s{S_J}, 2
    s_add_u32 s{sU}, s{sU}, s{S_BW}
    s_mul_i32 s{sU}, s{sU}, {16*UROW}
    s_lshl_b32 s{S_T+5}, s{S_RB}, 7
    s_add_u32 s{sU}, s{sU}, s{S_T+5}
    s_add_u32 s{sU}, s{sU}, {UTB + 128}
    s_add_u32 s{S_T+1}, s{sU}, {8*UROW}
    s_lshl_b32 s{sFl}, s{sD}, 5
    s_add_u32 s{sFl}, s{sFl}, {FU}
    """)
    tr_addr(UT_, UROW)
    a("s_waitcnt vmcnt(2)")
    stamp(0)
    G0, rw0, cw0 = kgen_valu(0, P[0]); G1, rw1, cw1 = kgen_valu(1, P[1])
    G = G0 + G1
    npre = int(len(G) * float(OPT.get('pre', 0.55)))
    n1 = int(len(G) * float(OPT.get('pre1', 0.15)))
    for g in G[:n1]:
        for t in g(True): a(t)
    a("s_waitcnt vmcnt(0)")
    tr_lds(UT_, UR, 0)
    for g in G[n1:len(G0)]:
        for t in g(True): a(t)
    pre2 = G[len(G0):npre]
    rest = G[npre:]
    C1, Gs, BF = 48, 28, 100
    def m0priv(): a(f"s_mov_b32 m0, s{S_PRIV}\ns_nop 0")
    def emit(l):
        for t in l: a(t)
    def afr(): emit([f"ds_read_b128 {vr(AF+4*s,4)}, v{vFA} offset:{32*s}" for s in range(8)])
    def bfr(it): emit([f"ds_read_b128 {vr(P[it]+4*s,4)}, v{vFA} offset:{32*s}" for s in range(8)])
    def mfm(it, fill):
        a("s_waitcnt lgkmcnt(0)")
        for s in range(8):
            a(f"{MFMA} {vr(ACC,16)}, {vr(AF+4*s,4)}, {vr(P[it]+4*s,4)}, {'0' if (s == 0 and it == 0) else vr(ACC,16)}")
            emit(fill[4*s:4*s+4])
    def valu(k, n):
        for g in rest[len(rest) * k // n: len(rest) * (k + 1) // n]: emit(g(False))
    def ustores():
        lz = a.lab("Lz")
        a(f"""
        s_waitcnt lgkmcnt(0)
        buffer_store_dwordx4 {vr(UR,4)}, v{UT_+2}, s[{S_WS}:{S_WS+3}], s{sU} offen{SF}
        buffer_store_dwordx4 {vr(UR+4,4)}, v{UT_+2}, s[{S_WS}:{S_WS+3}], s{S_T+1} offen{SF}
        {load_nonce(vNon)}
        s_cmp_lg_u32 s{S_RB}, 0
        s_cbranch_scc1 {lz}
        v_mov_b32 v{LD}, 0
        v_mov_b32 v{LD+1}, 0
        v_mov_b32 v{LD+2}, 0
        v_mov_b32 v{LD+3}, 0
        s_sub_u32 s{sU}, s{sU}, 128
        s_sub_u32 s{S_T+1}, s{S_T+1}, 128
        buffer_store_dwordx4 {vr(LD,4)}, v{UT_+2}, s[{S_WS}:{S_WS+3}], s{sU} offen{SF}
        buffer_store_dwordx4 {vr(LD,4)}, v{UT_+2}, s[{S_WS}:{S_WS+3}], s{S_T+1} offen{SF}
        {lz}:
        """)
    def fu_publish():
        get_nonce(vNon, 63)
        lp = a.lab("Lfu")
        a(f"""
        v_mov_b32 v{vNon}, s{S_NONCE}
        s_cmp_lg_u32 s{S_BW}, 0
        s_cbranch_scc1 {lp}
        s_mov_b64 exec, 1
        buffer_store_dword v{vNon}, off, s[{S_WS}:{S_WS+3}], s{sFl} sc1
        s_mov_b64 exec, -1
        {lp}:
        """)
    def partial_write():
        a(f"""
        v_add_u32 v{T}, s{S_PRIV}, v{vWl}
        v_mov_b32 v{BF+16}, 0
        v_mov_b32 v{BF+17}, 0
        v_mov_b32 v{BF+18}, 0
        v_mov_b32 v{BF+19}, 0
        s_nop 6
        """)
        for k in range(4): a(f"ds_write_b128 v{T}, {vr(ACC+4*k,4)} offset:{1024*k}")
        for i in range(32): a(f"v_mov_b32 v{CA[0]+i}, 0")
    def expand(mid):
        for i, o in enumerate([0, PRIVB]):
            for k in range(2): a(f"ds_read_b128 {vr(Gs+8*i+4*k,4)}, v{vWw} offset:{o + 1024*k}")
        mid()
        a("s_waitcnt lgkmcnt(0)")
        for k in range(8): a(f"v_add_f32 v{Gs+k}, v{Gs+k}, v{Gs+8+k}")
        l3 = a.lab("Lkx"); l4 = a.lab("Lkx")
        wr = lambda reg, beta: f"ds_write_b128 v{vG}, {vr(reg,4)} offset:{KPLL + 512 + 256*beta}"
        a(f"""
        s_cmp_eq_u32 s{S_NH}, 0
        s_cbranch_scc0 {l3}
        v_mov_b32 v{T+4}, s{sDS}
        v_cmp_eq_u32 vcc, 0, v0
        s_nop 1
        v_cndmask_b32 v{T+4}, 0, v{T+4}, vcc
        v_add_f32 v{Gs}, v{Gs}, v{T+4}
        """)
        for k in range(4): a(f"v_cvt_pk_bf16_f32 v{BF+k}, v{Gs+7-2*k}, v{Gs+6-2*k}")
        a(wr(BF, 0)); a(wr(BF + 16, -1)); a(wr(BF + 16, -2))
        a(f"""
        s_branch {l4}
        {l3}:
        v_and_b32 v{T+4}, 1, v0
        v_cmp_eq_u32 vcc, 0, v{T+4}
        v_cvt_pk_bf16_f32 v{BF}, v{Gs+2}, v{Gs+2}
        v_cvt_pk_bf16_f32 v{BF+1}, v{Gs+1}, v{Gs+1}
        v_cvt_pk_bf16_f32 v{BF+2}, v{Gs+1}, v{Gs}
        v_cvt_pk_bf16_f32 v{BF+3}, v{Gs}, v{Gs}
        """)
        for beta in (2, 3):
            g0 = Gs + 3 + 2 * (beta - 2); g8 = g0 + 1; R = BF + 4 * (beta - 1)
            a(f"""
            v_cndmask_b32 v{T+4}, v{g8}, v{g0}, vcc
            v_cvt_pk_bf16_f32 v{R}, v{g8}, v{g8}
            v_cvt_pk_bf16_f32 v{R+1}, v{g8}, v{T+4}
            v_cvt_pk_bf16_f32 v{R+2}, v{g0}, v{g0}
            v_cvt_pk_bf16_f32 v{R+3}, v{g0}, v{g0}
            """)
        for beta in (1, 2, 3): a(wr(BF + 4 * (beta - 1), beta))
        a(f"{l4}:")
    def fu_poll():
        a(f"""
        s_mov_b32 exec_hi, 0
        s_bitcmp1_b32 s{S_NH}, 0
        s_mov_b32 s{S_T+2}, 0xffff
        s_cselect_b32 s{S_T+2}, 0xffff8000, s{S_T+2}
        s_mov_b32 exec_lo, s{S_T+2}
        buffer_load_dword v{T+1}, v{vFu}, s[{S_WS}:{S_WS+3}], 0 offen sc1
        s_mov_b64 exec, -1
        """)
        vm.issue("pu")
    def wloads():
        lok = a.lab("Lok")
        a(f"""
        s_mov_b32 exec_hi, 0
        s_mov_b32 exec_lo, s{S_T+2}
        s_waitcnt vmcnt({vm.wait_for("pu")})
        v_cmp_ne_u32 vcc, s{S_NONCE}, v{T+1}
        s_cbranch_vccz {lok}
        """)
        poll(vFu, T + 1, 4, 0)
        a(f"{lok}:\ns_mov_b64 exec, -1")
        for g in range(2):
            a(f"buffer_load_dwordx2 {vr(LD+8*g+2,2)}, v{vWl}, s[{S_WS}:{S_WS+3}], s{sUw} offen offset:{1024*g}{LF}")
            a(f"buffer_load_dwordx4 {vr(LD+8*g+4,4)}, v{vWl}, s[{S_WS}:{S_WS+3}], s{sUw} offen offset:{1024*g+8}{LF}")
        for _ in range(4): vm.issue("wl")
    def hint():
        lh = a.lab("Lh")
        a(f"""
        s_sub_u32 s{S_T+5}, s2, 32
        s_lshl_b32 s{S_T+6}, s{S_BW}, 5
        s_add_u32 s{S_T+6}, s{S_T+6}, s{S_T+5}
        s_lshl_b32 s{S_T+5}, s{S_T+5}, 7
        s_add_u32 s{S_T+5}, s{S_T+5}, {FH}
        s_cmp_ge_u32 s{S_T+6}, 32
        s_cbranch_scc1 {lh}
        s_mov_b64 exec, 1
        buffer_store_dword v{vNon}, off, s[{S_WS}:{S_WS+3}], s{S_T+5} sc1
        s_mov_b64 exec, -1
        {lh}:
        """)
    def windows_valu():
        a("s_waitcnt vmcnt(0)")
        for g in range(2):
            d = lambda k: LD + 8 * g + 4 + k
            o = C1 + 12 * g
            for k in range(4): a(f"v_alignbit_b32 v{o+k}, v{d(k)}, v{d(k-1)}, 16")
            for k in range(4): a(f"v_mov_b32 v{o+4+k}, v{d(k-1)}")
            a(f"v_alignbit_b32 v{o+8}, v{d(-1)}, v{d(-2)}, 16")
            for k in range(1, 4): a(f"v_mov_b32 v{o+8+k}, v{o+k-1}")
    def windows_write():
        a(f"ds_write_b32 v{vZ}, v{BF+16}")
        for g in range(2):
            a(f"ds_write_b128 v{vWw}, {vr(LD+8*g+4,4)} offset:{64 + 1024*g}")
            for c in range(1, 4): a(f"ds_write_b128 v{vWw}, {vr(C1+12*g+4*(c-1),4)} offset:{64 + 1024*g + c*S1}")
    work = {k: (lambda k=k: valu(k, 6)) for k in range(6)}
    work[5] = lambda: (fu_poll(), valu(5, 6))
    work[7] = lambda: (wloads(),)
    m0priv(); emit(rw0); afr(); emit(cw0); bfr(0)
    for g in pre2: emit(g(True))
    mfm(0, [])
    stamp(1)
    vm = Q(63)
    nxt = first[NA]
    for s in range(NBAR):
        tgt = s if s < NBAR - 1 else NS - 1
        w = []
        if s >= NA: w.append(f"vmcnt({vm.wait_for(('d', tgt))})")
        if w: a("s_waitcnt " + " ".join(w))
        a("s_barrier")
        if s == 0: ustores()
        if s == NA: fu_publish()
        lim = min(28, 14 + first[s])
        while nxt < lim:
            for t in dma(nxt): a(t); vm.issue(("d", slot_of[nxt]))
            nxt += 1
        if s in work: work[s]()
    stamp(2)
    fine = OPT.get('fine')
    if fine: stamp_save(2, 3)
    m0priv(); emit(rw1); afr(); emit(cw1); bfr(1)
    if fine: stamp(0)
    hint()
    windows_valu()
    if fine: stamp(1)
    mfm(1, [])
    partial_write()
    if fine: stamp(2)
    pair_signal(1)
    pair_wait(1)
    if fine: stamp(3)
    expand(lambda: pair_signal(2))
    pair_wait(2)
    if fine: stamp(4)
    windows_write()
    pair_signal(3)
    pair_wait(3)
    if fine: stamp(5); stamp_save(4, 6)
    if OPT.get('late'): lds_wait(vSyB, 44, 4, vSg, 64)
    stamp(3)
    FR = [120, 152]
    def reads(buf, dm):
        ins = []
        R = FR[buf]
        for sg in range(2):
            for k_ in range(2):
                for i2 in range(2):
                    ins.append(f"ds_read_b64 {vr(R + (2*sg+k_)*4 + 2*i2, 2)}, v{vAa} offset:{sg*2048 + 64*dm + 32*(1-k_) + 8*i2}")
        for xo in range(2):
            for k_ in range(2):
                ins.append(f"ds_read_b128 {vr(R + 16 + (2*xo+k_)*4, 4)}, v{vXa_} offset:{KPLL + 2*k_*SP + 512*xo + 16*(2-dm)}")
        return [ins[k] for k in [0, 1, 8, 10, 4, 5, 2, 3, 9, 11, 6, 7]]
    def mf(buf, fill):
        R = FR[buf]
        A = lambda sg, k_: vr(R + (2*sg+k_)*4, 4)
        Xf = lambda xo, k_: vr(R + 16 + (2*xo+k_)*4, 4)
        o = []
        for k_ in range(2):
            o.append(f"{MFMA} {vr(CA[0],16)}, {A(0,k_)}, {Xf(0,k_)}, {vr(CA[0],16)}")
            o.append(f"{MFMA} {vr(CA[1],16)}, {A(0,k_)}, {Xf(1,k_)}, {vr(CA[1],16)}")
            o.append(f"{MFMA} {vr(CA[1],16)}, {A(1,k_)}, {Xf(0,k_)}, {vr(CA[1],16)}")
        for k, m in enumerate(o):
            a(m)
            for t in fill[3*k:3*k+3]: a(t)
    for r in reads(0, 0): a(r)
    a(f"s_mov_b32 s{sIt}, 0")
    loop = a.lab("Lcv")
    a(f"{loop}:\ns_waitcnt lgkmcnt(0)")
    mf(0, reads(1, 1))
    a("s_waitcnt lgkmcnt(0)")
    mf(1, reads(0, 2) + [f"v_add_u32 v{vAa}, 128, v{vAa}", f"v_subrev_u32 v{vXa_}, 32, v{vXa_}", f"s_add_u32 s{sIt}, s{sIt}, 1", f"s_cmp_lt_u32 s{sIt}, 8"])
    a(f"s_cbranch_scc1 {loop}")
    stamp(4)
    a("s_setprio 3")
    l1 = a.lab("Lcx"); l2 = a.lab("Lcx")
    F = 16
    pair_signal(4)
    a(f"""
    s_xor_b32 s{S_T+6}, s{S_BW}, 1
    s_mul_i32 s{S_T+6}, s{S_T+6}, {PRIVB}
    s_add_u32 s{S_T+6}, s{S_T+6}, {PRIV0}
    v_add_u32 v{T+2}, s{S_T+6}, v{vWl}
    v_and_b32 v{T+3}, 31, v0
    v_lshlrev_b32 v{T+3}, 6, v{T+3}
    v_lshrrev_b32 v{T+4}, 5, v0
    v_lshl_add_u32 v{T+3}, v{T+4}, 5, v{T+3}
    v_add_u32 v{T+3}, s{S_PRIV}, v{T+3}
    s_lshl_b32 s{sU}, s{sCh}, 12
    s_lshl_b32 s{S_T+5}, s{S_NH}, 11
    s_add_u32 s{sU}, s{sU}, s{S_T+5}
    s_add_u32 s{sU}, s{sU}, {YTB}
    s_lshl_b32 s{sFl}, s{sD}, 5
    s_add_u32 s{sFl}, s{sFl}, {FY}
    """)
    pair_wait(4)
    a(f"s_cmp_eq_u32 s{S_NH}, 0\ns_cbranch_scc1 {l1}")
    for k in range(4): a(f"ds_write_b128 v{T}, {vr(CA[0]+4*k,4)} offset:{1024*k}")
    for k in range(16): a(f"v_mov_b32 v{CA[0]+k}, v{CA[1]+k}")
    a(f"s_branch {l2}\n{l1}:")
    for k in range(4): a(f"ds_write_b128 v{T}, {vr(CA[1]+4*k,4)} offset:{1024*k}")
    a(f"{l2}:")
    pair_signal(5)
    pair_wait(5)
    for k in range(4): a(f"ds_read_b128 {vr(F+4*k,4)}, v{T+2} offset:{1024*k}")
    a("s_waitcnt lgkmcnt(0)")
    for k in range(16): a(f"v_add_f32 v{F+k}, v{F+k}, v{CA[0]+k}")
    for k in range(8): a(f"v_cvt_pk_bf16_f32 v{F+k}, v{F+2*k}, v{F+2*k+1}")
    a(f"""
    ds_write_b128 v{T+3}, {vr(F,4)} offset:4096
    ds_write_b128 v{T+3}, {vr(F+4,4)} offset:4112
    ds_read_b128 {vr(F+8,4)}, v{T} offset:4096
    ds_read_b128 {vr(F+12,4)}, v{T} offset:5120
    s_waitcnt lgkmcnt(1)
    buffer_store_dwordx4 {vr(F+8,4)}, v{vWl}, s[{S_WS}:{S_WS+3}], s{sU} offen{SF}
    s_waitcnt lgkmcnt(0)
    buffer_store_dwordx4 {vr(F+12,4)}, v{vWl}, s[{S_WS}:{S_WS+3}], s{sU} offen offset:1024{SF}
    """)
    group_publish(C_PY, sFl, sLast, vSyB, T + 4)
    lds_wait(vSyB, C_GD, 4, vSg)
    loop = a.lab("Lwo")
    a(f"""
    v_lshrrev_b32 v{T}, 3, v0
    v_and_b32 v{T+1}, 7, v0
    v_bfe_u32 v{T+2}, v0, 4, 1
    v_lshlrev_b32 v{T+2}, 2, v{T+2}
    v_xor_b32 v{T+1}, v{T+1}, v{T+2}
    v_lshlrev_b32 v{T+1}, 4, v{T+1}
    v_mul_u32_u24 v{T+3}, 896, v{T}
    v_add_u32 v{T+3}, v{T+3}, v{T+1}
    v_mov_b32 v{T}, 0
    v_mov_b32 v{T+1}, 0
    v_lshlrev_b32 v{T+2}, 3, v0
    v_add_u32 v{T+2}, {WOL + 448*128}, v{T+2}
    ds_write_b64 v{T+2}, {vr(T,2)}
    s_mul_i32 s{S_T+5}, s{S_BW}, {112*896}
    s_add_u32 s{S_T+5}, s{S_T+5}, s{sWb}
    s_mul_i32 s{S_T+6}, s{S_BW}, {14*1024}
    s_add_u32 s{S_T+6}, s{S_T+6}, {WOL}
    s_mov_b32 s{sIt}, 0
    {loop}:
    s_mov_b32 m0, s{S_T+6}
    s_add_u32 s{S_T+6}, s{S_T+6}, 1024
    buffer_load_dwordx4 v{T+3}, s[{S_WO}:{S_WO+3}], s{S_T+5} offen lds
    s_add_u32 s{S_T+5}, s{S_T+5}, {8*896}
    s_add_u32 s{sIt}, s{sIt}, 1
    s_cmp_lt_u32 s{sIt}, 14
    s_cbranch_scc1 {loop}
    v_add_u32 v{vFu}, {FY - FU}, v{vFu}
    v_mov_b32 v{T}, 1
    s_waitcnt vmcnt(0)
    s_mov_b64 exec, 1
    ds_add_u32 v{vSyB}, v{T} offset:{C_WU}
    s_mov_b64 exec, -1
    """)
    group_wait(C_WY, sLast, 3, vFu, vSyB, T + 5, 16)
    R = 16; LO = 4096
    a(f"""
    s_lshl_b32 s{sU}, s{S_J}, 18
    s_lshl_b32 s{S_T+5}, s{S_RB}, 7
    s_add_u32 s{sU}, s{sU}, s{S_T+5}
    s_lshl_b32 s{S_T+5}, s{S_BW}, 5
    s_add_u32 s{sU}, s{sU}, s{S_T+5}
    s_add_u32 s{sU}, s{sU}, {YTB}
    s_add_u32 s{S_T+5}, s{sU}, {32*4096}
    v_lshrrev_b32 v{T}, 1, v0
    v_lshlrev_b32 v{T}, 12, v{T}
    v_and_b32 v{T+1}, 1, v0
    v_lshl_add_u32 v{T}, v{T+1}, 4, v{T}
    buffer_load_dwordx4 {vr(R,4)}, v{T}, s[{S_WS}:{S_WS+3}], s{sU} offen{LF}
    buffer_load_dwordx4 {vr(R+4,4)}, v{T}, s[{S_WS}:{S_WS+3}], s{S_T+5} offen{LF}
    s_lshl_b32 s{sU}, s{S_RB}, 2
    s_add_u32 s{sU}, s{sU}, s{S_BW}
    s_mul_i32 s{sU}, s{sU}, {16*1792}
    s_add_u32 s{sU}, s{sU}, s{sWb}
    s_add_u32 s{sU}, s{sU}, 896
    s_add_u32 s{S_T+5}, s{sU}, {8*1792}
    """)
    tr_addr(T, 1792)
    a("s_waitcnt vmcnt(0)")
    tr_lds(T, R, LO)
    OSF = OPT.get('osf', '').replace('_', ' ')
    a(f"""
    s_waitcnt lgkmcnt(1)
    buffer_store_dwordx4 {vr(R,4)}, v{T+2}, s[{S_OUT}:{S_OUT+3}], s{sU} offen{OSF}
    s_waitcnt lgkmcnt(0)
    buffer_store_dwordx4 {vr(R+4,4)}, v{T+2}, s[{S_OUT}:{S_OUT+3}], s{S_T+5} offen{OSF}
    """)
    stamp(5)
    stamp_save(0, 6)
    outproj()

def outproj():
    T = 6
    vWr, vFa, vSt, vWl, vAd = 12, 13, 14, 207, 15
    ACC = 32; B0 = 48
    sO, sTodo, sNeed, sHh, sA, sOut = S_T, S_T + 1, S_T + 2, S_T + 3, S_T + 4, S_T + 5
    a(f"""
    v_lshrrev_b32 v{T+1}, 5, v0
    v_bfe_u32 v{T+2}, v0, 2, 2
    v_lshl_add_u32 v{vWr}, v{T+1}, 3, v{T+2}
    v_lshlrev_b32 v{vWr}, 7, v{vWr}
    v_lshrrev_b32 v{T+2}, 1, v{T+2}
    v_xor_b32 v{T+2}, s{S_NH}, v{T+2}
    v_lshl_add_u32 v{vWr}, v{T+2}, 6, v{vWr}
    v_and_b32 v{T+2}, 1, v0
    v_lshl_add_u32 v{vWr}, v{T+2}, 5, v{vWr}
    v_bfe_u32 v{T+2}, v0, 4, 1
    v_lshl_add_u32 v{vWr}, v{T+2}, 4, v{vWr}
    v_bfe_u32 v{T+2}, v0, 1, 1
    v_lshl_add_u32 v{vWr}, v{T+2}, 3, v{vWr}
    v_add_u32 v{vWr}, {WOL}, v{vWr}
    s_lshl_b32 s{sO}, s{S_RB}, 1
    s_add_u32 s{sO}, s{sO}, s{S_C}
    s_mul_i32 s{sOut}, s{sO}, {32*1792}
    s_add_u32 s{sOut}, s{sOut}, s{sWb}
    s_lshl_b32 s{sA}, s{S_NH}, 6
    s_add_u32 s{sOut}, s{sOut}, s{sA}
    s_lshl_b32 s{sA}, s{sO}, 11
    s_add_u32 s{sA}, s{sA}, {FO}
    v_lshlrev_b32 v{vFa}, 7, v0
    v_add_u32 v{vFa}, s{sA}, v{vFa}
    s_lshl_b32 s{sO}, s{sO}, 15
    s_add_u32 s{sO}, s{sO}, {OBUF}
    v_and_b32 v{T}, 31, v0
    v_mul_u32_u24 v{vSt}, 1792, v{T}
    v_lshl_add_u32 v{vSt}, v{T+1}, 5, v{vSt}
    s_mov_b32 s{sNeed}, 0xffff
    s_mov_b32 s{sTodo}, 0
    """)
    for k in range(16): a(f"v_mov_b32 v{ACC+k}, 0")
    a("s_setprio 0")
    lds_wait(vSyB, C_WU, 4, vSg, 4)
    lds_wait(vSyB, C_AH, int(OPT.get('ah', 13)), vSg, 16)
    stamp(0)
    LP = a.lab("Lop"); LR = a.lab("Lor"); LD_ = a.lab("Lod")
    W = [a.lab("Low") for _ in range(9)]
    a(f"""
    s_setprio 3
    s_mov_b32 s{S3}, 0
    {LP}:
    s_mov_b32 exec_hi, 0
    s_mov_b32 exec_lo, s{sNeed}
    buffer_load_dword v{T}, v{vFa}, s[{S_WS}:{S_WS+3}], 0 offen sc1
    s_add_u32 s{S3}, s{S3}, 1
    s_cmp_gt_u32 s{S3}, {SPIN_MAX}
    s_cbranch_scc1 {LD_}
    s_waitcnt vmcnt(0)
    v_cmp_eq_u32 vcc, s{S_NONCE}, v{T}
    s_mov_b64 exec, -1
    s_mov_b32 s{sTodo}, vcc_lo
    s_cmp_lg_u32 s{sTodo}, 0
    s_cbranch_scc1 {LR}
    s_sleep {OPT.get('osl', 2)}
    s_branch {LP}
    {LR}:
    s_andn2_b32 s{sNeed}, s{sNeed}, s{sTodo}
    """)
    for k in range(8):
        R = B0 + 16 * k
        if k: a(f"s_cmp_eq_u32 s{sTodo}, 0\ns_cbranch_scc1 {W[k]}")
        a(f"""
        s_ff1_i32_b32 s{sHh}, s{sTodo}
        s_bitset0_b32 s{sTodo}, s{sHh}
        s_lshl_b32 s{sA}, s{sHh}, 11
        s_add_u32 s{sA}, s{sA}, s{sO}
        s_mul_i32 s{sHh}, s{sHh}, {28*128}
        buffer_load_dwordx4 {vr(R,4)}, v{vWl}, s[{S_WS}:{S_WS+3}], s{sA} offen{LF}
        buffer_load_dwordx4 {vr(R+4,4)}, v{vWl}, s[{S_WS}:{S_WS+3}], s{sA} offen offset:1024{LF}
        v_add_u32 v{vAd}, s{sHh}, v{vWr}
        """)
        for f in range(2):
            for i2 in range(2): a(f"ds_read_b64_tr_b16 {vr(R+8+4*f+2*i2,2)}, v{vAd} offset:{(16*f+4*i2)*128}")
    for k in range(8, 0, -1):
        R = B0 + 16 * (k - 1)
        a(f"""
        {W[k]}:
        s_waitcnt vmcnt(0) lgkmcnt(0)
        {MFMA} {vr(ACC,16)}, {vr(R+8,4)}, {vr(R,4)}, {vr(ACC,16)}
        {MFMA} {vr(ACC,16)}, {vr(R+12,4)}, {vr(R+4,4)}, {vr(ACC,16)}
        """)
    a(f"""
    s_cmp_lg_u32 s{sTodo}, 0
    s_cbranch_scc1 {LR}
    s_cmp_lg_u32 s{sNeed}, 0
    s_cbranch_scc1 {LP}
    {LD_}:
    s_mov_b64 exec, -1
    s_nop 7
    """)
    stamp(1)
    OSF = OPT.get('osf', '').replace('_', ' ')
    for k in range(8): a(f"v_cvt_pk_bf16_f32 v{ACC+k}, v{ACC+2*k}, v{ACC+2*k+1}")
    a(f"buffer_store_dwordx4 {vr(ACC,4)}, v{vSt}, s[{S_OUT}:{S_OUT+3}], s{sOut} offen{OSF}")
    a(f"buffer_store_dwordx4 {vr(ACC+4,4)}, v{vSt}, s[{S_OUT}:{S_OUT+3}], s{sOut} offen offset:16{OSF}")
    if STAMPS: a("s_waitcnt vmcnt(0)")
    stamp(2)
    stamp_save(1, 3)
    stamp_flush('B')
    a("s_endpgm")
```

```python
import sys, math, struct
STAMPS = '--stamps' in sys.argv
OPT = dict(x.split('=') for x in sys.argv[2:] if '=' in x)
CS = (28 ** -0.5) * math.log2(math.e)
LOG2E = math.log2(math.e)
KN = "concat_heads__mha_block__ssm_conv_s4d__prompt_kernel"

class Asm:
    def __init__(self): self.lines = []; self.uid = 0
    def __call__(self, s):
        for l in s.split("\n"):
            l = l.strip()
            if not l: continue
            self.lines.append(l if (l.endswith(":") and " " not in l) else "    " + l)
    def lab(self, p="L"):
        self.uid += 1
        return f"{p}_{self.uid}"
    def text(self): return "\n".join(self.lines) + "\n"
a = Asm()
def vr(r, n=1): return f"v{r}" if n == 1 else f"v[{r}:{r+n-1}]"
def sr(r, n=1): return f"s{r}" if n == 1 else f"s[{r}:{r+n-1}]"
def f32(x): return hex(struct.unpack("<I", struct.pack("<f", x))[0])
MFMA = "v_mfma_f32_32x32x16_bf16"

QBUF, KBUF, VBUF, OBUF, UTB, YTB, FLG, STAMP = 0, 0x200000, 0x400000, 0x5E0000, 0x800000, 0xA00000, 0xC00000, 0xF00000
WS_SIZE = 0x1000000
TILEB = 28672
UROW = 4224
F1 = FLG
FU = FLG + 0x1C000
FY = FU + 0x1C000
FH = FY + 0x7000
KA_X, KA_WQKV, KA_WO, KA_U, KA_LOGA, KA_AIM, KA_CR, KA_CI, KA_LOGDT, KA_DSKIP, KA_OUT, KA_DBG, KA_WS = [8 * i for i in range(13)]

S3 = 3
S_WS, S_X, S_W, S_WO, S_U, S_OUT, S_DBG, S_KV = 4, 8, 12, 16, 20, 24, 28, 32
S_WAVE, S_J, S_RB, S_H, S_B, S_I, S_BW, S_C, S_NH, S_PRIV, S_NONCE, sD, sLD, sDS = range(36, 50)
S_T = 50
S_KA = 64
XO = [76 + i for i in range(7)]; WO_ = [83 + i for i in range(7)]
sM, sMB, sRot, sXb, sWb, sF1 = 90, 91, 92, 93, 94, 95
def kp(off): return f"s[{S_KA + off//4}:{S_KA + off//4 + 1}]"

PRIVB = 8704
SP = 1568
KPLB = 4 * SP
KPLL = 0
PRIV0 = 2 * KPLB
RING = PRIV0 + 4 * PRIVB
XCH = RING
WOL = RING + 49152
SYNC = RING + 114688
C_GD, C_PAIR, C_WU, C_PY, C_WY = 0, 16, 32, 36, 40
SF = " sc1"
LF = " sc1"
SPIN_MAX = 50000

VST = 253
def stamp(idx):
    if STAMPS: a(f"{'s_memtime' if OPT.get('cyc') else 's_memrealtime'} s[{64+2*idx}:{65+2*idx}]")
def stamp_save(bank, n):
    if not STAMPS: return
    a("s_waitcnt lgkmcnt(0)")
    for i in range(n): a(f"v_writelane_b32 v{VST}, s{64+2*i}, {bank*6+i}")
def stamp_flush(role=None):
    if not STAMPS: return
    pr = OPT.get('probe')
    if pr:
        if pr[0] != role: return
        L = a.lab("Lpr"); D = a.lab("Lpr")
        a(f"""
        s_cmp_lg_u32 s2, {OPT.get('pwg', 100)}
        s_cbranch_scc1 {D}
        v_readlane_b32 s62, v{VST}, {pr[1:] if pr[1:] not in 'nf' else 0}
        {f"s_mov_b32 s62, s{S_NONCE}" if pr[1:] == 'n' else ""}
        {"s_mov_b32 s62, s96" if pr[1:] == 'f' else ""}
        s_add_u32 s62, s62, 4000
        {L}:
        s_memrealtime s[60:61]
        s_waitcnt lgkmcnt(0)
        s_sub_u32 s60, s60, s62
        s_cmp_lt_i32 s60, 0
        s_cbranch_scc1 {L}
        {D}:
        """)
        return
    a(f"v_writelane_b32 v{VST}, s96, 18")
    a(f"s_lshl_b32 s62, s2, 3\ns_add_u32 s62, s62, s{S_WAVE}\ns_lshl_b32 s62, s62, 8\ns_add_u32 s62, s62, {STAMP}")
    a(f"v_lshlrev_b32 v254, 2, v0\nbuffer_store_dword v{VST}, v254, s[{S_WS}:{S_WS+3}], s62 offen")

class Q:
    def __init__(self, cap): self.q = []; self.cap = cap
    def issue(self, tag): self.q.append(tag)
    def wait_for(self, tag):
        idx = max(i for i, t in enumerate(self.q) if t == tag)
        return min(len(self.q) - 1 - idx, self.cap)

def srd(dst, ka_off, size):
    src = S_KA + ka_off // 4
    a(f"s_mov_b32 s{dst}, s{src}\ns_mov_b32 s{dst+1}, s{src+1}\ns_mov_b32 s{dst+2}, {size}\ns_mov_b32 s{dst+3}, 0x00020000")

def load_nonce(vT): return f"buffer_load_dword v{vT}, off, s[{S_DBG}:{S_DBG+3}], 0 sc1"
def get_nonce(vT, cnt=0):
    L = a.lab("Lnon"); D = a.lab("Lnon")
    a(f"""
    s_mov_b32 s{S3}, 0
    s_waitcnt vmcnt({cnt})
    {L}:
    v_readfirstlane_b32 s{S_NONCE}, v{vT}
    s_add_u32 s{S3}, s{S3}, 1
    s_cmp_lg_u32 s{S_NONCE}, 0
    s_cbranch_scc1 {D}
    s_cmp_gt_u32 s{S3}, {SPIN_MAX}
    s_cbranch_scc1 {D}
    s_sleep 8
    {load_nonce(vT)}
    s_waitcnt vmcnt(0)
    s_branch {L}
    {D}:
    """)

def poll(vA, vT, sleep, few=6):
    L = a.lab("Lpoll"); D = a.lab("Lpoll")
    a(f"""
    s_mov_b32 s{S3}, 0
    {L}:
    buffer_load_dword v{vT}, v{vA}, s[{S_WS}:{S_WS+3}], 0 offen sc1
    s_add_u32 s{S3}, s{S3}, 1
    s_cmp_gt_u32 s{S3}, {SPIN_MAX}
    s_cbranch_scc1 {D}
    s_waitcnt vmcnt(0)
    v_cmp_ne_u32 vcc, s{S_NONCE}, v{vT}
    s_cbranch_vccz {D}
    s_mov_b64 exec, vcc
    s_bcnt1_i32_b64 s{S_T+13}, vcc
    s_cmp_le_u32 s{S_T+13}, {few}
    s_cbranch_scc1 {L}
    s_sleep {sleep}
    s_branch {L}
    {D}:
    s_mov_b64 exec, -1
    """)

def publish(sOff, vT):
    a(f"""
    v_mov_b32 v{vT}, s{S_NONCE}
    s_waitcnt vmcnt(0)
    s_mov_b64 exec, 1
    buffer_store_dword v{vT}, off, s[{S_WS}:{S_WS+3}], s{sOff} sc1
    s_mov_b64 exec, -1
    """)

def lds_wait(vaddr, off, k, vT, sleep=0):
    L = a.lab("Lpw"); D = a.lab("Lpw")
    a(f"""
    {L}:
    ds_read_b32 v{vT}, v{vaddr} offset:{off}
    s_waitcnt lgkmcnt(0)
    v_readfirstlane_b32 s{S3}, v{vT}
    s_cmp_ge_u32 s{S3}, {k}
    s_cbranch_scc1 {D}
    {f"s_sleep {sleep}" if sleep else ""}
    s_branch {L}
    {D}:
    """)

def group_publish(cnt, sOff, sLast, vSy, vT):
    L = a.lab("Lgp")
    a(f"""
    v_mov_b32 v{vT}, 1
    s_waitcnt vmcnt(0)
    s_mov_b64 exec, 1
    ds_add_rtn_u32 v{vT}, v{vSy}, v{vT} offset:{cnt}
    v_mov_b32 v{vT+1}, s{S_NONCE}
    s_waitcnt lgkmcnt(0)
    v_readfirstlane_b32 s{sLast}, v{vT}
    s_cmp_lg_u32 s{sLast}, 3
    s_cbranch_scc1 {L}
    buffer_store_dword v{vT+1}, off, s[{S_WS}:{S_WS+3}], s{sOff} sc1
    {L}:
    s_mov_b64 exec, -1
    """)

def group_wait(word, sSel, sel, vFa, vSy, vT, sleep):
    L = a.lab("Lgw"); D = a.lab("Lgw")
    a(f"s_cmp_lg_u32 s{sSel}, {sel}\ns_cbranch_scc1 {L}\ns_mov_b32 exec_hi, 0")
    poll(vFa, vT, sleep, 0)
    a(f"""
    v_mov_b32 v{vT}, 1
    s_mov_b64 exec, 1
    ds_write_b32 v{vSy}, v{vT} offset:{word}
    s_mov_b64 exec, -1
    s_branch {D}
    {L}:
    """)
    lds_wait(vSy, word, 1, vT, sleep)
    a(f"{D}:")

stream = []
for c in range(7): stream += [("x", c), ("k", c), ("v", c)]
stream += [("q", c) for c in range(7)]
sizes = [3] * 7 + [2, 2, 2, 1]
NS = len(sizes)
first = [sum(sizes[:i]) for i in range(NS + 1)]
slot_of = {n: s for s in range(NS) for n in range(first[s], first[s + 1])}
NA = int(OPT.get('na', 4))
NBAR = int(OPT.get('nbar', 9))
rpos = lambda n: n % 14
sKP = 100
vXa, vXb, vWa, vWb = 2, 3, 4, 5
def dma(n):
    kind, c = stream[n]
    base = RING + rpos(n) * 8192
    secoff = dict(k=896, v=1792)
    ins = []
    for half in range(2):
        blk = [f"s_add_u32 m0, s{sM}, {base + half * 1024}"]
        if kind == "x":
            blk += ["s_nop 0", f"buffer_load_dwordx4 v{vXa if half == 0 else vXb}, s[{S_X}:{S_X+3}], s{XO[c]} offen lds"]
        elif kind == "q":
            blk += ["s_nop 0", f"buffer_load_dwordx4 v{vWa if half == 0 else vWb}, s[{S_W}:{S_W+3}], s{WO_[c]} offen lds"]
        else:
            blk += [f"s_add_u32 s{sMB}, s{WO_[c]}, {secoff[kind]}" if half == 0 else "s_nop 0",
                    f"buffer_load_dwordx4 v{vWa if half == 0 else vWb}, s[{S_W}:{S_W+3}], s{sMB} offen lds"]
        ins.append("\n".join(blk))
    return ins
def offsets(c):
    a(f"""
    s_lshl_b32 s{XO[c]}, s{sRot}, 7
    s_add_u32 s{XO[c]}, s{XO[c]}, s{sXb}
    s_mul_i32 s{WO_[c]}, s{sRot}, {64*2688}
    s_add_u32 s{WO_[c]}, s{WO_[c]}, s{sWb}
    s_add_u32 s{sRot}, s{sRot}, 1
    s_cmp_eq_u32 s{sRot}, 7
    s_cselect_b32 s{sRot}, 0, s{sRot}
    """)

def touch(v):
    a(f"""
    v_min_u32 v{v}, 6, v0
    v_cmp_eq_u32 vcc, 3, v{v}
    v_lshlrev_b32 v{v}, 21, v{v}
    v_add_u32 v{v}, 0x1d0000, v{v}
    v_add_u32 v{v+1}, 0x20000, v{v}
    v_cndmask_b32 v{v}, v{v}, v{v+1}, vcc
    buffer_load_dword v{v+1}, v{v}, s[{S_WS}:{S_WS+3}], 0 offen sc1
    buffer_load_dword v{v+2}, off, s[{S_DBG}:{S_DBG+3}], 0 offset:128 sc1
    v_and_b32 v{v}, 1, v0
    v_lshlrev_b32 v{v}, 21, v{v}
    buffer_load_dword v{v+3}, v{v}, s[{S_OUT}:{S_OUT+3}], 0 offen sc1
    buffer_load_dword v{v+4}, off, s[{S_WO}:{S_WO+3}], 0
    """)
```

```python
from base import *
C_AX, C_AH = 44, 48

def prologue():
    T = S_T
    if STAMPS: a("s_memrealtime s[96:97]")
    a(f"""
    s_cmp_ge_u32 s2, 256
    s_cbranch_scc1 L_end
    s_load_dwordx16 s[{S_KA}:{S_KA+15}], s[0:1], 0
    s_load_dwordx8 s[{S_KA+16}:{S_KA+23}], s[0:1], 64
    s_load_dwordx2 s[{S_KA+24}:{S_KA+25}], s[0:1], 96
    v_lshrrev_b32 v1, 6, v0
    s_and_b32 s{T}, s2, 7
    s_lshr_b32 s{S_I}, s2, 3
    s_add_u32 s{S_I}, s{S_I}, 28
    s_and_b32 s{S_I}, s{S_I}, 31
    v_readfirstlane_b32 s{S_WAVE}, v1
    v_and_b32 v0, 63, v0
    {'v_mov_b32 v253, -1' if STAMPS else ''}
    s_and_b32 s{T+2}, s{S_I}, 1
    s_lshl_b32 s{S_H}, s{T}, 1
    s_add_u32 s{S_H}, s{S_H}, s{T+2}
    s_lshr_b32 s{S_B}, s2, 4
    v_lshlrev_b32 v6, 2, v0
    v_add_u32 v7, {SYNC}, v6
    v_mov_b32 v8, 0
    ds_write_b32 v7, v8
    s_cmp_ge_u32 s{S_I}, 28
    s_cbranch_scc1 L_idle
    s_and_b32 s{T+2}, s{T}, 1
    s_mul_i32 s{T+2}, s{T+2}, 28
    s_add_u32 s{T+2}, s{T+2}, s{S_I}
    s_lshr_b32 s{S_J}, s{T+2}, 3
    s_and_b32 s{T+2}, s{T+2}, 7
    s_lshr_b32 s{S_RB}, s{T}, 1
    s_lshl_b32 s{S_RB}, s{S_RB}, 3
    s_add_u32 s{S_RB}, s{S_RB}, s{T+2}
    s_and_b32 s{S_BW}, s{S_WAVE}, 3
    s_lshr_b32 s{S_C}, s{S_BW}, 1
    s_and_b32 s{S_NH}, s{S_BW}, 1
    s_lshl_b32 s{sD}, s{S_J}, 5
    s_add_u32 s{sD}, s{sD}, s{S_RB}
    s_lshl_b32 s{sD}, s{sD}, 2
    s_add_u32 s{T+3}, s{sD}, s{S_BW}
    s_lshl_b32 s{T+3}, s{T+3}, 8
    v_add_u32 v6, s{T+3}, v6
    v_lshrrev_b32 v14, 3, v0
    v_and_b32 v15, 7, v0
    s_lshl_b32 s{sM}, s{S_BW}, 4
    v_add_u32 v1, s{sM}, v14
    v_lshrrev_b32 v14, 1, v14
    v_xor_b32 v{vXa}, v15, v14
    v_lshlrev_b32 v{vXa}, 4, v{vXa}
    v_mul_u32_u24 v{vXb}, 896, v1
    v_add_u32 v{vXa}, v{vXa}, v{vXb}
    v_xor_b32 v{vXb}, 64, v{vXa}
    v_add_u32 v{vXb}, {8*896}, v{vXb}
    v_and_b32 v14, 1, v14
    v_lshlrev_b32 v14, 2, v14
    v_xor_b32 v14, v15, v14
    v_lshlrev_b32 v14, 4, v14
    v_mul_u32_u24 v{vWa}, 2688, v1
    v_add_u32 v{vWa}, v{vWa}, v14
    v_add_u32 v{vWb}, {8*2688}, v{vWa}
    s_lshl_b32 s{sM}, s{S_BW}, 11
    s_lshl_b32 s{sMB}, s{S_J}, 1
    s_add_u32 s{sRot}, s{T+2}, s{sMB}
    s_mul_i32 s{sMB}, s{sRot}, 37
    s_lshr_b32 s{sMB}, s{sMB}, 8
    s_mul_i32 s{sMB}, s{sMB}, 7
    s_sub_u32 s{sRot}, s{sRot}, s{sMB}
    {dict(full="", none=f"s_mov_b32 s{sRot}, 0", two=f"s_and_b32 s{sRot}, s{sRot}, 1", four=f"s_and_b32 s{sRot}, s{sRot}, 3")[OPT.get('rot', 'full')]}
    s_mul_i32 s{sXb}, s{S_RB}, {64*896}
    s_lshl_b32 s{sWb}, s{S_J}, 7
    s_cmp_ge_u32 s{S_WAVE}, 4
    s_cbranch_scc1 L_B
    """)

def gemm():
    vXr = [6, 7, 8, 9]; vXh = [245, 246, 247, 248]
    vWlo, vWhi, vKst, vVst = 10, 11, 12, 13
    vT0, vT1, vT2 = 14, 15, 1
    XF, WF = 16, 128
    ACC = dict(k=192, v=208, q=224)
    vSy, vOne, vNon = 240, 241, 243
    sKst, sVst, sV2, sQst, sCS, sA, sB_ = [S_T + i for i in range(7)]
    a("s_setprio 2\ns_waitcnt lgkmcnt(0)")
    srd(S_X, KA_X, 1835008); srd(S_W, KA_WQKV, 1204224); srd(S_WS, KA_WS, WS_SIZE); srd(S_DBG, KA_DBG, 256)
    stamp(0)
    vm = Q(63); lg = Q(15)
    for c in range(NA):
        offsets(c)
        if c == 0: a("s_barrier")
        if OPT.get('hold') and c == int(OPT.get('hold')) - 1: a("s_barrier")
        for n in range(first[c], first[c + 1]):
            for t in dma(n): a(t); vm.issue(("d", c))
        if c == 0:
            a(f"""
            v_and_b32 v{vT0}, 31, v0
            v_lshrrev_b32 v{vT1}, 5, v0
            v_lshrrev_b32 v{vT2}, 1, v{vT0}
            v_and_b32 v{vT2}, 7, v{vT2}
            v_xor_b32 v{vT2}, v{vT2}, v{vT1}
            v_lshlrev_b32 v{vT2}, 4, v{vT2}
            v_lshl_add_u32 v{vXr[0]}, v{vT0}, 7, v{vT2}
            s_lshl_b32 s{sA}, s{S_C}, 12
            v_xor_b32 v{vXr[1]}, 32, v{vXr[0]}
            v_xor_b32 v{vXr[2]}, 64, v{vXr[0]}
            v_xor_b32 v{vXr[3]}, 96, v{vXr[0]}
            s_add_u32 s{sA}, s{sA}, {RING}
            v_add_u32 v{vXr[0]}, s{sA}, v{vXr[0]}
            v_add_u32 v{vXr[1]}, s{sA}, v{vXr[1]}
            v_add_u32 v{vXr[2]}, s{sA}, v{vXr[2]}
            v_add_u32 v{vXr[3]}, s{sA}, v{vXr[3]}
            v_add_u32 v{vXh[0]}, 0x10000, v{vXr[0]}
            v_add_u32 v{vXh[1]}, 0x10000, v{vXr[1]}
            v_add_u32 v{vXh[2]}, 0x10000, v{vXr[2]}
            v_add_u32 v{vXh[3]}, 0x10000, v{vXr[3]}
            v_bfe_u32 v{vT2}, v0, 2, 2
            v_lshl_add_u32 v{vWlo}, v{vT1}, 3, v{vT2}
            v_lshlrev_b32 v{vWlo}, 7, v{vWlo}
            v_lshrrev_b32 v{vT2}, 1, v{vT2}
            v_xor_b32 v{vT2}, s{S_NH}, v{vT2}
            v_lshl_add_u32 v{vWlo}, v{vT2}, 6, v{vWlo}
            v_bfe_u32 v{vT2}, v0, 4, 1
            v_lshl_add_u32 v{vWlo}, v{vT2}, 5, v{vWlo}
            v_and_b32 v{vT2}, 1, v0
            v_lshl_add_u32 v{vWlo}, v{vT2}, 4, v{vWlo}
            v_bfe_u32 v{vT2}, v0, 1, 1
            v_lshl_add_u32 v{vWlo}, v{vT2}, 3, v{vWlo}
            v_add_u32 v{vWlo}, {RING}, v{vWlo}
            v_add_u32 v{vWhi}, 0x10000, v{vWlo}
            """)
        if c == 1:
            a(f"""
            v_lshlrev_b32 v{vKst}, 4, v0
            v_and_b32 v{vVst}, 0x13, v{vT0}
            v_bfe_u32 v{vT2}, v{vT0}, 2, 1
            v_lshl_add_u32 v{vVst}, v{vT2}, 3, v{vVst}
            v_bfe_u32 v{vT2}, v{vT0}, 3, 1
            v_lshl_add_u32 v{vVst}, v{vT2}, 2, v{vVst}
            v_lshlrev_b32 v{vVst}, 4, v{vVst}
            v_mul_u32_u24 v{vT2}, 7168, v{vT1}
            v_add_u32 v{vVst}, v{vVst}, v{vT2}
            s_lshl_b32 s{sA}, s{S_RB}, 1
            s_add_u32 s{sA}, s{sA}, s{S_C}
            s_lshl_b32 s{sB_}, s{S_J}, 1
            s_add_u32 s{sB_}, s{sB_}, s{S_NH}
            s_lshl_b32 s{sF1}, s{sB_}, 6
            s_add_u32 s{sF1}, s{sF1}, s{sA}
            s_lshl_b32 s{sF1}, s{sF1}, 7
            s_add_u32 s{sF1}, s{sF1}, {F1}
            s_mul_i32 s{sA}, s{sA}, {TILEB}
            s_lshl_b32 s{sQst}, s{sB_}, 11
            s_add_u32 s{sQst}, s{sQst}, s{sA}
            s_add_u32 s{sKst}, s{sQst}, {KBUF}
            s_lshl_b32 s{sVst}, s{sB_}, 9
            s_add_u32 s{sVst}, s{sVst}, s{sA}
            s_add_u32 s{sVst}, s{sVst}, {VBUF}
            s_add_u32 s{sV2}, s{sVst}, 14336
            s_mov_b32 s{sCS}, {f32(CS)}
            v_mov_b32 v{vSy}, {SYNC}
            v_mov_b32 v{vOne}, 1
            """)
    def frags(s):
        w = [n for n in range(first[s], first[s + 1]) if stream[n][0] != "x"]
        if s < 7: return [(stream[n][0], stream[n][1], kp_, n) for kp_ in range(4) for n in w]
        return [(stream[n][0], stream[n][1], kp_, n) for n in w for kp_ in range(4)]
    def reads(s):
        buf = WF + (s % 2) * 32
        out = []
        for fi, (kind, c, k_, n) in enumerate(frags(s)):
            if kind == "k":
                off = ((n - 1) % 14) * 8192
                out.append(f"ds_read_b128 {vr(XF + (4 * c + k_) * 4, 4)}, v{(vXh if off >= 65536 else vXr)[k_]} offset:{off & 0xffff}")
            off = (n % 14) * 8192
            va = vWhi if off >= 65536 else vWlo
            for i2 in range(2):
                out.append(f"ds_read_b64_tr_b16 {vr(buf + fi * 4 + i2 * 2, 2)}, v{va} offset:{(off & 0xffff) + k_ * 2048 + i2 * 512}")
        return out
    def mfmas(s):
        buf = WF + (s % 2) * 32
        ins = []
        for fi, (kind, c, k_, n) in enumerate(frags(s)):
            acc = ACC[kind]
            w = vr(buf + fi * 4, 4); x = vr(XF + (4 * c + k_) * 4, 4)
            cc = "0" if (c == 0 and k_ == 0) else vr(acc, 16)
            ins.append(f"{MFMA} {vr(acc,16)}, {x}, {w}, {cc}" if kind == "v" else f"{MFMA} {vr(acc,16)}, {w}, {x}, {cc}")
        return ins
    def epi(kind):
        acc = ACC[kind]
        ins = []
        if kind == "k": ins += [f"v_mul_f32 v{acc+i}, s{sCS}, v{acc+i}" for i in range(16)]
        ins += [f"v_cvt_pk_bf16_f32 v{acc+i}, v{acc+2*i}, v{acc+2*i+1}" for i in range(8)]
        if kind == "v":
            ins.append(f"buffer_store_dwordx4 {vr(acc,4)}, v{vVst}, s[{S_WS}:{S_WS+3}], s{sVst} offen{SF}")
            ins.append(f"buffer_store_dwordx4 {vr(acc+4,4)}, v{vVst}, s[{S_WS}:{S_WS+3}], s{sV2} offen{SF}")
        else:
            so = sKst if kind == "k" else sQst
            ins.append(f"buffer_store_dwordx4 {vr(acc,4)}, v{vKst}, s[{S_WS}:{S_WS+3}], s{so} offen{SF}")
            ins.append(f"buffer_store_dwordx4 {vr(acc+4,4)}, v{vKst}, s[{S_WS}:{S_WS+3}], s{so} offen offset:1024{SF}")
        return ins
    SS = [int(x) for x in OPT.get('ss', '0,3,7,10').split(',')]
    for s in range(NS):
        a(f"; ---- slot {s}")
        a(f"s_waitcnt vmcnt({vm.wait_for(('d', s))}) lgkmcnt(0)" if s < NA else "s_waitcnt lgkmcnt(0)")
        if s < NBAR: a("s_barrier")
        if s in SS: stamp(1 + SS.index(s))
        m = mfmas(s - 1) if s >= 1 else []
        rd = reads(s)
        ep = []
        if s == 8: ep = epi("k")
        if s == 9: ep = epi("v")
        if s == 5: ep = [load_nonce(vNon)]
        if OPT.get('abl') == 'nocomp': continue
        if OPT.get('abl') == 'nomfma': m = []
        if not m:
            for t in rd: a(t)
            continue
        n = len(m)
        gaps = [[] for _ in range(n)]
        for k, r in enumerate(rd): gaps[min(k // 3, n - 1)].append(r)
        for k, r in enumerate(ep): gaps[2 + k * (n - 2) // len(ep)].append(r)
        for k in range(n):
            a(m[k])
            for t in gaps[k]: a(t)
    a("s_waitcnt lgkmcnt(0)")
    for t in mfmas(NS - 1): a(t)
    a(f"""
    s_mov_b64 exec, 1
    ds_add_u32 v{vSy}, v{vOne} offset:{C_GD}
    s_mov_b64 exec, -1
    """)
    get_nonce(vNon, 4)
    a("s_nop 3")
    for t in epi("q"): a(t)

def attention():
    vKa, vVa, vVb = 2, 3, 4
    vT0, vT1, vT2, vL = 5, 6, 7, 1
    Qr, O, S, P = 8, 40, [104, 120], [136, 144]
    KB = [152 + 16 * i for i in range(4)]
    VB = [160 + 16 * i for i in range(4)]
    vSy, vOne = 216, 217
    sK, sCnt, sOst, sFl = S_T, S_T + 1, S_T + 2, S_T + 3
    sMask = S_T + 4
    sQ = [S_T + 6 + i for i in range(4)]
    sA, sB_ = S_T + 10, S_T + 11
    a(f"""
    L_attn:
    s_setprio 2
    s_mov_b32 s{S_KV}, s{S_WS}
    s_mov_b32 s{S_KV+1}, s{S_WS+1}
    s_mov_b32 s{S_KV+2}, {WS_SIZE}
    s_mov_b32 s{S_KV+3}, 0x00020000
    s_mul_i32 s{sA}, s{S_H}, 7
    s_lshr_b32 s{sA}, s{sA}, 1
    v_bfe_u32 v{vT0}, v0, 4, 1
    v_and_b32 v{vT1}, 15, v0
    s_lshl_b32 s{sB_}, s{S_WAVE}, 4
    v_add_u32 v{vT1}, s{sB_}, v{vT1}
    v_bfe_u32 v{vT2}, v0, 2, 1
    v_and_b32 v{vL}, 3, v0
    s_lshl_b32 s{sB_}, s{S_B}, 2
    v_add_u32 v{vL}, s{sB_}, v{vL}
    v_cmp_gt_u32 vcc, 32, v0
    s_add_u32 s{sB_}, s{sA}, 3
    s_lshr_b32 s{sB_}, s{sB_}, 2
    v_cndmask_b32 v{vT0}, v{vT2}, v{vT0}, vcc
    v_cndmask_b32 v{vT1}, v{vL}, v{vT1}, vcc
    s_lshr_b32 s{sCnt}, s{sA}, 2
    v_add_u32 v{vT0}, s{sCnt}, v{vT0}
    v_min_u32 v{vT0}, s{sB_}, v{vT0}
    v_lshl_add_u32 v{vT0}, v{vT0}, 6, v{vT1}
    v_lshlrev_b32 v{vT0}, 7, v{vT0}
    v_add_u32 v{vL}, {F1}, v{vT0}
    s_lshl_b32 s{sA}, s{sA}, 9
    v_lshlrev_b32 v{vKa}, 4, v0
    v_add_u32 v{vKa}, s{sA}, v{vKa}
    """)
    for q in range(4):
        a(f"""
        s_add_u32 s{sQ[q]}, s{S_WAVE}, {q+1}
        s_and_b32 s{sQ[q]}, s{sQ[q]}, 3
        s_lshl_b32 s{sA}, s{S_B}, 2
        s_add_u32 s{sQ[q]}, s{sQ[q]}, s{sA}
        s_mul_i32 s{sQ[q]}, s{sQ[q]}, {TILEB}
        """)
    a(f"""
    v_and_b32 v{vT0}, 31, v0
    v_lshrrev_b32 v{vT1}, 5, v0
    v_and_b32 v{vVa}, 3, v0
    v_bfe_u32 v{vT2}, v0, 3, 1
    v_lshl_add_u32 v{vVa}, v{vT2}, 2, v{vVa}
    v_bfe_u32 v{vT2}, v0, 2, 1
    v_mad_u32_u24 v{vVa}, v{vT2}, 7, v{vVa}
    v_bfe_u32 v{vT2}, v0, 4, 1
    v_mad_u32_u24 v{vVa}, v{vT2}, 14, v{vVa}
    v_lshlrev_b32 v{vVa}, 4, v{vVa}
    v_mul_u32_u24 v{vT2}, 7168, v{vT1}
    v_add_u32 v{vVa}, v{vVa}, v{vT2}
    s_mul_i32 s{sA}, s{S_H}, 448
    s_add_u32 s{sA}, s{sA}, {VBUF - KBUF}
    v_add_u32 v{vVa}, s{sA}, v{vVa}
    v_add_u32 v{vVb}, 14336, v{vVa}
    s_mul_i32 s{sK}, s{S_WAVE}, {16 * TILEB}
    s_add_u32 s{sK}, s{sK}, {KBUF}
    s_mov_b32 s{sMask}, 0x77ff77ff
    s_mov_b32 s{sMask+1}, 0x77ff77ff
    v_mov_b32 v{vT2}, 0x3f803f80
    v_or_b32 v{vT0}, 4, v{vT0}
    v_cmp_eq_u32 vcc, 31, v{vT0}
    v_mov_b32 v{vSy}, {SYNC}
    v_mov_b32 v{vOne}, 1
    v_cndmask_b32 v{vT2}, 0, v{vT2}, vcc
    """)
    init = [f"v_mov_b32 v{VB[b]+i}, v{vT2}" for b in range(4) for i in range(8)] + [f"v_mov_b32 v{O+i}, 0" for i in range(64)]
    init += [f"v_mov_b32 v{P[1]+i}, 0" for i in range(8)] + [f"v_mov_b32 v{S[1]+i}, 0" for i in range(12, 16)]
    nb = int(len(init) * float(OPT.get('ipre', 0.3)))
    for t in init[:nb]: a(t)
    lp = a.lab("Lnp")
    a(f"s_cmp_ge_u32 s{S_I}, 28\ns_cbranch_scc1 {lp}")
    publish(sF1, 218)
    stamp(5)
    stamp_save(0, 6)
    a(f"{lp}:\ns_setprio {OPT.get('wprio', 0)}")
    for t in init[nb:]: a(t)
    if OPT.get('pdel'): a(f"s_sleep {OPT.get('pdel')}")
    stamp(0)
    a("s_mov_b32 exec_hi, 0xff")
    poll(vL, vT0, int(OPT.get('psl', 6)), int(OPT.get('few', 8)))
    a("s_setprio 2")
    stamp(1)
    def ldK(b, so, srd_=S_KV):
        return (f"buffer_load_dwordx4 {vr(KB[b],4)}, v{vKa}, s[{srd_}:{srd_+3}], s{so} offen{LF}\n"
                f"buffer_load_dwordx4 {vr(KB[b]+4,4)}, v{vKa}, s[{srd_}:{srd_+3}], s{so} offen offset:1024{LF}")
    def ldV(b, so, srd_=S_KV):
        return (f"s_mov_b64 exec, s[{sMask}:{sMask+1}]\n"
                f"buffer_load_dwordx4 {vr(VB[b],4)}, v{vVa}, s[{srd_}:{srd_+3}], s{so} offen{LF}\n"
                f"buffer_load_dwordx4 {vr(VB[b]+4,4)}, v{vVb}, s[{srd_}:{srd_+3}], s{so} offen{LF}\n"
                f"s_mov_b64 exec, -1")
    def ldQ(q):
        a(f"buffer_load_dwordx4 {vr(Qr+8*q,4)}, v{vKa}, s[{S_WS}:{S_WS+3}], s{sQ[q]} offen{LF}")
        a(f"buffer_load_dwordx4 {vr(Qr+8*q+4,4)}, v{vKa}, s[{S_WS}:{S_WS+3}], s{sQ[q]} offen offset:1024{LF}")
    ldQ(0); a(ldK(0, sK))
    for q in (1, 2, 3): ldQ(q)
    for t in range(4):
        if t: a(ldK(t, sK))
        if t < 3:
            a(ldV(t, sK))
            a(f"s_add_u32 s{sK}, s{sK}, {TILEB}")
    def fixq(qs, n):
        lab = a.lab("Lqz"); lab2 = a.lab("Lqz")
        a(f"""
        s_bitcmp0_b32 s{S_H}, 0
        s_waitcnt vmcnt({n})
        s_cbranch_scc1 {lab}
        s_mov_b32 exec_hi, 0
        """)
        for q in qs: a(f"v_mov_b32 v{Qr+8*q}, 0\nv_mov_b32 v{Qr+8*q+1}, 0")
        a(f"s_branch {lab2}\n{lab}:\ns_mov_b32 exec_lo, 0")
        for q in qs: a(f"v_mov_b32 v{Qr+8*q+6}, 0\nv_mov_b32 v{Qr+8*q+7}, 0")
        a(f"{lab2}:\ns_mov_b64 exec, -1")
    fixq([0], 20)
    def qk(u):
        i, q = (u // 4) % 4, u % 4
        s = S[u % 2]
        return [f"{MFMA} {vr(s,16)}, {vr(KB[i],4)}, {vr(Qr+8*q,4)}, 0",
                f"{MFMA} {vr(s,16)}, {vr(KB[i]+4,4)}, {vr(Qr+8*q+4,4)}, {vr(s,16)}"]
    def pv(u):
        i, q = (u // 4) % 4, u % 4
        p = P[u % 2]; o = O + 16 * q
        return [f"{MFMA} {vr(o,16)}, {vr(VB[i],4)}, {vr(p,4)}, {vr(o,16)}",
                f"{MFMA} {vr(o,16)}, {vr(VB[i]+4,4)}, {vr(p+4,4)}, {vr(o,16)}"]
    a(f"s_waitcnt vmcnt(18)\ns_mov_b32 s{sCnt}, 0\ns_nop 1")
    stamp(2)
    for m in qk(0): a(m)
    fixq([1, 2, 3], 12)
    a("s_nop 3")
    loop = a.lab("Lattn")
    a(f".p2align 6\n{loop}:")
    cvt = lambda d, s_: f"v_cvt_pk_bf16_f32 v{d}, v{s_}, v{s_+1}"
    for u in range(16):
        i, q = u // 4, u % 4
        s = S[u % 2]; p = P[u % 2]; sp = S[(u + 1) % 2]; pp = P[(u + 1) % 2]
        m = pv(u - 1)[:1] + qk(u + 1) + pv(u - 1)[1:]
        extra = {k: [] for k in range(16)}; aft = {g: [] for g in range(4)}
        if q == 0: extra[14].append("s_waitcnt vmcnt(10)")
        if q == 1: aft[1].append(ldV((i + 3) % 4, sK))
        if q == 3:
            extra[2].append("s_waitcnt vmcnt(10)")
            if i == 0: extra[0].append(f"s_cmp_eq_u32 s{sCnt}, 3\ns_cselect_b32 s{S_KV+2}, 0, s{S_KV+2}")
            extra[1].append(f"s_add_u32 s{sK}, s{sK}, {TILEB}")
            kk = ldK(i, sK).split("\n")
            aft[2].append(kk[0]); aft[3].append(kk[1])
        if u == 15:
            extra[9].append(f"s_add_u32 s{sCnt}, s{sCnt}, 1")
            extra[10].append(f"s_cmp_lt_u32 s{sCnt}, 4")
        if u == 6:
            aft[2].append(f"s_mov_b64 exec, 1\nds_add_u32 v{vSy}, v{vOne} offset:{C_AH}\ns_mov_b64 exec, -1")
        for g in range(4):
            a(m[g])
            for l in aft[g]: a(l)
            if g == 0: a(cvt(pp + 6, sp + 12) + "\n" + cvt(pp + 7, sp + 14))
            else: a(cvt(p + 2 * g - 2, s + 4 * g - 4) + "\n" + cvt(p + 2 * g - 1, s + 4 * g - 2))
            for k in range(4 * g, 4 * g + 4):
                a(f"v_exp_f32 v{s+k}, v{s+k}")
                for l in extra[k]: a(l)
    a(f"s_cbranch_scc1 {loop}")
    a(pv(15)[0])
    a(cvt(P[1] + 6, S[1] + 12) + "\n" + cvt(P[1] + 7, S[1] + 14))
    a(f"v_lshlrev_b32 v{vT0}, 4, v0\ns_nop 0")
    a(pv(15)[1])
    stamp(3)
    for q in range(3):
        a(f"""
        s_add_u32 s{sA}, s{S_WAVE}, {q+1}
        s_and_b32 s{sA}, s{sA}, 3
        s_mul_i32 s{sA}, s{sA}, 12288
        v_add_u32 v{vT1}, s{sA}, v{vT0}
        """)
        for k in range(4): a(f"ds_write_b128 v{vT1}, {vr(O+16*q+4*k,4)} offset:{XCH + q*4096 + k*1024}")
    a(f"""
    s_mov_b64 exec, 1
    ds_add_u32 v{vSy}, v{vOne} offset:{C_AX}
    s_mov_b64 exec, -1
    s_mul_i32 s{sA}, s{S_WAVE}, 12288
    v_add_u32 v{vT1}, s{sA}, v{vT0}
    s_lshl_b32 s{sOst}, s{S_B}, 2
    s_add_u32 s{sOst}, s{sOst}, s{S_WAVE}
    s_lshl_b32 s{sOst}, s{sOst}, 4
    s_add_u32 s{sOst}, s{sOst}, s{S_H}
    s_lshl_b32 s{sOst}, s{sOst}, 11
    s_add_u32 s{sOst}, s{sOst}, {OBUF}
    v_and_b32 v{vL}, 1, v0
    v_lshlrev_b32 v{vL}, 4, v{vL}
    v_lshrrev_b32 v{vL}, v{vL}, s{S_NONCE}
    v_lshlrev_b32 v{vL}, 16, v{vL}
    s_mov_b32 s{sFl}, 0xffff
    """)
    lds_wait(vSy, C_AX, 4, vT2)
    for q in range(3):
        for k in range(4): a(f"ds_read_b128 {vr(O+16*q+4*k,4)}, v{vT1} offset:{XCH + q*4096 + k*1024}")
    F = O + 48
    stamp(4)
    for q in range(3):
        a(f"s_waitcnt lgkmcnt({8 - 4*q})")
        for k in range(0, 16, 2): a(f"v_pk_add_f32 {vr(F+k,2)}, {vr(F+k,2)}, {vr(O+16*q+k,2)}")
    a(f"""
    L_norm:
    v_rcp_f32 v{vT1}, v{F+15}
    s_mov_b32 s{sA}, {f32(2.0**-40)}
    s_mov_b32 s{sB_}, {f32(2.0**40)}
    v_cmp_nle_f32 vcc, s{sA}, v{F+15}
    v_cmp_nge_f32 s[{sQ[0]}:{sQ[0]+1}], s{sB_}, v{F+15}
    s_or_b64 vcc, vcc, s[{sQ[0]}:{sQ[0]+1}]
    s_cbranch_vccnz L_slow
    L_norm2:
    """)
    for k in range(0, 16, 2): a(f"v_pk_mul_f32 {vr(F+k,2)}, {vr(F+k,2)}, {vr(vT1,2)} op_sel_hi:[1,0]")
    for k in range(8): a(f"v_cvt_pk_bf16_f32 v{O+k}, v{F+2*k}, v{F+2*k+1}")
    a(f"v_and_or_b32 v{O+3}, v{O+3}, s{sFl}, v{vL}\nv_and_or_b32 v{O+7}, v{O+7}, s{sFl}, v{vL}")
    a(f"buffer_store_dwordx4 {vr(O,4)}, v{vT0}, s[{S_WS}:{S_WS+3}], s{sOst} offen{SF}")
    a(f"buffer_store_dwordx4 {vr(O+4,4)}, v{vT0}, s[{S_WS}:{S_WS+3}], s{sOst} offen offset:1024{SF}")
    stamp(5)
    stamp_save(1, 6)
    stamp_flush('A')
    a("s_endpgm")
    s0 = S[0]; p0 = P[0]; Q3 = Qr + 24; vM = O
    l1 = a.lab("Lsl"); l2 = a.lab("Lsl")
    qk3 = (f"{MFMA} {vr(s0,16)}, {vr(KB[0],4)}, {vr(Q3,4)}, 0\n"
           f"{MFMA} {vr(s0,16)}, {vr(KB[0]+4,4)}, {vr(Q3+4,4)}, {vr(s0,16)}\ns_nop 15")
    a(f"""
    L_slow:
    s_cmp_eq_u32 s{sCnt}, 99
    s_cbranch_scc1 L_norm2
    s_mov_b32 s{sK}, {KBUF}
    v_mov_b32 v{vM}, 0xff800000
    {l1}:
    {ldK(0, sK, S_WS)}
    s_waitcnt vmcnt(0)
    {qk3}
    """)
    for k in range(0, 16, 2): a(f"v_max3_f32 v{vM}, v{s0+k}, v{s0+k+1}, v{vM}")
    a(f"""
    s_add_u32 s{sK}, s{sK}, {TILEB}
    s_cmp_lt_u32 s{sK}, {KBUF + 64 * TILEB}
    s_cbranch_scc1 {l1}
    v_mov_b32 v{vM+1}, v{vM}
    s_nop 1
    v_permlane32_swap_b32 v{vM}, v{vM+1}
    s_nop 1
    v_max_f32 v{vM}, v{vM}, v{vM+1}
    s_mov_b32 s{sK}, {KBUF}
    """)
    for k in range(16): a(f"v_mov_b32 v{F+k}, 0")
    a(f"""
    {l2}:
    {ldK(0, sK, S_WS)}
    {ldV(0, sK, S_WS)}
    s_waitcnt vmcnt(0)
    {qk3}
    """)
    for k in range(16): a(f"v_sub_f32 v{s0+k}, v{s0+k}, v{vM}")
    for k in range(16): a(f"v_exp_f32 v{s0+k}, v{s0+k}")
    a("s_nop 0")
    for k in range(8): a(cvt(p0 + k, s0 + 2 * k))
    a(f"""
    s_nop 1
    {MFMA} {vr(F,16)}, {vr(VB[0],4)}, {vr(p0,4)}, {vr(F,16)}
    {MFMA} {vr(F,16)}, {vr(VB[0]+4,4)}, {vr(p0+4,4)}, {vr(F,16)}
    s_add_u32 s{sK}, s{sK}, {TILEB}
    s_cmp_lt_u32 s{sK}, {KBUF + 64 * TILEB}
    s_cbranch_scc1 {l2}
    s_mov_b32 s{sCnt}, 99
    s_nop 15
    s_branch L_norm
    """)

def idle():
    l7 = a.lab("Lw7")
    a(f"""
    L_idle:
    s_cmp_ge_u32 s{S_WAVE}, 4
    s_cbranch_scc1 {l7}
    s_lshl_b32 s{S_T+5}, s2, 7
    s_add_u32 s{S_T+5}, s{S_T+5}, {FH}
    v_mov_b32 v12, s{S_T+5}
    v_mov_b32 v13, 0
    s_waitcnt lgkmcnt(0)
    """)
    srd(S_WS, KA_WS, WS_SIZE); srd(S_DBG, KA_DBG, 256)
    a("s_barrier")
    get_nonce(13, 0)
    a("s_mov_b64 exec, 1")
    poll(12, 13, 8, 0)
    a(f"""
    s_branch L_attn
    {l7}:
    s_cmp_eq_u32 s{S_WAVE}, 6
    s_cbranch_scc1 L_touch
    s_cmp_lg_u32 s{S_WAVE}, 7
    s_cbranch_scc1 L_end
    s_getpc_b64 s[{S_T+4}:{S_T+5}]
    Lpc:
    s_sub_u32 s{S_T+4}, s{S_T+4}, Lpc-{KN}
    s_subb_u32 s{S_T+5}, s{S_T+5}, 0
    s_memrealtime s[{S_T+10}:{S_T+11}]
    v_lshlrev_b32 v2, 7, v0
    v_add_u32 v3, 8192, v2
    v_add_u32 v4, 16384, v2
    v_min_u32 v4, L_end-{KN}, v4
    s_waitcnt lgkmcnt(0)
    s_cmp_lg_u32 s2, 0
    s_cbranch_scc1 Lnn
    """)
    srd(S_DBG, KA_DBG, 256)
    a(f"""
    s_or_b32 s{S_T+10}, s{S_T+10}, 1
    v_mov_b32 v8, s{S_T+10}
    s_mov_b64 exec, 1
    buffer_store_dword v8, off, s[{S_DBG}:{S_DBG+3}], 0 sc1
    s_mov_b64 exec, -1
    Lnn:
    global_load_dword v12, v2, s[{S_T+4}:{S_T+5}]
    global_load_dword v13, v3, s[{S_T+4}:{S_T+5}]
    global_load_dword v14, v4, s[{S_T+4}:{S_T+5}]
    s_endpgm
    """)
    a("L_touch:\ns_waitcnt lgkmcnt(0)")
    if OPT.get('touch', '0') != '0':
        srd(S_WS, KA_WS, WS_SIZE); srd(S_DBG, KA_DBG, 256); srd(S_WO, KA_WO, 401408); srd(S_OUT, KA_OUT, 3670016)
        touch(2)
    a("s_endpgm")
```

```python
from base import *
from rolea import C_AH
vSg, vMy, vPa, vSyB = 200, 201, 202, 203
def pair_signal(k):
    a(f"v_mov_b32 v{vSg}, {k}\ns_mov_b64 exec, 1\nds_write_b32 v{vMy}, v{vSg}\ns_mov_b64 exec, -1")
def pair_wait(k): lds_wait(vPa, 0, k, vSg)

def cmul(d, x, y, pk):
    if pk:
        return [f"v_pk_mul_f32 {vr(d,2)}, {vr(x,2)}, {vr(y,2)} op_sel:[0,0] op_sel_hi:[1,0]",
                f"v_pk_fma_f32 {vr(d,2)}, {vr(x,2)}, {vr(y,2)}, {vr(d,2)} op_sel:[1,1,0] op_sel_hi:[0,1,1] neg_lo:[0,1,0]"]
    return [f"v_mul_f32 v{d}, v{x}, v{y}", f"v_mul_f32 v{d+1}, v{x+1}, v{y}",
            f"v_fma_f32 v{d}, -v{x+1}, v{y+1}, v{d}", f"v_fmac_f32 v{d+1}, v{x}, v{y+1}"]

RAW, PRM, vDT, vFA, KT = 12, 16, 20, 21, 22
def kgen_valu(it, P):
    E1, E2, E4, E8, E256, E16 = 28, 30, 32, 34, 36, 38
    X, Y, Z, W = 40, 42, 44, 46
    LA, AI, CR, CI = PRM, PRM + 1, PRM + 2, PRM + 3
    T = KT; vA_, vB_ = T, T + 1
    G = []
    def raw(txt):
        for l in txt.strip().split("\n"): G.append(lambda pk, l=l.strip(): [l])
    for k in range(4):
        raw(f"v_lshlrev_b32 v{PRM+k}, 16, v{RAW+k}" if it == 0 else f"v_and_b32 v{PRM+k}, 0xffff0000, v{RAW+k}")
    raw(f"""v_mul_f32 v{vA_}, {f32(LOG2E)}, v{LA}
    v_exp_f32 v{vA_}, v{vA_}
    v_mul_f32 v{vB_}, v{AI}, v{vDT}
    v_cvt_pk_bf16_f32 v{vA_}, v{vA_}, v{vA_}
    v_and_b32 v{vA_}, 0xffff0000, v{vA_}
    v_mul_f32 v{vA_}, v{vA_}, v{vDT}
    v_mul_f32 v{vA_}, {f32(-LOG2E)}, v{vA_}
    v_mul_f32 v{vB_}, 0.15915494, v{vB_}
    v_add_f32 v{T+2}, v{vDT}, v{vDT}
    v_mul_f32 v{X}, v{CR}, v{T+2}
    v_mul_f32 v{X+1}, v{CI}, v{T+2}""")
    for E, t in ((E1, 1.0), (E8, 8.0), (E256, 256.0)):
        raw(f"""v_mul_f32 v{T+2}, {f32(t)}, v{vA_}
        v_mul_f32 v{T+3}, {f32(t)}, v{vB_}
        v_exp_f32 v{T+2}, v{T+2}
        v_fract_f32 v{T+3}, v{T+3}
        v_cos_f32 v{E}, v{T+3}
        v_sin_f32 v{E+1}, v{T+3}
        v_mul_f32 v{E}, v{E}, v{T+2}
        v_mul_f32 v{E+1}, v{E+1}, v{T+2}""")
    wr = []; nxtp = [P]
    def put(src, rows, conj):
        t = nxtp[0]; nxtp[0] += 1
        raw(f"v_cvt_pk_bf16_f32 v{t}, v{src}, {'-' if conj else ''}v{src+1}")
        for r in rows: wr.append(f"ds_write_addtid_b32 v{t} offset:{r*272}")
    def cm(d, x, y): G.append(lambda pk: cmul(d, x, y, pk))
    rho = lambda v, h: 8 * (v >> 2) + 4 * h + (v & 3)
    cm(E2, E1, E1); cm(E4, E2, E2); cm(E16, E8, E8)
    cm(Z, X, E256)
    put(X, [rho(0, 0)], True)
    cur, nxt = X, Y
    for k in range(1, 8):
        cm(nxt, cur, E1); put(nxt, [rho(k, 0)], True)
        cur, nxt = nxt, cur
    rows1 = [[0, 1], [2], [3, 4, 5], [6], [7]]
    put(Z, [rho(v, 1) for v in rows1[0]], True)
    cur, nxt = Z, X
    for k in range(1, 5):
        cm(nxt, cur, E2); put(nxt, [rho(v, 1) for v in rows1[k]], True)
        cur, nxt = nxt, (Y if nxt == X else X)
    H, Hn = Z, W
    for B in (2, 3):
        cm(Hn, H, E256); H, Hn = Hn, H
        put(H, [rho(8, B & 1)], True)
        cm(X, H, E4); put(X, [rho(9, B & 1)], True)
        cm(Y, H, E8); put(Y, [rho(10, B & 1)], True)
    for B in (4, 5, 6, 7):
        v0_ = 11 if B < 6 else 13
        cm(Hn, H, E256); H, Hn = Hn, H
        put(H, [rho(v0_, B & 1)], True)
        cm(X, H, E8); put(X, [rho(v0_ + 1, B & 1)], True)
    roww = list(wr); wr.clear()
    wr.append(f"ds_write_addtid_b32 v{KT+5} offset:0")
    put(E8, [1], False); put(E16, [2], False)
    ch = {1: E8, 0: E16}; pool = {1: [X, Y], 0: [Z, W]}
    for j in range(3, 32):
        par = j & 1
        d = pool[par][0]; pool[par].reverse()
        cm(d, ch[par], E16); put(d, [j], False)
        ch[par] = d
    assert nxtp[0] == P + 58
    return G, roww, list(wr)

def tr_addr(T, dpitch):
    a(f"""
    v_lshlrev_b32 v{T}, 4, v0
    v_add_u32 v{T}, s{S_PRIV}, v{T}
    v_lshrrev_b32 v{T+2}, 4, v0
    v_and_b32 v{T+3}, 15, v0
    v_lshlrev_b32 v{T+1}, 9, v{T+2}
    v_lshl_add_u32 v{T+1}, v{T+3}, 3, v{T+1}
    v_add_u32 v{T+1}, s{S_PRIV}, v{T+1}
    v_mul_u32_u24 v{T+3}, 144, v{T+3}
    v_lshl_add_u32 v{T+3}, v{T+2}, 5, v{T+3}
    v_add_u32 v{T+3}, s{S_PRIV}, v{T+3}
    v_lshrrev_b32 v{T+2}, 3, v0
    v_mul_u32_u24 v{T+4}, 144, v{T+2}
    v_mul_u32_u24 v{T+2}, {dpitch}, v{T+2}
    v_and_b32 v{T+5}, 7, v0
    v_lshl_add_u32 v{T+4}, v{T+5}, 4, v{T+4}
    v_add_u32 v{T+4}, s{S_PRIV}, v{T+4}
    v_lshl_add_u32 v{T+2}, v{T+5}, 4, v{T+2}
    """)
def tr_lds(T, R, LO):
    a(f"ds_write_b128 v{T}, {vr(R,4)} offset:{LO}\nds_write_b128 v{T}, {vr(R+4,4)} offset:{LO+1024}")
    for i in range(4): a(f"ds_read_b64_tr_b16 {vr(R+2*i,2)}, v{T+1} offset:{LO + i*128}")
    a(f"""
    s_waitcnt lgkmcnt(0)
    ds_write_b128 v{T+3}, {vr(R,4)} offset:{LO}
    ds_write_b128 v{T+3}, {vr(R+4,4)} offset:{LO+16}
    ds_read_b128 {vr(R,4)}, v{T+4} offset:{LO}
    ds_read_b128 {vr(R+4,4)}, v{T+4} offset:{LO+8*144}
    """)

NPF = 6
def prefetch():
    T = 8
    lj = a.lab("Lpf"); le = a.lab("Lpf")
    a(f"""
    v_and_b32 v{T}, 15, v0
    v_lshrrev_b32 v{T+1}, 4, v0
    s_and_b32 s{S_T+5}, s{S_RB}, 7
    s_lshl_b32 s{S_T+5}, s{S_T+5}, 3
    s_and_b32 s{S_T+6}, s{S_RB}, 3
    s_lshl_b32 s{S_T+6}, s{S_T+6}, 4
    s_cmp_eq_u32 s{S_J}, 3
    s_cselect_b32 s{S_T+5}, s{S_T+6}, s{S_T+5}
    s_mov_b32 s{S_T+2}, 0x00ff00ff
    s_cselect_b32 s{S_T+2}, -1, s{S_T+2}
    v_add_u32 v{T}, s{S_T+5}, v{T}
    v_mul_u32_u24 v{T}, 2688, v{T}
    v_add_u32 v{T+1}, 1, v{T+1}
    v_mul_u32_u24 v{T+1}, 896, v{T+1}
    v_add_u32 v{T+1}, v{T}, v{T+1}                 ; k / v lines
    s_sub_u32 s{S_T+6}, s{S_J}, 4
    s_cmp_lt_u32 s{S_J}, 3
    s_cselect_b32 s{S_T+6}, s{S_J}, s{S_T+6}
    s_mul_i32 s{S_T+6}, s{S_T+6}, 21
    v_add_u32 v{T+2}, s{S_T+6}, v0
    v_mul_u32_u24 v{T+2}, 896, v{T+2}
    s_cmp_eq_u32 s{S_J}, 3
    s_cselect_b32 s{S_T+3}, 1, 0x3fffff
    s_add_u32 s{S_T+5}, s{S_BW}, {OPT.get('pf0', 1)}
    s_mov_b32 exec_hi, 0
    """)
    for r in range(2):
        a(f"""
        s_min_u32 s{S_T+5}, s{S_T+5}, 6
        s_mul_i32 s{S_T+6}, s{S_T+5}, {64*2688}
        s_add_u32 s{S_T+6}, s{S_T+6}, s{sWb}
        s_lshl_b32 s{S_T+1}, s{S_T+5}, 7
        s_add_u32 s{S_T+1}, s{S_T+1}, s{sXb}
        s_mov_b32 exec_lo, s{S_T+2}
        buffer_load_dword v{240+2*r}, v{T+1}, s[{S_W}:{S_W+3}], s{S_T+6} offen
        s_mov_b32 exec_lo, s{S_T+3}
        buffer_load_dword v{241+2*r}, v{T+2}, s[{S_X}:{S_X+3}], s{S_T+1} offen
        s_add_u32 s{S_T+5}, s{S_T+5}, 4
        """)
    a(f"""
    s_and_b32 s{S_T+2}, s{S_T+2}, 0xffff
    s_mov_b32 exec_lo, s{S_T+2}
    s_mul_i32 s{S_T+6}, s{S_BW}, {2*64*2688}
    s_add_u32 s{S_T+6}, s{S_T+6}, s{sWb}
    buffer_load_dword v244, v{T}, s[{S_W}:{S_W+3}], s{S_T+6} offen
    s_add_u32 s{S_T+6}, s{S_T+6}, {64*2688}
    buffer_load_dword v245, v{T}, s[{S_W}:{S_W+3}], s{S_T+6} offen
    s_mov_b64 exec, -1
    """)

def role_b():
    T = 6
    P = [48, 108]; AF = 216; CA = [216, 232]; ACC = 84
    vNon, vZ, vG, vWl, vFu, vAa, vXa_, vWw = 204, 205, 206, 207, 208, 209, 210, 211
    sU, sIt, sUw, sCh, sFl, sLast, sWin = S_T, S_T + 4, S_T + 7, S_T + 8, S_T + 9, S_T + 10, S_T + 11
    S1 = 4160
    UR = 168; UT_ = 176; LD = 184
    a(f"""
    L_B:
    v_lshrrev_b32 v7, 1, v0
    v_mul_u32_u24 v7, 896, v7
    v_and_b32 v8, 1, v0
    v_lshl_add_u32 v7, v8, 4, v7
    s_lshl_b32 s{S_T+5}, s{S_BW}, 5
    s_add_u32 s{S_T+5}, s{S_T+5}, s{sXb}
    s_add_u32 s{S_T+5}, s{S_T+5}, s{sWb}
    v_add_u32 v7, s{S_T+5}, v7
    v_add_u32 v8, {32*896}, v7
    s_waitcnt lgkmcnt(0)
    global_load_dword v{RAW}, v6, {kp(KA_LOGA)}
    global_load_dword v{RAW+1}, v6, {kp(KA_AIM)}
    global_load_dword v{RAW+2}, v6, {kp(KA_CR)}
    global_load_dword v{RAW+3}, v6, {kp(KA_CI)}
    global_load_dwordx4 {vr(UR,4)}, v7, {kp(KA_U)}
    global_load_dwordx4 {vr(UR+4,4)}, v8, {kp(KA_U)}
    s_load_dword s{sLD}, {kp(KA_LOGDT)}, s{sD}
    s_load_dword s{sDS}, {kp(KA_DSKIP)}, s{sD}
    s_barrier
    """)
    srd(S_X, KA_X, 1835008); srd(S_W, KA_WQKV, 1204224); srd(S_DBG, KA_DBG, 256)
    srd(S_WS, KA_WS, WS_SIZE); srd(S_WO, KA_WO, 401408); srd(S_OUT, KA_OUT, 3670016)
    if OPT.get('hold'): a(f"s_waitcnt vmcnt({OPT.get('holdn', 2)})\ns_barrier")
    for c in range(7): offsets(c)
    a(f"""
    s_mul_i32 s{S_PRIV}, s{S_BW}, {PRIVB}
    s_add_u32 s{S_PRIV}, s{S_PRIV}, {PRIV0}
    s_lshl_b32 s{S_T+6}, s{S_BW}, 2
    s_add_u32 s{S_T+6}, s{S_T+6}, {SYNC + C_PAIR}
    v_mov_b32 v{vMy}, s{S_T+6}
    v_xor_b32 v{vPa}, 4, v{vMy}
    v_mov_b32 v{vSyB}, {SYNC}
    s_mul_i32 s{sWin}, s{S_C}, {2*PRIVB}
    s_add_u32 s{sWin}, s{sWin}, {PRIV0}
    v_and_b32 v{T}, 3, v0
    v_bfe_u32 v{T+1}, v0, 3, 2
    v_lshl_add_u32 v{T}, v{T+1}, 2, v{T}
    v_bfe_u32 v{T+1}, v0, 2, 1
    v_lshl_add_u32 v{T}, v{T+1}, 4, v{T}
    v_lshrrev_b32 v{T+1}, 5, v0
    v_lshlrev_b32 v{T+2}, 3, v{T+1}
    v_sub_u32 v{T}, v{T}, v{T+2}
    v_add_u32 v{T}, 9, v{T}
    v_sub_u32 v{T+2}, 0, v{T}
    v_and_b32 v{T+2}, 3, v{T+2}
    v_add_lshl_u32 v{T}, v{T}, v{T+2}, 1
    v_mul_u32_u24 v{T+2}, {S1}, v{T+2}
    s_lshl_b32 s{S_T+5}, s{S_NH}, 10
    s_add_u32 s{S_T+5}, s{S_T+5}, s{sWin}
    v_add3_u32 v{vAa}, v{T}, v{T+2}, s{S_T+5}
    v_lshlrev_b32 v{vWl}, 4, v0
    s_lshl_b32 s{S_T+5}, s{S_NH}, 11
    s_add_u32 s{S_T+5}, s{S_T+5}, s{sWin}
    v_add_u32 v{vWw}, s{S_T+5}, v{vWl}
    v_and_b32 v{T}, 31, v0
    v_mul_u32_u24 v{vFA}, 272, v{T}
    v_lshl_add_u32 v{vFA}, v{T+1}, 4, v{vFA}
    v_add_u32 v{vFA}, s{S_PRIV}, v{vFA}
    v_lshlrev_b32 v{vFu}, 7, v{T}
    v_lshlrev_b32 v{T}, 4, v{T}
    v_mul_u32_u24 v{T+2}, {SP}, v{T+1}
    s_mul_i32 s{S_T+6}, s{S_C}, {KPLB}
    s_lshl_b32 s{S_T+5}, s{S_NH}, 8
    s_sub_u32 s{S_T+5}, s{S_T+6}, s{S_T+5}
    s_add_u32 s{S_T+5}, s{S_T+5}, {30*16}
    v_add3_u32 v{vXa_}, v{T}, v{T+2}, s{S_T+5}
    v_and_b32 v{T}, 3, v0
    v_mul_u32_u24 v{T}, {SP}, v{T}
    v_lshrrev_b32 v{T+1}, 2, v0
    v_lshl_add_u32 v{T}, v{T+1}, 4, v{T}
    v_add_u32 v{vG}, s{S_T+6}, v{T}
    v_lshrrev_b32 v{T}, 4, v0
    v_mul_u32_u24 v{T}, {S1}, v{T}
    v_and_b32 v{T+1}, 15, v0
    v_lshl_add_u32 v{T}, v{T+1}, 2, v{T}
    v_add_u32 v{vZ}, s{sWin}, v{T}
    s_lshr_b32 s{sCh}, s{sD}, 1
    s_add_u32 s{sCh}, s{sCh}, s{S_C}
    s_lshl_b32 s{S_T+5}, s{S_J}, 12
    s_add_u32 s{S_T+5}, s{S_T+5}, {FU}
    v_add_u32 v{vFu}, s{S_T+5}, v{vFu}
    s_mul_i32 s{sUw}, s{sCh}, {UROW}
    s_lshl_b32 s{S_T+5}, s{S_NH}, 11
    s_add_u32 s{sUw}, s{sUw}, s{S_T+5}
    s_add_u32 s{sUw}, s{sUw}, {UTB + 128 - 8}
    v_mov_b32 v{KT+5}, 0x3f80
    s_waitcnt lgkmcnt(0)
    s_lshl_b32 s{S3}, s{S_C}, 4
    s_lshr_b32 s{sLD}, s{sLD}, s{S3}
    s_lshl_b32 s{sLD}, s{sLD}, 16
    s_lshr_b32 s{sDS}, s{sDS}, s{S3}
    s_lshl_b32 s{sDS}, s{sDS}, 16
    v_mov_b32 v{KT}, {f32(LOG2E)}
    v_mul_f32 v{vDT}, s{sLD}, v{KT}
    v_exp_f32 v{vDT}, v{vDT}
    s_nop 0
    v_cvt_pk_bf16_f32 v{vDT}, v{vDT}, v{vDT}
    v_and_b32 v{vDT}, 0xffff0000, v{vDT}
    s_lshl_b32 s{sU}, s{S_J}, 2
    s_add_u32 s{sU}, s{sU}, s{S_BW}
    s_mul_i32 s{sU}, s{sU}, {16*UROW}
    s_lshl_b32 s{S_T+5}, s{S_RB}, 7
    s_add_u32 s{sU}, s{sU}, s{S_T+5}
    s_add_u32 s{sU}, s{sU}, {UTB + 128}
    s_add_u32 s{S_T+1}, s{sU}, {8*UROW}
    s_lshl_b32 s{sFl}, s{sD}, 5
    s_add_u32 s{sFl}, s{sFl}, {FU}
    """)
    tr_addr(UT_, UROW)
    XP = NPF if OPT.get('pf') else 0
    a(f"s_waitcnt vmcnt({2 + XP})")
    stamp(0)
    G0, rw0, cw0 = kgen_valu(0, P[0]); G1, rw1, cw1 = kgen_valu(1, P[1])
    G = G0 + G1
    npre = int(len(G) * float(OPT.get('pre', 0.5)))
    n1 = int(len(G) * float(OPT.get('pre1', 0.15)))
    for g in G[:n1]:
        for t in g(True): a(t)
    a(f"s_waitcnt vmcnt({XP})")
    tr_lds(UT_, UR, 0)
    for g in G[n1:min(npre, len(G0))]:
        for t in g(True): a(t)
    pre2 = G[len(G0):npre]
    rest = G[npre:]
    C1, Gs, BF = 48, 28, 100
    def m0priv(): a(f"s_mov_b32 m0, s{S_PRIV}\ns_nop 0")
    def emit(l):
        for t in l: a(t)
    def afr(): emit([f"ds_read_b128 {vr(AF+4*s,4)}, v{vFA} offset:{32*s}" for s in range(8)])
    def bfr(it): emit([f"ds_read_b128 {vr(P[it]+4*s,4)}, v{vFA} offset:{32*s}" for s in range(8)])
    def mfm(it, fill):
        a("s_waitcnt lgkmcnt(0)")
        for s in range(8):
            a(f"{MFMA} {vr(ACC,16)}, {vr(AF+4*s,4)}, {vr(P[it]+4*s,4)}, {'0' if (s == 0 and it == 0) else vr(ACC,16)}")
            emit(fill[4*s:4*s+4])
    def valu(k, n):
        for g in rest[len(rest) * k // n: len(rest) * (k + 1) // n]: emit(g(False))
    def ustores():
        lz = a.lab("Lz")
        a(f"""
        s_waitcnt lgkmcnt(0)
        buffer_store_dwordx4 {vr(UR,4)}, v{UT_+2}, s[{S_WS}:{S_WS+3}], s{sU} offen{SF}
        buffer_store_dwordx4 {vr(UR+4,4)}, v{UT_+2}, s[{S_WS}:{S_WS+3}], s{S_T+1} offen{SF}
        {load_nonce(vNon)}
        s_cmp_lg_u32 s{S_RB}, 0
        s_cbranch_scc1 {lz}
        v_mov_b32 v{LD}, 0
        v_mov_b32 v{LD+1}, 0
        v_mov_b32 v{LD+2}, 0
        v_mov_b32 v{LD+3}, 0
        s_sub_u32 s{sU}, s{sU}, 128
        s_sub_u32 s{S_T+1}, s{S_T+1}, 128
        buffer_store_dwordx4 {vr(LD,4)}, v{UT_+2}, s[{S_WS}:{S_WS+3}], s{sU} offen{SF}
        buffer_store_dwordx4 {vr(LD,4)}, v{UT_+2}, s[{S_WS}:{S_WS+3}], s{S_T+1} offen{SF}
        {lz}:
        """)
    def fu_publish():
        get_nonce(vNon, 63)
        lp = a.lab("Lfu")
        a(f"""
        v_mov_b32 v{vNon}, s{S_NONCE}
        s_cmp_lg_u32 s{S_BW}, 0
        s_cbranch_scc1 {lp}
        s_mov_b64 exec, 1
        buffer_store_dword v{vNon}, off, s[{S_WS}:{S_WS+3}], s{sFl} sc1
        s_mov_b64 exec, -1
        {lp}:
        """)
    def partial_write():
        a(f"""
        v_add_u32 v{T}, s{S_PRIV}, v{vWl}
        v_mov_b32 v{BF+16}, 0
        v_mov_b32 v{BF+17}, 0
        v_mov_b32 v{BF+18}, 0
        v_mov_b32 v{BF+19}, 0
        s_nop 6
        """)
        for k in range(4): a(f"ds_write_b128 v{T}, {vr(ACC+4*k,4)} offset:{1024*k}")
        for i in range(32): a(f"v_mov_b32 v{CA[0]+i}, 0")
    def expand(mid):
        for i, o in enumerate([0, PRIVB]):
            for k in range(2): a(f"ds_read_b128 {vr(Gs+8*i+4*k,4)}, v{vWw} offset:{o + 1024*k}")
        mid()
        a("s_waitcnt lgkmcnt(0)")
        for k in range(8): a(f"v_add_f32 v{Gs+k}, v{Gs+k}, v{Gs+8+k}")
        l3 = a.lab("Lkx"); l4 = a.lab("Lkx")
        wr = lambda reg, beta: f"ds_write_b128 v{vG}, {vr(reg,4)} offset:{KPLL + 512 + 256*beta}"
        a(f"""
        s_cmp_eq_u32 s{S_NH}, 0
        s_cbranch_scc0 {l3}
        v_mov_b32 v{T+4}, s{sDS}
        v_cmp_eq_u32 vcc, 0, v0
        s_nop 1
        v_cndmask_b32 v{T+4}, 0, v{T+4}, vcc
        v_add_f32 v{Gs}, v{Gs}, v{T+4}
        """)
        for k in range(4): a(f"v_cvt_pk_bf16_f32 v{BF+k}, v{Gs+7-2*k}, v{Gs+6-2*k}")
        a(wr(BF, 0)); a(wr(BF + 16, -1)); a(wr(BF + 16, -2))
        a(f"""
        s_branch {l4}
        {l3}:
        v_and_b32 v{T+4}, 1, v0
        v_cmp_eq_u32 vcc, 0, v{T+4}
        v_cvt_pk_bf16_f32 v{BF}, v{Gs+2}, v{Gs+2}
        v_cvt_pk_bf16_f32 v{BF+1}, v{Gs+1}, v{Gs+1}
        v_cvt_pk_bf16_f32 v{BF+2}, v{Gs+1}, v{Gs}
        v_cvt_pk_bf16_f32 v{BF+3}, v{Gs}, v{Gs}
        """)
        for beta in (2, 3):
            g0 = Gs + 3 + 2 * (beta - 2); g8 = g0 + 1; R = BF + 4 * (beta - 1)
            a(f"""
            v_cndmask_b32 v{T+4}, v{g8}, v{g0}, vcc
            v_cvt_pk_bf16_f32 v{R}, v{g8}, v{g8}
            v_cvt_pk_bf16_f32 v{R+1}, v{g8}, v{T+4}
            v_cvt_pk_bf16_f32 v{R+2}, v{g0}, v{g0}
            v_cvt_pk_bf16_f32 v{R+3}, v{g0}, v{g0}
            """)
        for beta in (1, 2, 3): a(wr(BF + 4 * (beta - 1), beta))
        a(f"{l4}:")
    def fu_poll():
        a(f"""
        s_mov_b32 exec_hi, 0
        s_bitcmp1_b32 s{S_NH}, 0
        s_mov_b32 s{S_T+2}, 0xffff
        s_cselect_b32 s{S_T+2}, 0xffff8000, s{S_T+2}
        s_mov_b32 exec_lo, s{S_T+2}
        buffer_load_dword v{T+1}, v{vFu}, s[{S_WS}:{S_WS+3}], 0 offen sc1
        s_mov_b64 exec, -1
        """)
        vm.issue("pu")
    def wloads():
        lok = a.lab("Lok")
        a(f"""
        s_mov_b32 exec_hi, 0
        s_mov_b32 exec_lo, s{S_T+2}
        s_waitcnt vmcnt({vm.wait_for("pu")})
        v_cmp_ne_u32 vcc, s{S_NONCE}, v{T+1}
        s_cbranch_vccz {lok}
        """)
        poll(vFu, T + 1, 4, 0)
        a(f"{lok}:\ns_mov_b64 exec, -1")
        for g in range(2):
            a(f"buffer_load_dwordx2 {vr(LD+8*g+2,2)}, v{vWl}, s[{S_WS}:{S_WS+3}], s{sUw} offen offset:{1024*g}{LF}")
            a(f"buffer_load_dwordx4 {vr(LD+8*g+4,4)}, v{vWl}, s[{S_WS}:{S_WS+3}], s{sUw} offen offset:{1024*g+8}{LF}")
        for _ in range(4): vm.issue("wl")
    def hint():
        lh = a.lab("Lh")
        a(f"""
        s_sub_u32 s{S_T+5}, s2, 32
        s_lshl_b32 s{S_T+6}, s{S_BW}, 5
        s_add_u32 s{S_T+6}, s{S_T+6}, s{S_T+5}
        s_lshl_b32 s{S_T+5}, s{S_T+5}, 7
        s_add_u32 s{S_T+5}, s{S_T+5}, {FH}
        s_cmp_ge_u32 s{S_T+6}, 32
        s_cbranch_scc1 {lh}
        s_mov_b64 exec, 1
        buffer_store_dword v{vNon}, off, s[{S_WS}:{S_WS+3}], s{S_T+5} sc1
        s_mov_b64 exec, -1
        {lh}:
        """)
    def windows_valu():
        a("s_waitcnt vmcnt(0)")
        for g in range(2):
            d = lambda k: LD + 8 * g + 4 + k
            o = C1 + 12 * g
            for k in range(4): a(f"v_alignbit_b32 v{o+k}, v{d(k)}, v{d(k-1)}, 16")
            for k in range(4): a(f"v_mov_b32 v{o+4+k}, v{d(k-1)}")
            a(f"v_alignbit_b32 v{o+8}, v{d(-1)}, v{d(-2)}, 16")
            for k in range(1, 4): a(f"v_mov_b32 v{o+8+k}, v{o+k-1}")
    def windows_write():
        a(f"ds_write_b32 v{vZ}, v{BF+16}")
        for g in range(2):
            a(f"ds_write_b128 v{vWw}, {vr(LD+8*g+4,4)} offset:{64 + 1024*g}")
            for c in range(1, 4): a(f"ds_write_b128 v{vWw}, {vr(C1+12*g+4*(c-1),4)} offset:{64 + 1024*g + c*S1}")
    PS = int(OPT.get('ps', 7))
    work = {PS: fu_poll}
    flat = [t for g in rest for t in g(False)]
    NDM = 2 * (28 - first[NA]); dcount = [0]
    def vslice():
        k = dcount[0]; dcount[0] += 1
        emit(flat[len(flat) * k // NDM: len(flat) * (k + 1) // NDM])
    EARLY = OPT.get('early', '0') == '1'
    if EARLY:
        m0priv(); emit(rw0); afr(); emit(cw0); bfr(0)
    for g in pre2: emit(g(True))
    if EARLY: mfm(0, [])
    stamp(1)
    vm = Q(63)
    nxt = first[NA]
    US = int(OPT.get('us', 0)); FUD = 99
    for s in range(NBAR):
        tgt = s if s < NBAR - 1 else NS - 1
        w = []
        if s >= NA: w.append(f"vmcnt({vm.wait_for(('d', tgt))})")
        if w: a("s_waitcnt " + " ".join(w))
        a("s_barrier")
        if s == US + FUD: fu_publish()
        lim = min(28, 14 + first[s])
        while nxt < lim:
            for t in dma(nxt): a(t); vm.issue(("d", slot_of[nxt])); vslice()
            nxt += 1
        if s == US:
            ustores()
            for _ in range(3): vm.issue("us")
            FUD = slot_of[nxt] - US
        if s in work: work[s]()
    stamp(2)
    fine = OPT.get('fine')
    if fine: stamp_save(2, 3)
    a(f"s_setprio {OPT.get('kprio', 1)}")
    m0priv()
    if EARLY: wloads(); emit(rw1)
    else:
        emit(rw0); afr(); emit(cw0); bfr(0)
        wloads()
        mfm(0, rw1)
    afr(); emit(cw1); bfr(1)
    if fine: stamp(0)
    hint()
    windows_valu()
    if fine: stamp(1)
    mfm(1, [])
    partial_write()
    if fine: stamp(2)
    pair_signal(1)
    pair_wait(1)
    if fine: stamp(3)
    expand(lambda: pair_signal(2))
    pair_wait(2)
    if fine: stamp(4)
    windows_write()
    pair_signal(3)
    pair_wait(3)
    if fine: stamp(5); stamp_save(4, 6)
    a(f"s_setprio {OPT.get('cprio', 0)}")
    if OPT.get('late'): lds_wait(vSyB, 44, 4, vSg, 64)
    stamp(3)
    FR = [120, 152]
    def reads(buf, dm):
        ins = []
        R = FR[buf]
        for sg in range(2):
            for k_ in range(2):
                for i2 in range(2):
                    ins.append(f"ds_read_b64 {vr(R + (2*sg+k_)*4 + 2*i2, 2)}, v{vAa} offset:{sg*2048 + 64*dm + 32*(1-k_) + 8*i2}")
        for xo in range(2):
            for k_ in range(2):
                ins.append(f"ds_read_b128 {vr(R + 16 + (2*xo+k_)*4, 4)}, v{vXa_} offset:{KPLL + 2*k_*SP + 512*xo + 16*(2-dm)}")
        return [ins[k] for k in [0, 1, 8, 10, 4, 5, 2, 3, 9, 11, 6, 7]]
    def mf(buf, fill):
        R = FR[buf]
        A = lambda sg, k_: vr(R + (2*sg+k_)*4, 4)
        Xf = lambda xo, k_: vr(R + 16 + (2*xo+k_)*4, 4)
        o = []
        for k_ in range(2):
            o.append(f"{MFMA} {vr(CA[0],16)}, {A(0,k_)}, {Xf(0,k_)}, {vr(CA[0],16)}")
            o.append(f"{MFMA} {vr(CA[1],16)}, {A(0,k_)}, {Xf(1,k_)}, {vr(CA[1],16)}")
            o.append(f"{MFMA} {vr(CA[1],16)}, {A(1,k_)}, {Xf(0,k_)}, {vr(CA[1],16)}")
        for k, m in enumerate(o):
            a(m)
            for t in fill[3*k:3*k+3]: a(t)
    for r in reads(0, 0): a(r)
    a(f"s_mov_b32 s{sIt}, 0")
    loop = a.lab("Lcv")
    a(f"{loop}:\ns_waitcnt lgkmcnt(0)")
    mf(0, reads(1, 1))
    a("s_waitcnt lgkmcnt(0)")
    mf(1, reads(0, 2) + [f"v_add_u32 v{vAa}, 128, v{vAa}", f"v_subrev_u32 v{vXa_}, 32, v{vXa_}", f"s_add_u32 s{sIt}, s{sIt}, 1", f"s_cmp_lt_u32 s{sIt}, 8"])
    a(f"s_cbranch_scc1 {loop}")
    stamp(4)
    a("s_setprio 3")
    l1 = a.lab("Lcx"); l2 = a.lab("Lcx")
    F = 16
    pair_signal(4)
    a(f"""
    s_xor_b32 s{S_T+6}, s{S_BW}, 1
    s_mul_i32 s{S_T+6}, s{S_T+6}, {PRIVB}
    s_add_u32 s{S_T+6}, s{S_T+6}, {PRIV0}
    v_add_u32 v{T+2}, s{S_T+6}, v{vWl}
    v_and_b32 v{T+3}, 31, v0
    v_lshlrev_b32 v{T+3}, 6, v{T+3}
    v_lshrrev_b32 v{T+4}, 5, v0
    v_lshl_add_u32 v{T+3}, v{T+4}, 5, v{T+3}
    v_add_u32 v{T+3}, s{S_PRIV}, v{T+3}
    s_lshl_b32 s{sU}, s{sCh}, 12
    s_lshl_b32 s{S_T+5}, s{S_NH}, 11
    s_add_u32 s{sU}, s{sU}, s{S_T+5}
    s_add_u32 s{sU}, s{sU}, {YTB}
    s_lshl_b32 s{sFl}, s{sD}, 5
    s_add_u32 s{sFl}, s{sFl}, {FY}
    """)
    pair_wait(4)
    a(f"s_cmp_eq_u32 s{S_NH}, 0\ns_cbranch_scc1 {l1}")
    for k in range(4): a(f"ds_write_b128 v{T}, {vr(CA[0]+4*k,4)} offset:{1024*k}")
    for k in range(16): a(f"v_mov_b32 v{CA[0]+k}, v{CA[1]+k}")
    a(f"s_branch {l2}\n{l1}:")
    for k in range(4): a(f"ds_write_b128 v{T}, {vr(CA[1]+4*k,4)} offset:{1024*k}")
    a(f"{l2}:")
    pair_signal(5)
    pair_wait(5)
    for k in range(4): a(f"ds_read_b128 {vr(F+4*k,4)}, v{T+2} offset:{1024*k}")
    a("s_waitcnt lgkmcnt(0)")
    for k in range(16): a(f"v_add_f32 v{F+k}, v{F+k}, v{CA[0]+k}")
    for k in range(8): a(f"v_cvt_pk_bf16_f32 v{F+k}, v{F+2*k}, v{F+2*k+1}")
    a(f"""
    ds_write_b128 v{T+3}, {vr(F,4)} offset:4096
    ds_write_b128 v{T+3}, {vr(F+4,4)} offset:4112
    ds_read_b128 {vr(F+8,4)}, v{T} offset:4096
    ds_read_b128 {vr(F+12,4)}, v{T} offset:5120
    s_waitcnt lgkmcnt(1)
    buffer_store_dwordx4 {vr(F+8,4)}, v{vWl}, s[{S_WS}:{S_WS+3}], s{sU} offen{SF}
    s_waitcnt lgkmcnt(0)
    buffer_store_dwordx4 {vr(F+12,4)}, v{vWl}, s[{S_WS}:{S_WS+3}], s{sU} offen offset:1024{SF}
    """)
    group_publish(C_PY, sFl, sLast, vSyB, T + 4)
    lds_wait(vSyB, C_GD, 4, vSg)
    loop = a.lab("Lwo")
    a(f"""
    v_lshrrev_b32 v{T}, 3, v0
    v_and_b32 v{T+1}, 7, v0
    v_bfe_u32 v{T+2}, v0, 4, 1
    v_lshlrev_b32 v{T+2}, 2, v{T+2}
    v_xor_b32 v{T+1}, v{T+1}, v{T+2}
    v_lshlrev_b32 v{T+1}, 4, v{T+1}
    v_mul_u32_u24 v{T+3}, 896, v{T}
    v_add_u32 v{T+3}, v{T+3}, v{T+1}
    v_mov_b32 v{T}, 0
    v_mov_b32 v{T+1}, 0
    v_lshlrev_b32 v{T+2}, 3, v0
    v_add_u32 v{T+2}, {WOL + 448*128}, v{T+2}
    ds_write_b64 v{T+2}, {vr(T,2)}
    s_mul_i32 s{S_T+5}, s{S_BW}, {112*896}
    s_add_u32 s{S_T+5}, s{S_T+5}, s{sWb}
    s_mul_i32 s{S_T+6}, s{S_BW}, {14*1024}
    s_add_u32 s{S_T+6}, s{S_T+6}, {WOL}
    s_mov_b32 s{sIt}, 0
    {loop}:
    s_mov_b32 m0, s{S_T+6}
    s_add_u32 s{S_T+6}, s{S_T+6}, 1024
    buffer_load_dwordx4 v{T+3}, s[{S_WO}:{S_WO+3}], s{S_T+5} offen lds
    s_add_u32 s{S_T+5}, s{S_T+5}, {8*896}
    s_add_u32 s{sIt}, s{sIt}, 1
    s_cmp_lt_u32 s{sIt}, 14
    s_cbranch_scc1 {loop}
    v_add_u32 v{vFu}, {FY - FU}, v{vFu}
    v_mov_b32 v{T}, 1
    s_waitcnt vmcnt(0)
    s_mov_b64 exec, 1
    ds_add_u32 v{vSyB}, v{T} offset:{C_WU}
    s_mov_b64 exec, -1
    """)
    group_wait(C_WY, sLast, 3, vFu, vSyB, T + 5, 16)
    R = 16; LO = 4096
    a(f"""
    s_lshl_b32 s{sU}, s{S_J}, 18
    s_lshl_b32 s{S_T+5}, s{S_RB}, 7
    s_add_u32 s{sU}, s{sU}, s{S_T+5}
    s_lshl_b32 s{S_T+5}, s{S_BW}, 5
    s_add_u32 s{sU}, s{sU}, s{S_T+5}
    s_add_u32 s{sU}, s{sU}, {YTB}
    s_add_u32 s{S_T+5}, s{sU}, {32*4096}
    v_lshrrev_b32 v{T}, 1, v0
    v_lshlrev_b32 v{T}, 12, v{T}
    v_and_b32 v{T+1}, 1, v0
    v_lshl_add_u32 v{T}, v{T+1}, 4, v{T}
    buffer_load_dwordx4 {vr(R,4)}, v{T}, s[{S_WS}:{S_WS+3}], s{sU} offen{LF}
    buffer_load_dwordx4 {vr(R+4,4)}, v{T}, s[{S_WS}:{S_WS+3}], s{S_T+5} offen{LF}
    s_lshl_b32 s{sU}, s{S_RB}, 2
    s_add_u32 s{sU}, s{sU}, s{S_BW}
    s_mul_i32 s{sU}, s{sU}, {16*1792}
    s_add_u32 s{sU}, s{sU}, s{sWb}
    s_add_u32 s{sU}, s{sU}, 896
    s_add_u32 s{S_T+5}, s{sU}, {8*1792}
    """)
    tr_addr(T, 1792)
    a("s_waitcnt vmcnt(0)")
    tr_lds(T, R, LO)
    OSF = OPT.get('osf', '').replace('_', ' ')
    a(f"""
    s_waitcnt lgkmcnt(1)
    buffer_store_dwordx4 {vr(R,4)}, v{T+2}, s[{S_OUT}:{S_OUT+3}], s{sU} offen{OSF}
    s_waitcnt lgkmcnt(0)
    buffer_store_dwordx4 {vr(R+4,4)}, v{T+2}, s[{S_OUT}:{S_OUT+3}], s{S_T+5} offen{OSF}
    """)
    stamp(5)
    stamp_save(0, 6)
    outproj()

def outproj():
    T = 6
    vW0, vW1, vFa, vSt, vWl, vAd, vTag = 2, 3, 4, 5, 207, 208, 212
    ACC = [216, 232]; B0 = 8
    sO, sTodo, sNeed, sA, sOut, sLo, sRest, sN = [S_T + i for i in range(8)]
    sH = [76 + k for k in range(8)]
    for f, vW in ((0, vW0), (1, vW1)):
        a(f"""
        v_lshrrev_b32 v{T+1}, 5, v0
        v_bfe_u32 v{T}, v0, 2, 2
        v_mad_u32_u24 v{T}, v{T+1}, 7, v{T}
        v_add_u32 v{T}, {14*f}, v{T}
        v_lshlrev_b32 v{vW}, 7, v{T}
        v_bfe_u32 v{T}, v{T}, 1, 1
        v_lshl_add_u32 v{vW}, v{T}, 6, v{vW}
        v_and_b32 v{T}, 1, v0
        v_lshl_add_u32 v{vW}, v{T}, 5, v{vW}
        v_bfe_u32 v{T}, v0, 4, 1
        v_lshl_add_u32 v{vW}, v{T}, 4, v{vW}
        v_bfe_u32 v{T}, v0, 1, 1
        v_lshl_add_u32 v{vW}, v{T}, 3, v{vW}
        v_add_u32 v{vW}, {WOL}, v{vW}
        """)
    a(f"""
    s_lshl_b32 s{sO}, s{S_RB}, 1
    s_add_u32 s{sO}, s{sO}, s{S_C}
    s_mul_i32 s{sOut}, s{sO}, {32*1792}
    s_add_u32 s{sOut}, s{sOut}, s{sWb}
    s_lshl_b32 s{sA}, s{S_NH}, 6
    s_add_u32 s{sOut}, s{sOut}, s{sA}
    s_lshl_b32 s{sO}, s{sO}, 15
    s_add_u32 s{sO}, s{sO}, {OBUF}
    v_lshlrev_b32 v{vFa}, 11, v0
    v_and_b32 v{T}, 31, v0
    v_mul_u32_u24 v{vSt}, 1792, v{T}
    v_lshl_add_u32 v{vSt}, v{T+1}, 5, v{vSt}
    v_and_b32 v{vTag}, 1, v0
    v_lshlrev_b32 v{vTag}, 4, v{vTag}
    v_lshrrev_b32 v{vTag}, v{vTag}, s{S_NONCE}
    v_lshlrev_b32 v{vTag}, 16, v{vTag}
    s_lshr_b32 s{sLo}, s{S_NONCE}, 16
    s_lshl_b32 s{sNeed}, 0x5555, s{S_NH}
    v_add_u32 v213, s{S_PRIV}, v{vWl}
    s_xor_b32 s{sA}, s{S_BW}, 1
    s_mul_i32 s{sA}, s{sA}, {PRIVB}
    s_add_u32 s{sA}, s{sA}, {PRIV0}
    v_add_u32 v214, s{sA}, v{vWl}
    """)
    for k in range(32): a(f"v_mov_b32 v{ACC[0]+k}, 0")
    a("s_setprio 0")
    lds_wait(vSyB, C_WU, 4, vSg, 4)
    lds_wait(vSyB, C_AH, int(OPT.get('ah', 13)), vSg, 32)
    stamp(0)
    LP = a.lab("Lop"); LD_ = a.lab("Lod"); LN = a.lab("Lon"); LZ = a.lab("Loz")
    I = [a.lab("Loi") for _ in range(9)]; W = [a.lab("Low") for _ in range(9)]
    a(f"""
    s_setprio {OPT.get('oprio', 3)}
    s_mov_b32 s{S3}, 0
    s_mov_b32 s{sTodo}, 0
    {LP}:
    s_add_u32 s{S3}, s{S3}, 1
    s_cmp_gt_u32 s{S3}, {SPIN_MAX}
    s_cbranch_scc1 {LD_}
    s_bcnt1_i32_b32 s{sA}, s{sNeed}
    s_cmp_le_u32 s{sA}, {OPT.get('heavy', 0)}
    s_cselect_b32 s{sTodo}, s{sNeed}, s{sTodo}
    s_andn2_b32 s{sRest}, s{sNeed}, s{sTodo}
    s_cbranch_scc0 {LN}
    s_mov_b32 exec_hi, 0
    s_mov_b32 exec_lo, s{sRest}
    buffer_load_ushort v{T+1}, v{vFa}, s[{S_WS}:{S_WS+3}], s{sO} offen offset:2046 sc1
    s_mov_b64 exec, -1
    {LN}:
    s_bcnt1_i32_b32 s{sN}, s{sTodo}
    s_cbranch_scc0 {LZ}
    """)
    for n in range(1, 8): a(f"s_cmp_eq_u32 s{sN}, {n}\ns_cbranch_scc1 {I[n]}")
    for k in range(7, -1, -1):
        R = B0 + 24 * k
        a(f"""
        {I[k+1]}:
        s_ff1_i32_b32 s{sH[k]}, s{sTodo}
        s_bitset0_b32 s{sTodo}, s{sH[k]}
        s_lshl_b32 s{sA}, s{sH[k]}, 11
        s_add_u32 s{sA}, s{sA}, s{sO}
        buffer_load_dwordx4 {vr(R,4)}, v{vWl}, s[{S_WS}:{S_WS+3}], s{sA} offen{LF}
        buffer_load_dwordx4 {vr(R+4,4)}, v{vWl}, s[{S_WS}:{S_WS+3}], s{sA} offen offset:1024{LF}
        s_mul_i32 s{sA}, s{sH[k]}, {28*128}
        v_add_u32 v{vAd}, s{sA}, v{vW0}
        v_add_u32 v{vAd+1}, s{sA}, v{vW1}
        v_xor_b32 v{vAd+2}, 64, v{vAd}
        v_xor_b32 v{vAd+3}, 64, v{vAd+1}
        """)
        for ct in range(2):
            for f in range(2):
                for i2 in range(2): a(f"ds_read_b64_tr_b16 {vr(R+8+8*ct+4*f+2*i2,2)}, v{vAd+2*ct+f} offset:{4*i2*128}")
    a("s_waitcnt lgkmcnt(0)")
    for n in range(1, 8): a(f"s_cmp_eq_u32 s{sN}, {n}\ns_cbranch_scc1 {W[n]}")
    for k in range(7, -1, -1):
        R = B0 + 24 * k
        a(f"""
        {W[k+1]}:
        s_waitcnt vmcnt({2*k})
        v_xor_b32 v{R+3}, v{R+3}, v{vTag}
        v_xor_b32 v{R+7}, v{R+7}, v{vTag}
        v_or_b32 v{T}, v{R+3}, v{R+7}
        v_cmp_lt_u32 vcc, 0xffff, v{T}
        s_cbranch_vccnz {W[k]}
        s_bitset0_b32 s{sNeed}, s{sH[k]}
        {f"s_memrealtime s[70:71]{chr(10)}s_add_u32 s72, s{sH[k]}, 32{chr(10)}s_waitcnt lgkmcnt(0){chr(10)}s_mov_b32 m0, s72{chr(10)}s_nop 0{chr(10)}v_writelane_b32 v{VST}, s70, m0{chr(10)}v_writelane_b32 v{VST}, s{S3}, 48" if OPT.get('ofine') else ""}
        """)
        for f in range(2):
            for ct in range(2):
                a(f"{MFMA} {vr(ACC[ct],16)}, {vr(R+8+8*ct+4*f,4)}, {vr(R+4*f,4)}, {vr(ACC[ct],16)}")
    l1 = a.lab("Lox"); l2 = a.lab("Lox")
    a(f"""
    {W[0]}:
    s_cmp_eq_u32 s{sNeed}, 0
    s_cbranch_scc1 {LD_}
    v_cmp_eq_u32 vcc, s{sLo}, v{T+1}
    s_and_b32 s{sTodo}, vcc_lo, s{sRest}
    s_branch {LP}
    {LZ}:
    s_waitcnt vmcnt(0)
    v_cmp_eq_u32 vcc, s{sLo}, v{T+1}
    s_and_b32 s{sTodo}, vcc_lo, s{sRest}
    s_cbranch_scc1 {LP}
    s_sleep {OPT.get('osl', 6)}
    s_branch {LP}
    {LD_}:
    s_nop 7
    """)
    stamp(1)
    a(f"s_cmp_eq_u32 s{S_NH}, 0\ns_cbranch_scc1 {l1}")
    for k in range(4): a(f"ds_write_b128 v213, {vr(ACC[0]+4*k,4)} offset:{1024*k}")
    pair_signal(6)
    for k in range(16): a(f"v_mov_b32 v{ACC[0]+k}, v{ACC[1]+k}")
    a(f"s_branch {l2}\n{l1}:")
    for k in range(4): a(f"ds_write_b128 v213, {vr(ACC[1]+4*k,4)} offset:{1024*k}")
    pair_signal(6)
    a(f"{l2}:")
    pair_wait(6)
    for k in range(4): a(f"ds_read_b128 {vr(B0+4*k,4)}, v214 offset:{1024*k}")
    OSF = OPT.get('osf', '').replace('_', ' ')
    for h in range(2):
        a(f"s_waitcnt lgkmcnt({2 - 2*h})")
        for k in range(8*h, 8*h+8, 2): a(f"v_pk_add_f32 {vr(B0+k,2)}, {vr(B0+k,2)}, {vr(ACC[0]+k,2)}")
        for k in range(4*h, 4*h+4): a(f"v_cvt_pk_bf16_f32 v{B0+16+k}, v{B0+2*k}, v{B0+2*k+1}")
        a(f"buffer_store_dwordx4 {vr(B0+16+4*h,4)}, v{vSt}, s[{S_OUT}:{S_OUT+3}], s{sOut} offen offset:{16*h}{OSF}")
    if STAMPS: a("s_waitcnt vmcnt(0)")
    stamp(2)
    stamp_save(1, 3)
    stamp_flush('B')
    a("s_endpgm")
```

```python
import sys, math, struct
STAMPS = '--stamps' in sys.argv
OPT = dict(x.split('=') for x in sys.argv[2:] if '=' in x)
CS = (28 ** -0.5) * math.log2(math.e)
LOG2E = math.log2(math.e)
KN = "concat_heads__mha_block__ssm_conv_s4d__prompt_kernel"

class Asm:
    def __init__(self): self.lines = []; self.uid = 0
    def __call__(self, s):
        for l in s.split("\n"):
            l = l.strip()
            if not l: continue
            self.lines.append(l if (l.endswith(":") and " " not in l) else "    " + l)
    def lab(self, p="L"):
        self.uid += 1
        return f"{p}_{self.uid}"
    def text(self): return "\n".join(self.lines) + "\n"
a = Asm()
def vr(r, n=1): return f"v{r}" if n == 1 else f"v[{r}:{r+n-1}]"
def sr(r, n=1): return f"s{r}" if n == 1 else f"s[{r}:{r+n-1}]"
def f32(x): return hex(struct.unpack("<I", struct.pack("<f", x))[0])
MFMA = "v_mfma_f32_32x32x16_bf16"

QBUF, KBUF, VBUF, OBUF, UTB, YTB, FLG, STAMP = 0, 0x200000, 0x400000, 0x5E0000, 0x800000, 0xA00000, 0xC00000, 0xF00000
WS_SIZE = 0x1000000
TILEB = 28672
UROW = 4224
F1 = FLG
FU = FLG + 0x1C000
FY = FU + 0x1C000
FH = FY + 0x7000
KA_X, KA_WQKV, KA_WO, KA_U, KA_LOGA, KA_AIM, KA_CR, KA_CI, KA_LOGDT, KA_DSKIP, KA_OUT, KA_DBG, KA_WS = [8 * i for i in range(13)]

S3 = 3
S_WS, S_X, S_W, S_WO, S_U, S_OUT, S_DBG, S_KV = 4, 8, 12, 16, 20, 24, 28, 32
S_WAVE, S_J, S_RB, S_H, S_B, S_I, S_BW, S_C, S_NH, S_PRIV, S_NONCE, sD, sLD, sDS = range(36, 50)
S_T = 50
S_KA = 64
XO = [76 + i for i in range(7)]; WO_ = [83 + i for i in range(7)]
sM, sMB, sRot, sXb, sWb, sF1 = 90, 91, 92, 93, 94, 95
def kp(off): return f"s[{S_KA + off//4}:{S_KA + off//4 + 1}]"

PRIVB = 8704
SP = 1568
KPLB = 4 * SP
KPLL = 0
PRIV0 = 2 * KPLB
RING = PRIV0 + 4 * PRIVB
XCH = RING
WOL = RING + 49152
SYNC = RING + 114688
C_GD, C_PAIR, C_WU, C_PY, C_WY = 0, 16, 32, 36, 40
SF = " sc1"
LF = " sc1"
SPIN_MAX = 50000

VST = 253
def stamp(idx):
    if STAMPS: a(f"{'s_memtime' if OPT.get('cyc') else 's_memrealtime'} s[{64+2*idx}:{65+2*idx}]")
def stamp_save(bank, n):
    if not STAMPS: return
    a("s_waitcnt lgkmcnt(0)")
    for i in range(n): a(f"v_writelane_b32 v{VST}, s{64+2*i}, {bank*6+i}")
def stamp_flush(role=None):
    if not STAMPS: return
    pr = OPT.get('probe')
    if pr:
        if pr[0] != role: return
        L = a.lab("Lpr"); D = a.lab("Lpr")
        a(f"""
        s_cmp_lg_u32 s2, {OPT.get('pwg', 100)}
        s_cbranch_scc1 {D}
        v_readlane_b32 s62, v{VST}, {pr[1:] if pr[1:] not in 'nf' else 0}
        {f"s_mov_b32 s62, s{S_NONCE}" if pr[1:] == 'n' else ""}
        {"s_mov_b32 s62, s96" if pr[1:] == 'f' else ""}
        s_add_u32 s62, s62, 4000
        {L}:
        s_memrealtime s[60:61]
        s_waitcnt lgkmcnt(0)
        s_sub_u32 s60, s60, s62
        s_cmp_lt_i32 s60, 0
        s_cbranch_scc1 {L}
        {D}:
        """)
        return
    a(f"v_writelane_b32 v{VST}, s96, 18")
    a(f"s_lshl_b32 s62, s2, 3\ns_add_u32 s62, s62, s{S_WAVE}\ns_lshl_b32 s62, s62, 8\ns_add_u32 s62, s62, {STAMP}")
    a(f"v_lshlrev_b32 v254, 2, v0\nbuffer_store_dword v{VST}, v254, s[{S_WS}:{S_WS+3}], s62 offen")

class Q:
    def __init__(self, cap): self.q = []; self.cap = cap
    def issue(self, tag): self.q.append(tag)
    def wait_for(self, tag):
        idx = max(i for i, t in enumerate(self.q) if t == tag)
        return min(len(self.q) - 1 - idx, self.cap)

def srd(dst, ka_off, size):
    src = S_KA + ka_off // 4
    a(f"s_mov_b32 s{dst}, s{src}\ns_mov_b32 s{dst+1}, s{src+1}\ns_mov_b32 s{dst+2}, {size}\ns_mov_b32 s{dst+3}, 0x00020000")

def load_nonce(vT): return f"buffer_load_dword v{vT}, off, s[{S_DBG}:{S_DBG+3}], 0 sc1"
def get_nonce(vT, cnt=0):
    L = a.lab("Lnon"); D = a.lab("Lnon")
    a(f"""
    s_mov_b32 s{S3}, 0
    s_waitcnt vmcnt({cnt})
    {L}:
    v_readfirstlane_b32 s{S_NONCE}, v{vT}
    s_add_u32 s{S3}, s{S3}, 1
    s_cmp_lg_u32 s{S_NONCE}, 0
    s_cbranch_scc1 {D}
    s_cmp_gt_u32 s{S3}, {SPIN_MAX}
    s_cbranch_scc1 {D}
    s_sleep 8
    {load_nonce(vT)}
    s_waitcnt vmcnt(0)
    s_branch {L}
    {D}:
    """)

def poll(vA, vT, sleep, few=6):
    L = a.lab("Lpoll"); D = a.lab("Lpoll")
    a(f"""
    s_mov_b32 s{S3}, 0
    {L}:
    buffer_load_dword v{vT}, v{vA}, s[{S_WS}:{S_WS+3}], 0 offen sc1
    s_add_u32 s{S3}, s{S3}, 1
    s_cmp_gt_u32 s{S3}, {SPIN_MAX}
    s_cbranch_scc1 {D}
    s_waitcnt vmcnt(0)
    v_cmp_ne_u32 vcc, s{S_NONCE}, v{vT}
    s_cbranch_vccz {D}
    s_mov_b64 exec, vcc
    s_bcnt1_i32_b64 s{S_T+13}, vcc
    s_cmp_le_u32 s{S_T+13}, {few}
    s_cbranch_scc1 {L}
    s_sleep {sleep}
    s_branch {L}
    {D}:
    s_mov_b64 exec, -1
    """)

def publish(sOff, vT):
    a(f"""
    v_mov_b32 v{vT}, s{S_NONCE}
    s_waitcnt vmcnt(0)
    s_mov_b64 exec, 1
    buffer_store_dword v{vT}, off, s[{S_WS}:{S_WS+3}], s{sOff} sc1
    s_mov_b64 exec, -1
    """)

def lds_wait(vaddr, off, k, vT, sleep=0):
    L = a.lab("Lpw"); D = a.lab("Lpw")
    a(f"""
    {L}:
    ds_read_b32 v{vT}, v{vaddr} offset:{off}
    s_waitcnt lgkmcnt(0)
    v_readfirstlane_b32 s{S3}, v{vT}
    s_cmp_ge_u32 s{S3}, {k}
    s_cbranch_scc1 {D}
    {f"s_sleep {sleep}" if sleep else ""}
    s_branch {L}
    {D}:
    """)

def group_publish(cnt, sOff, sLast, vSy, vT):
    L = a.lab("Lgp")
    a(f"""
    v_mov_b32 v{vT}, 1
    s_waitcnt vmcnt(0)
    s_mov_b64 exec, 1
    ds_add_rtn_u32 v{vT}, v{vSy}, v{vT} offset:{cnt}
    v_mov_b32 v{vT+1}, s{S_NONCE}
    s_waitcnt lgkmcnt(0)
    v_readfirstlane_b32 s{sLast}, v{vT}
    s_cmp_lg_u32 s{sLast}, 3
    s_cbranch_scc1 {L}
    buffer_store_dword v{vT+1}, off, s[{S_WS}:{S_WS+3}], s{sOff} sc1
    {L}:
    s_mov_b64 exec, -1
    """)

def group_wait(word, sSel, sel, vFa, vSy, vT, sleep):
    L = a.lab("Lgw"); D = a.lab("Lgw")
    a(f"s_cmp_lg_u32 s{sSel}, {sel}\ns_cbranch_scc1 {L}\ns_mov_b32 exec_hi, 0")
    poll(vFa, vT, sleep, 0)
    a(f"""
    v_mov_b32 v{vT}, 1
    s_mov_b64 exec, 1
    ds_write_b32 v{vSy}, v{vT} offset:{word}
    s_mov_b64 exec, -1
    s_branch {D}
    {L}:
    """)
    lds_wait(vSy, word, 1, vT, sleep)
    a(f"{D}:")

MIX = int(OPT.get('mix', 7))
stream = []; sizes = []
for c in range(MIX): stream += [("x", c), ("k", c), ("v", c)]; sizes.append(3)
tail = []
for c in range(MIX, 7): tail += [("x", c), ("k", c)]
tail += [("v", c) for c in range(MIX, 7)] + [("q", c) for c in range(7)]
cur = 0; nw = 0
for t in tail:
    stream.append(t); cur += 1
    if t[0] != "x": nw += 1
    if nw == 2: sizes.append(cur); cur = 0; nw = 0
if cur: sizes.append(cur)
NS = len(sizes)
first = [sum(sizes[:i]) for i in range(NS + 1)]
last_slot = lambda kind: max(slot_of[n] for n in range(28) if stream[n][0] == kind)
slot_of = {n: s for s in range(NS) for n in range(first[s], first[s + 1])}
NA = int(OPT.get('na', 2))
NBAR = int(OPT.get('nbar', 9))
rpos = lambda n: n % 14
sKP = 100
vXa, vXb, vWa, vWb = 2, 3, 4, 5
def dma(n):
    kind, c = stream[n]
    base = RING + rpos(n) * 8192
    secoff = dict(k=896, v=1792)
    ins = []
    for half in range(2):
        blk = [f"s_add_u32 m0, s{sM}, {base + half * 1024}"]
        if kind == "x":
            blk += ["s_nop 0", f"buffer_load_dwordx4 v{vXa if half == 0 else vXb}, s[{S_X}:{S_X+3}], s{XO[c]} offen lds"]
        elif kind == "q":
            blk += ["s_nop 0", f"buffer_load_dwordx4 v{vWa if half == 0 else vWb}, s[{S_W}:{S_W+3}], s{WO_[c]} offen lds"]
        else:
            blk += [f"s_add_u32 s{sMB}, s{WO_[c]}, {secoff[kind]}" if half == 0 else "s_nop 0",
                    f"buffer_load_dwordx4 v{vWa if half == 0 else vWb}, s[{S_W}:{S_W+3}], s{sMB} offen lds"]
        ins.append("\n".join(blk))
    return ins
def offsets(c):
    a(f"""
    s_lshl_b32 s{XO[c]}, s{sRot}, 7
    s_add_u32 s{XO[c]}, s{XO[c]}, s{sXb}
    s_mul_i32 s{WO_[c]}, s{sRot}, {64*2688}
    s_add_u32 s{WO_[c]}, s{WO_[c]}, s{sWb}
    s_add_u32 s{sRot}, s{sRot}, 1
    s_cmp_eq_u32 s{sRot}, 7
    s_cselect_b32 s{sRot}, 0, s{sRot}
    """)

def touch(v):
    a(f"""
    v_min_u32 v{v}, 6, v0
    v_cmp_eq_u32 vcc, 3, v{v}
    v_lshlrev_b32 v{v}, 21, v{v}
    v_add_u32 v{v}, 0x1d0000, v{v}
    v_add_u32 v{v+1}, 0x20000, v{v}
    v_cndmask_b32 v{v}, v{v}, v{v+1}, vcc
    buffer_load_dword v{v+1}, v{v}, s[{S_WS}:{S_WS+3}], 0 offen sc1
    buffer_load_dword v{v+2}, off, s[{S_DBG}:{S_DBG+3}], 0 offset:128 sc1
    v_and_b32 v{v}, 1, v0
    v_lshlrev_b32 v{v}, 21, v{v}
    buffer_load_dword v{v+3}, v{v}, s[{S_OUT}:{S_OUT+3}], 0 offen sc1
    buffer_load_dword v{v+4}, off, s[{S_WO}:{S_WO+3}], 0
    """)
```

```python
from base import *
POIS = OPT.get('poison', '1') == '1'
C_AX, C_AH = 44, 48

def prologue():
    T = S_T
    if STAMPS: a("s_memrealtime s[96:97]")
    a(f"""
    s_cmp_ge_u32 s2, 256
    s_cbranch_scc1 L_end
    s_load_dwordx16 s[{S_KA}:{S_KA+15}], s[0:1], 0
    s_load_dwordx8 s[{S_KA+16}:{S_KA+23}], s[0:1], 64
    s_load_dwordx2 s[{S_KA+24}:{S_KA+25}], s[0:1], 96
    v_lshrrev_b32 v1, 6, v0
    s_and_b32 s{T}, s2, 7
    s_lshr_b32 s{S_I}, s2, 3
    s_add_u32 s{S_I}, s{S_I}, 28
    s_and_b32 s{S_I}, s{S_I}, 31
    v_readfirstlane_b32 s{S_WAVE}, v1
    v_and_b32 v0, 63, v0
    {'v_mov_b32 v253, -1' if STAMPS else ''}
    s_and_b32 s{T+2}, s{S_I}, 1
    s_lshl_b32 s{S_H}, s{T}, 1
    s_add_u32 s{S_H}, s{S_H}, s{T+2}
    s_lshr_b32 s{S_B}, s2, 4
    v_lshlrev_b32 v6, 2, v0
    v_add_u32 v7, {SYNC}, v6
    v_mov_b32 v8, 0
    ds_write_b32 v7, v8
    s_cmp_ge_u32 s{S_I}, 28
    s_cbranch_scc1 L_idle
    s_and_b32 s{T+2}, s{T}, 1
    s_mul_i32 s{T+2}, s{T+2}, 28
    s_add_u32 s{T+2}, s{T+2}, s{S_I}
    s_lshr_b32 s{S_J}, s{T+2}, 3
    s_and_b32 s{T+2}, s{T+2}, 7
    s_lshr_b32 s{S_RB}, s{T}, 1
    s_lshl_b32 s{S_RB}, s{S_RB}, 3
    s_add_u32 s{S_RB}, s{S_RB}, s{T+2}
    s_and_b32 s{S_BW}, s{S_WAVE}, 3
    s_lshr_b32 s{S_C}, s{S_BW}, 1
    s_and_b32 s{S_NH}, s{S_BW}, 1
    s_lshl_b32 s{sD}, s{S_J}, 5
    s_add_u32 s{sD}, s{sD}, s{S_RB}
    s_lshl_b32 s{sD}, s{sD}, 2
    s_add_u32 s{T+3}, s{sD}, s{S_BW}
    s_lshl_b32 s{T+3}, s{T+3}, 8
    v_add_u32 v6, s{T+3}, v6
    v_lshrrev_b32 v14, 3, v0
    v_and_b32 v15, 7, v0
    s_lshl_b32 s{sM}, s{S_BW}, 4
    v_add_u32 v1, s{sM}, v14
    v_lshrrev_b32 v14, 1, v14
    v_xor_b32 v{vXa}, v15, v14
    v_lshlrev_b32 v{vXa}, 4, v{vXa}
    v_mul_u32_u24 v{vXb}, 896, v1
    v_add_u32 v{vXa}, v{vXa}, v{vXb}
    v_xor_b32 v{vXb}, 64, v{vXa}
    v_add_u32 v{vXb}, {8*896}, v{vXb}
    v_and_b32 v14, 1, v14
    v_lshlrev_b32 v14, 2, v14
    v_xor_b32 v14, v15, v14
    v_lshlrev_b32 v14, 4, v14
    v_mul_u32_u24 v{vWa}, 2688, v1
    v_add_u32 v{vWa}, v{vWa}, v14
    v_add_u32 v{vWb}, {8*2688}, v{vWa}
    s_lshl_b32 s{sM}, s{S_BW}, 11
    s_lshl_b32 s{sMB}, s{S_J}, 1
    s_add_u32 s{sRot}, s{T+2}, s{sMB}
    {f"s_add_u32 s{sRot}, s{sRot}, s{T+2}" if OPT.get('rot2', '1') == '1' else ""}
    s_mul_i32 s{sMB}, s{sRot}, 37
    s_lshr_b32 s{sMB}, s{sMB}, 8
    s_mul_i32 s{sMB}, s{sMB}, 7
    s_sub_u32 s{sRot}, s{sRot}, s{sMB}
    {dict(full="", none=f"s_mov_b32 s{sRot}, 0", two=f"s_and_b32 s{sRot}, s{sRot}, 1", four=f"s_and_b32 s{sRot}, s{sRot}, 3")[OPT.get('rot', 'full')]}
    s_mul_i32 s{sXb}, s{S_RB}, {64*896}
    s_lshl_b32 s{sWb}, s{S_J}, 7
    s_cmp_ge_u32 s{S_WAVE}, 4
    s_cbranch_scc1 L_B
    """)

def gemm():
    vXr = [6, 7, 8, 9]; vXh = [245, 246, 247, 248]
    vWlo, vWhi, vKst, vVst = 10, 11, 12, 13
    vT0, vT1, vT2 = 14, 15, 1
    XF, WF = 16, 128
    ACC = dict(k=192, v=208, q=224)
    vSy, vOne, vNon = 240, 241, 243
    sKst, sVst, sV2, sQst, sCS, sA, sB_ = [S_T + i for i in range(7)]
    a("s_setprio 2\ns_waitcnt lgkmcnt(0)")
    srd(S_X, KA_X, 1835008); srd(S_W, KA_WQKV, 1204224); srd(S_WS, KA_WS, WS_SIZE); srd(S_DBG, KA_DBG, 256)
    stamp(0)
    vm = Q(63); lg = Q(15)
    done = 0
    for c in range(NA):
        while done <= max(stream[n][1] for n in range(first[c], first[c + 1])): offsets(done); done += 1
        if c == 0: a("s_barrier")
        if OPT.get('hold') and c == int(OPT.get('hold')) - 1: a("s_barrier")
        for n in range(first[c], first[c + 1]):
            for t in dma(n): a(t); vm.issue(("d", c))
        if c == 0:
            a(f"""
            v_and_b32 v{vT0}, 31, v0
            v_lshrrev_b32 v{vT1}, 5, v0
            v_lshrrev_b32 v{vT2}, 1, v{vT0}
            v_and_b32 v{vT2}, 7, v{vT2}
            v_xor_b32 v{vT2}, v{vT2}, v{vT1}
            v_lshlrev_b32 v{vT2}, 4, v{vT2}
            v_lshl_add_u32 v{vXr[0]}, v{vT0}, 7, v{vT2}
            s_lshl_b32 s{sA}, s{S_C}, 12
            v_xor_b32 v{vXr[1]}, 32, v{vXr[0]}
            v_xor_b32 v{vXr[2]}, 64, v{vXr[0]}
            v_xor_b32 v{vXr[3]}, 96, v{vXr[0]}
            s_add_u32 s{sA}, s{sA}, {RING}
            v_add_u32 v{vXr[0]}, s{sA}, v{vXr[0]}
            v_add_u32 v{vXr[1]}, s{sA}, v{vXr[1]}
            v_add_u32 v{vXr[2]}, s{sA}, v{vXr[2]}
            v_add_u32 v{vXr[3]}, s{sA}, v{vXr[3]}
            v_add_u32 v{vXh[0]}, 0x10000, v{vXr[0]}
            v_add_u32 v{vXh[1]}, 0x10000, v{vXr[1]}
            v_add_u32 v{vXh[2]}, 0x10000, v{vXr[2]}
            v_add_u32 v{vXh[3]}, 0x10000, v{vXr[3]}
            v_bfe_u32 v{vT2}, v0, 2, 2
            v_lshl_add_u32 v{vWlo}, v{vT1}, 3, v{vT2}
            v_lshlrev_b32 v{vWlo}, 7, v{vWlo}
            v_lshrrev_b32 v{vT2}, 1, v{vT2}
            v_xor_b32 v{vT2}, s{S_NH}, v{vT2}
            v_lshl_add_u32 v{vWlo}, v{vT2}, 6, v{vWlo}
            v_bfe_u32 v{vT2}, v0, 4, 1
            v_lshl_add_u32 v{vWlo}, v{vT2}, 5, v{vWlo}
            v_and_b32 v{vT2}, 1, v0
            v_lshl_add_u32 v{vWlo}, v{vT2}, 4, v{vWlo}
            v_bfe_u32 v{vT2}, v0, 1, 1
            v_lshl_add_u32 v{vWlo}, v{vT2}, 3, v{vWlo}
            v_add_u32 v{vWlo}, {RING}, v{vWlo}
            v_add_u32 v{vWhi}, 0x10000, v{vWlo}
            """)
        if c == 1:
            a(f"""
            v_lshlrev_b32 v{vKst}, 4, v0
            v_and_b32 v{vVst}, 0x13, v{vT0}
            v_bfe_u32 v{vT2}, v{vT0}, 2, 1
            v_lshl_add_u32 v{vVst}, v{vT2}, 3, v{vVst}
            v_bfe_u32 v{vT2}, v{vT0}, 3, 1
            v_lshl_add_u32 v{vVst}, v{vT2}, 2, v{vVst}
            v_lshlrev_b32 v{vVst}, 4, v{vVst}
            v_mul_u32_u24 v{vT2}, 7168, v{vT1}
            v_add_u32 v{vVst}, v{vVst}, v{vT2}
            s_lshl_b32 s{sA}, s{S_RB}, 1
            s_add_u32 s{sA}, s{sA}, s{S_C}
            s_lshl_b32 s{sB_}, s{S_J}, 1
            s_add_u32 s{sB_}, s{sB_}, s{S_NH}
            s_lshl_b32 s{sF1}, s{sB_}, 6
            s_add_u32 s{sF1}, s{sF1}, s{sA}
            s_lshl_b32 s{sF1}, s{sF1}, 7
            s_add_u32 s{sF1}, s{sF1}, {F1}
            s_mul_i32 s{sA}, s{sA}, {TILEB}
            s_lshl_b32 s{sQst}, s{sB_}, 11
            s_add_u32 s{sQst}, s{sQst}, s{sA}
            s_add_u32 s{sKst}, s{sQst}, {KBUF}
            s_lshl_b32 s{sVst}, s{sB_}, 9
            s_add_u32 s{sVst}, s{sVst}, s{sA}
            s_add_u32 s{sVst}, s{sVst}, {VBUF}
            s_add_u32 s{sV2}, s{sVst}, 14336
            s_mov_b32 s{sCS}, {f32(CS)}
            v_mov_b32 v{vSy}, {SYNC}
            v_mov_b32 v{vOne}, 1
            """)
            if POIS:
                for k in range(4): a(f"v_mov_b32 v{ACC['q']+k}, -1")
                a(f"buffer_store_dwordx4 {vr(ACC['q'],4)}, v{vKst}, s[{S_WS}:{S_WS+3}], s{sQst} offen{SF}")
                a(f"buffer_store_dwordx4 {vr(ACC['q'],4)}, v{vKst}, s[{S_WS}:{S_WS+3}], s{sQst} offen offset:1024{SF}")
                vm.issue("p"); vm.issue("p")
    def frags(s):
        w = [n for n in range(first[s], first[s + 1]) if stream[n][0] != "x"]
        if s < MIX: return [(stream[n][0], stream[n][1], kp_, n) for kp_ in range(4) for n in w]
        return [(stream[n][0], stream[n][1], kp_, n) for n in w for kp_ in range(4)]
    def reads(s):
        buf = WF + (s % 2) * 32
        out = []
        for fi, (kind, c, k_, n) in enumerate(frags(s)):
            if kind == "k":
                off = ((n - 1) % 14) * 8192
                out.append(f"ds_read_b128 {vr(XF + (4 * c + k_) * 4, 4)}, v{(vXh if off >= 65536 else vXr)[k_]} offset:{off & 0xffff}")
            off = (n % 14) * 8192
            va = vWhi if off >= 65536 else vWlo
            for i2 in range(2):
                out.append(f"ds_read_b64_tr_b16 {vr(buf + fi * 4 + i2 * 2, 2)}, v{va} offset:{(off & 0xffff) + k_ * 2048 + i2 * 512}")
        return out
    def mfmas(s):
        buf = WF + (s % 2) * 32
        ins = []
        for fi, (kind, c, k_, n) in enumerate(frags(s)):
            acc = ACC[kind]
            w = vr(buf + fi * 4, 4); x = vr(XF + (4 * c + k_) * 4, 4)
            cc = "0" if (c == 0 and k_ == 0) else vr(acc, 16)
            ins.append(f"{MFMA} {vr(acc,16)}, {x}, {w}, {cc}" if kind == "v" else f"{MFMA} {vr(acc,16)}, {w}, {x}, {cc}")
        return ins
    def epi(kind):
        acc = ACC[kind]
        ins = []
        if kind == "k": ins += [f"v_mul_f32 v{acc+i}, s{sCS}, v{acc+i}" for i in range(16)]
        ins += [f"v_cvt_pk_bf16_f32 v{acc+i}, v{acc+2*i}, v{acc+2*i+1}" for i in range(8)]
        if kind == "v":
            ins.append(f"buffer_store_dwordx4 {vr(acc,4)}, v{vVst}, s[{S_WS}:{S_WS+3}], s{sVst} offen{SF}")
            ins.append(f"buffer_store_dwordx4 {vr(acc+4,4)}, v{vVst}, s[{S_WS}:{S_WS+3}], s{sV2} offen{SF}")
        else:
            so = sKst if kind == "k" else sQst
            ins.append(f"buffer_store_dwordx4 {vr(acc,4)}, v{vKst}, s[{S_WS}:{S_WS+3}], s{so} offen{SF}")
            ins.append(f"buffer_store_dwordx4 {vr(acc+4,4)}, v{vKst}, s[{S_WS}:{S_WS+3}], s{so} offen offset:1024{SF}")
        return ins
    SS = [int(x) for x in OPT.get('ss', '0,3,7,10').split(',')]
    for s in range(NS):
        a(f"; ---- slot {s}")
        a(f"s_waitcnt vmcnt({vm.wait_for(('d', s))}) lgkmcnt(0)" if s < NA else "s_waitcnt lgkmcnt(0)")
        if s < NBAR: a("s_barrier")
        if s in SS: stamp(1 + SS.index(s))
        m = mfmas(s - 1) if s >= 1 else []
        rd = reads(s)
        ep = []
        if s == last_slot("k") + 2: ep = ep + epi("k")
        if s == last_slot("v") + 2 + (0 if (POIS or MIX < 7) else 1): ep = ep + epi("v")
        if s == 4: ep = [load_nonce(vNon)] + ep
        if OPT.get('abl') == 'nocomp': continue
        if OPT.get('abl') == 'nomfma': m = []
        if not m:
            for t in rd: a(t)
            continue
        n = len(m)
        gaps = [[] for _ in range(n)]
        for k, r in enumerate(rd): gaps[min(k // 3, n - 1)].append(r)
        for k, r in enumerate(ep): gaps[2 + k * (n - 2 - int(OPT.get('epc', 0))) // len(ep)].append(r)
        for k in range(n):
            a(m[k])
            for t in gaps[k]: a(t)
    a("s_waitcnt lgkmcnt(0)")
    for t in mfmas(NS - 1): a(t)
    a(f"""
    s_mov_b64 exec, 1
    ds_add_u32 v{vSy}, v{vOne} offset:{C_GD}
    s_mov_b64 exec, -1
    """)
    get_nonce(vNon, 4)
    if POIS and OPT.get('fpos', '0') == '0':
        publish(sF1, vT0)
    else: a("s_nop 3")
    for t in epi("q"): a(t)
    if POIS and OPT.get('fpos', '0') == '1':
        a(f"""
        v_mov_b32 v{vT0}, s{S_NONCE}
        s_waitcnt vmcnt(2)
        s_mov_b64 exec, 1
        buffer_store_dword v{vT0}, off, s[{S_WS}:{S_WS+3}], s{sF1} sc1
        s_mov_b64 exec, -1
        """)
    if POIS:
        stamp(5)
        stamp_save(0, 6)

OOL = []
def attention():
    vKa, vVa, vVb = 2, 3, 4
    vT0, vT1, vT2, vL = 5, 6, 7, 1
    Qr, O, S, P = 8, 40, [104, 120], [136, 144]
    KB = [152 + 16 * i for i in range(4)]
    VB = [160 + 16 * i for i in range(4)]
    vSy, vOne = 216, 217
    sK, sCnt, sOst, sFl = S_T, S_T + 1, S_T + 2, S_T + 3
    sMask = S_T + 4
    sQ = [S_T + 6 + i for i in range(4)]
    sA, sB_ = S_T + 10, S_T + 11
    a(f"""
    L_attn:
    s_setprio 2
    s_mov_b32 s{S_KV}, s{S_WS}
    s_mov_b32 s{S_KV+1}, s{S_WS+1}
    s_mov_b32 s{S_KV+2}, {WS_SIZE}
    s_mov_b32 s{S_KV+3}, 0x00020000
    s_mul_i32 s{sA}, s{S_H}, 7
    s_lshr_b32 s{sA}, s{sA}, 1
    v_bfe_u32 v{vT0}, v0, 4, 1
    v_and_b32 v{vT1}, 15, v0
    s_lshl_b32 s{sB_}, s{S_WAVE}, 4
    v_add_u32 v{vT1}, s{sB_}, v{vT1}
    v_bfe_u32 v{vT2}, v0, 2, 1
    v_and_b32 v{vL}, 3, v0
    s_lshl_b32 s{sB_}, s{S_B}, 2
    v_add_u32 v{vL}, s{sB_}, v{vL}
    v_cmp_gt_u32 vcc, 32, v0
    s_add_u32 s{sB_}, s{sA}, 3
    s_lshr_b32 s{sB_}, s{sB_}, 2
    v_cndmask_b32 v{vT0}, v{vT2}, v{vT0}, vcc
    v_cndmask_b32 v{vT1}, v{vL}, v{vT1}, vcc
    s_lshr_b32 s{sCnt}, s{sA}, 2
    v_add_u32 v{vT0}, s{sCnt}, v{vT0}
    v_min_u32 v{vT0}, s{sB_}, v{vT0}
    v_lshl_add_u32 v{vT0}, v{vT0}, 6, v{vT1}
    v_lshlrev_b32 v{vT0}, 7, v{vT0}
    v_add_u32 v{vL}, {F1}, v{vT0}
    s_lshl_b32 s{sA}, s{sA}, 9
    v_lshlrev_b32 v{vKa}, 4, v0
    v_add_u32 v{vKa}, s{sA}, v{vKa}
    """)
    for q in range(4):
        a(f"""
        s_add_u32 s{sQ[q]}, s{S_WAVE}, {q+1}
        s_and_b32 s{sQ[q]}, s{sQ[q]}, 3
        s_lshl_b32 s{sA}, s{S_B}, 2
        s_add_u32 s{sQ[q]}, s{sQ[q]}, s{sA}
        s_mul_i32 s{sQ[q]}, s{sQ[q]}, {TILEB}
        """)
    a(f"""
    v_and_b32 v{vT0}, 31, v0
    v_lshrrev_b32 v{vT1}, 5, v0
    v_and_b32 v{vVa}, 3, v0
    v_bfe_u32 v{vT2}, v0, 3, 1
    v_lshl_add_u32 v{vVa}, v{vT2}, 2, v{vVa}
    v_bfe_u32 v{vT2}, v0, 2, 1
    v_mad_u32_u24 v{vVa}, v{vT2}, 7, v{vVa}
    v_bfe_u32 v{vT2}, v0, 4, 1
    v_mad_u32_u24 v{vVa}, v{vT2}, 14, v{vVa}
    v_lshlrev_b32 v{vVa}, 4, v{vVa}
    v_mul_u32_u24 v{vT2}, 7168, v{vT1}
    v_add_u32 v{vVa}, v{vVa}, v{vT2}
    s_mul_i32 s{sA}, s{S_H}, 448
    s_add_u32 s{sA}, s{sA}, {VBUF - KBUF}
    v_add_u32 v{vVa}, s{sA}, v{vVa}
    v_add_u32 v{vVb}, 14336, v{vVa}
    s_mul_i32 s{sK}, s{S_WAVE}, {16 * TILEB}
    s_add_u32 s{sK}, s{sK}, {KBUF}
    s_mov_b32 s{sMask}, 0x77ff77ff
    s_mov_b32 s{sMask+1}, 0x77ff77ff
    v_mov_b32 v{vT2}, 0x3f803f80
    v_or_b32 v{vT0}, 4, v{vT0}
    v_cmp_eq_u32 vcc, 31, v{vT0}
    v_mov_b32 v{vSy}, {SYNC}
    v_mov_b32 v{vOne}, 1
    v_cndmask_b32 v{vT2}, 0, v{vT2}, vcc
    """)
    init = [f"v_mov_b32 v{VB[b]+i}, v{vT2}" for b in range(4) for i in range(8)] + [f"v_mov_b32 v{O+i}, 0" for i in range(64)]
    init += [f"v_mov_b32 v{P[1]+i}, 0" for i in range(8)] + [f"v_mov_b32 v{S[1]+i}, 0" for i in range(12, 16)]
    nb = int(len(init) * float(OPT.get('ipre', 0.3)))
    for t in init[:nb]: a(t)
    if not POIS:
        lp = a.lab("Lnp")
        a(f"s_cmp_ge_u32 s{S_I}, 28\ns_cbranch_scc1 {lp}")
        publish(sF1, 218)
        stamp(5)
        stamp_save(0, 6)
        a(f"{lp}:\ns_setprio {OPT.get('wprio', 0)}")
        for t in init[nb:]: a(t)
    else:
        a(f"""
        s_mov_b32 exec_hi, 0xff
        buffer_load_dword v219, v{vL}, s[{S_WS}:{S_WS+3}], 0 offen sc1
        s_mov_b64 exec, -1
        """)
        for t in init[nb:]: a(t)
        a(f"""
        s_mov_b32 exec_hi, 0xff
        s_waitcnt vmcnt(0)
        v_cmp_ne_u32 vcc, s{S_NONCE}, v219
        s_mov_b64 exec, -1
        s_cbranch_vccz L_go
        s_setprio {OPT.get('wprio', 0)}
        """)
    if OPT.get('pdel'): a(f"s_sleep {OPT.get('pdel')}")
    stamp(0)
    TWO = OPT.get('two', '0') == '1'
    a("s_mov_b32 exec_hi, 0xff")
    if TWO: a("s_mov_b32 exec_lo, 0x000f000f")
    poll(vL, vT0, int(OPT.get('psl', 6)), int(OPT.get('few', 8)))
    if TWO:
        a(f"""
        s_mov_b32 exec_hi, 0
        s_mov_b32 exec_lo, 0xfff0fff0
        buffer_load_dword v219, v{vL}, s[{S_WS}:{S_WS+3}], 0 offen sc1
        s_mov_b64 exec, -1
        """)
    a("L_go:\ns_setprio 2")
    stamp(1)
    def ldK(b, so, srd_=S_KV):
        return (f"buffer_load_dwordx4 {vr(KB[b],4)}, v{vKa}, s[{srd_}:{srd_+3}], s{so} offen{LF}\n"
                f"buffer_load_dwordx4 {vr(KB[b]+4,4)}, v{vKa}, s[{srd_}:{srd_+3}], s{so} offen offset:1024{LF}")
    def ldV(b, so, srd_=S_KV):
        return (f"s_mov_b64 exec, s[{sMask}:{sMask+1}]\n"
                f"buffer_load_dwordx4 {vr(VB[b],4)}, v{vVa}, s[{srd_}:{srd_+3}], s{so} offen{LF}\n"
                f"buffer_load_dwordx4 {vr(VB[b]+4,4)}, v{vVb}, s[{srd_}:{srd_+3}], s{so} offen{LF}\n"
                f"s_mov_b64 exec, -1")
    def ldQ(q):
        a(f"buffer_load_dwordx4 {vr(Qr+8*q,4)}, v{vKa}, s[{S_WS}:{S_WS+3}], s{sQ[q]} offen{LF}")
        a(f"buffer_load_dwordx4 {vr(Qr+8*q+4,4)}, v{vKa}, s[{S_WS}:{S_WS+3}], s{sQ[q]} offen offset:1024{LF}")
    ldQ(0); a(ldK(0, sK))
    for q in (1, 2, 3): ldQ(q)
    later = []
    for t in range(4):
        if t: later.append(ldK(t, sK))
        if t < 3: later.append(ldV(t, sK) + f"\ns_add_u32 s{sK}, s{sK}, {TILEB}")
    NE = int(OPT.get('ne', 6))
    for t in later[:NE]: a(t)
    def fixq(qs, n):
        lab = a.lab("Lqz"); lab2 = a.lab("Lqz")
        if POIS:
            lv = a.lab("Lqv"); lr = a.lab("Lqr")
            a(f"s_mov_b32 s{S3}, 0\ns_waitcnt vmcnt({n})\n{lv}:")
            regs = [Qr + 8 * q + k for q in qs for k in range(8)]
            a(f"v_max_u32 v219, v{regs[0]}, v{regs[1]}")
            for k in range(2, len(regs), 2): a(f"v_max3_u32 v219, v{regs[k]}, v{regs[k+1]}, v219")
            a(f"v_cmp_eq_u32 vcc, -1, v219\ns_cbranch_vccnz {lr}\n{lr}_b:")
            o = f"{lr}:\ns_add_u32 s{S3}, s{S3}, 1\ns_cmp_gt_u32 s{S3}, {SPIN_MAX}\ns_cbranch_scc1 {lr}_b\n"
            for q in qs:
                o += f"buffer_load_dwordx4 {vr(Qr+8*q,4)}, v{vKa}, s[{S_WS}:{S_WS+3}], s{sQ[q]} offen{LF}\n"
                o += f"buffer_load_dwordx4 {vr(Qr+8*q+4,4)}, v{vKa}, s[{S_WS}:{S_WS+3}], s{sQ[q]} offen offset:1024{LF}\n"
            o += f"s_waitcnt vmcnt(0)\ns_branch {lv}"
            OOL.append(o)
        a(f"""
        s_bitcmp0_b32 s{S_H}, 0
        s_waitcnt vmcnt({n})
        s_cbranch_scc1 {lab}
        s_mov_b32 exec_hi, 0
        """)
        for q in qs: a(f"v_mov_b32 v{Qr+8*q}, 0\nv_mov_b32 v{Qr+8*q+1}, 0")
        a(f"s_branch {lab2}\n{lab}:\ns_mov_b32 exec_lo, 0")
        for q in qs: a(f"v_mov_b32 v{Qr+8*q+6}, 0\nv_mov_b32 v{Qr+8*q+7}, 0")
        a(f"{lab2}:\ns_mov_b64 exec, -1")
    fixq([0], 8 + 2 * NE)
    def qk(u):
        i, q = (u // 4) % 4, u % 4
        s = S[u % 2]
        return [f"{MFMA} {vr(s,16)}, {vr(KB[i],4)}, {vr(Qr+8*q,4)}, 0",
                f"{MFMA} {vr(s,16)}, {vr(KB[i]+4,4)}, {vr(Qr+8*q+4,4)}, {vr(s,16)}"]
    def pv(u):
        i, q = (u // 4) % 4, u % 4
        p = P[u % 2]; o = O + 16 * q
        return [f"{MFMA} {vr(o,16)}, {vr(VB[i],4)}, {vr(p,4)}, {vr(o,16)}",
                f"{MFMA} {vr(o,16)}, {vr(VB[i]+4,4)}, {vr(p+4,4)}, {vr(o,16)}"]
    a(f"s_waitcnt vmcnt({6 + 2 * NE})\ns_mov_b32 s{sCnt}, 0\ns_nop 1")
    stamp(2)
    for m in qk(0): a(m)
    for t in later[NE:]: a(t)
    fixq([1, 2, 3], 12)
    if TWO:
        lk = a.lab("Lk2")
        a(f"""
        s_mov_b32 exec_hi, 0
        s_mov_b32 exec_lo, 0xfff0fff0
        v_cmp_ne_u32 vcc, s{S_NONCE}, v219
        s_cbranch_vccz {lk}
        """)
        poll(vL, 219, 2, 64)
        a(f"{lk}:\ns_mov_b64 exec, -1")
    else: a("s_nop 3")
    loop = a.lab("Lattn")
    a(f".p2align 6\n{loop}:")
    cvt = lambda d, s_: f"v_cvt_pk_bf16_f32 v{d}, v{s_}, v{s_+1}"
    for u in range(16):
        i, q = u // 4, u % 4
        s = S[u % 2]; p = P[u % 2]; sp = S[(u + 1) % 2]; pp = P[(u + 1) % 2]
        m = pv(u - 1)[:1] + qk(u + 1) + pv(u - 1)[1:]
        extra = {k: [] for k in range(16)}; aft = {g: [] for g in range(4)}
        if q == 0: extra[14].append("s_waitcnt vmcnt(10)")
        if q == 1: aft[1].append(ldV((i + 3) % 4, sK))
        if q == 3:
            extra[2].append("s_waitcnt vmcnt(10)")
            if i == 0: extra[0].append(f"s_cmp_eq_u32 s{sCnt}, 3\ns_cselect_b32 s{S_KV+2}, 0, s{S_KV+2}")
            extra[1].append(f"s_add_u32 s{sK}, s{sK}, {TILEB}")
            kk = ldK(i, sK).split("\n")
            aft[2].append(kk[0]); aft[3].append(kk[1])
        if u == 15:
            extra[9].append(f"s_add_u32 s{sCnt}, s{sCnt}, 1")
            extra[10].append(f"s_cmp_lt_u32 s{sCnt}, {OPT.get('ait', 4)}")
        if u == 6:
            aft[2].append(f"s_mov_b64 exec, 1\nds_add_u32 v{vSy}, v{vOne} offset:{C_AH}\ns_mov_b64 exec, -1")
        for g in range(4):
            a(m[g])
            for l in aft[g]: a(l)
            if g == 0: a(cvt(pp + 6, sp + 12) + "\n" + cvt(pp + 7, sp + 14))
            else: a(cvt(p + 2 * g - 2, s + 4 * g - 4) + "\n" + cvt(p + 2 * g - 1, s + 4 * g - 2))
            for k in range(4 * g, 4 * g + 4):
                a(f"v_exp_f32 v{s+k}, v{s+k}")
                for l in extra[k]: a(l)
    a(f"s_cbranch_scc1 {loop}")
    a(pv(15)[0])
    a(cvt(P[1] + 6, S[1] + 12) + "\n" + cvt(P[1] + 7, S[1] + 14))
    a(f"v_lshlrev_b32 v{vT0}, 4, v0\ns_nop 0")
    a(pv(15)[1])
    stamp(3)
    for q in range(3):
        a(f"""
        s_add_u32 s{sA}, s{S_WAVE}, {q+1}
        s_and_b32 s{sA}, s{sA}, 3
        s_mul_i32 s{sA}, s{sA}, 12288
        v_add_u32 v{vT1}, s{sA}, v{vT0}
        """)
        for k in range(4): a(f"ds_write_b128 v{vT1}, {vr(O+16*q+4*k,4)} offset:{XCH + q*4096 + k*1024}")
    a(f"""
    s_mov_b64 exec, 1
    ds_add_u32 v{vSy}, v{vOne} offset:{C_AX}
    s_mov_b64 exec, -1
    s_mul_i32 s{sA}, s{S_WAVE}, 12288
    v_add_u32 v{vT1}, s{sA}, v{vT0}
    s_lshl_b32 s{sOst}, s{S_B}, 2
    s_add_u32 s{sOst}, s{sOst}, s{S_WAVE}
    s_lshl_b32 s{sOst}, s{sOst}, 4
    s_add_u32 s{sOst}, s{sOst}, s{S_H}
    s_lshl_b32 s{sOst}, s{sOst}, 11
    s_add_u32 s{sOst}, s{sOst}, {OBUF}
    v_and_b32 v{vL}, 1, v0
    v_lshlrev_b32 v{vL}, 4, v{vL}
    v_lshrrev_b32 v{vL}, v{vL}, s{S_NONCE}
    v_lshlrev_b32 v{vL}, 16, v{vL}
    s_mov_b32 s{sFl}, 0xffff
    """)
    lds_wait(vSy, C_AX, 4, vT2)
    for q in range(3):
        for k in range(4): a(f"ds_read_b128 {vr(O+16*q+4*k,4)}, v{vT1} offset:{XCH + q*4096 + k*1024}")
    F = O + 48
    stamp(4)
    for q in range(3):
        a(f"s_waitcnt lgkmcnt({8 - 4*q})")
        for k in range(0, 16, 2): a(f"v_pk_add_f32 {vr(F+k,2)}, {vr(F+k,2)}, {vr(O+16*q+k,2)}")
    a(f"""
    L_norm:
    v_rcp_f32 v{vT1}, v{F+15}
    s_mov_b32 s{sA}, {f32(2.0**-40)}
    s_mov_b32 s{sB_}, {f32(2.0**40)}
    v_cmp_nle_f32 vcc, s{sA}, v{F+15}
    v_cmp_nge_f32 s[{sQ[0]}:{sQ[0]+1}], s{sB_}, v{F+15}
    s_or_b64 vcc, vcc, s[{sQ[0]}:{sQ[0]+1}]
    s_cbranch_vccnz L_slow
    L_norm2:
    """)
    for k in range(0, 16, 2): a(f"v_pk_mul_f32 {vr(F+k,2)}, {vr(F+k,2)}, {vr(vT1,2)} op_sel_hi:[1,0]")
    for k in range(8): a(f"v_cvt_pk_bf16_f32 v{O+k}, v{F+2*k}, v{F+2*k+1}")
    a(f"v_and_or_b32 v{O+3}, v{O+3}, s{sFl}, v{vL}\nv_and_or_b32 v{O+7}, v{O+7}, s{sFl}, v{vL}")
    a(f"buffer_store_dwordx4 {vr(O,4)}, v{vT0}, s[{S_WS}:{S_WS+3}], s{sOst} offen{SF}")
    a(f"buffer_store_dwordx4 {vr(O+4,4)}, v{vT0}, s[{S_WS}:{S_WS+3}], s{sOst} offen offset:1024{SF}")
    stamp(5)
    stamp_save(1, 6)
    stamp_flush('A')
    a("s_endpgm")
    for o in OOL: a(o)
    s0 = S[0]; p0 = P[0]; Q3 = Qr + 24; vM = O
    l1 = a.lab("Lsl"); l2 = a.lab("Lsl")
    qk3 = (f"{MFMA} {vr(s0,16)}, {vr(KB[0],4)}, {vr(Q3,4)}, 0\n"
           f"{MFMA} {vr(s0,16)}, {vr(KB[0]+4,4)}, {vr(Q3+4,4)}, {vr(s0,16)}\ns_nop 15")
    a(f"""
    L_slow:
    s_cmp_eq_u32 s{sCnt}, 99
    s_cbranch_scc1 L_norm2
    s_mov_b32 s{sK}, {KBUF}
    v_mov_b32 v{vM}, 0xff800000
    {l1}:
    {ldK(0, sK, S_WS)}
    s_waitcnt vmcnt(0)
    {qk3}
    """)
    for k in range(0, 16, 2): a(f"v_max3_f32 v{vM}, v{s0+k}, v{s0+k+1}, v{vM}")
    a(f"""
    s_add_u32 s{sK}, s{sK}, {TILEB}
    s_cmp_lt_u32 s{sK}, {KBUF + 64 * TILEB}
    s_cbranch_scc1 {l1}
    v_mov_b32 v{vM+1}, v{vM}
    s_nop 1
    v_permlane32_swap_b32 v{vM}, v{vM+1}
    s_nop 1
    v_max_f32 v{vM}, v{vM}, v{vM+1}
    s_mov_b32 s{sK}, {KBUF}
    """)
    for k in range(16): a(f"v_mov_b32 v{F+k}, 0")
    a(f"""
    {l2}:
    {ldK(0, sK, S_WS)}
    {ldV(0, sK, S_WS)}
    s_waitcnt vmcnt(0)
    {qk3}
    """)
    for k in range(16): a(f"v_sub_f32 v{s0+k}, v{s0+k}, v{vM}")
    for k in range(16): a(f"v_exp_f32 v{s0+k}, v{s0+k}")
    a("s_nop 0")
    for k in range(8): a(cvt(p0 + k, s0 + 2 * k))
    a(f"""
    s_nop 1
    {MFMA} {vr(F,16)}, {vr(VB[0],4)}, {vr(p0,4)}, {vr(F,16)}
    {MFMA} {vr(F,16)}, {vr(VB[0]+4,4)}, {vr(p0+4,4)}, {vr(F,16)}
    s_add_u32 s{sK}, s{sK}, {TILEB}
    s_cmp_lt_u32 s{sK}, {KBUF + 64 * TILEB}
    s_cbranch_scc1 {l2}
    s_mov_b32 s{sCnt}, 99
    s_nop 15
    s_branch L_norm
    """)

def idle():
    l7 = a.lab("Lw7")
    a(f"""
    L_idle:
    """)
    if OPT.get('qpf', '0') == '1':
        T = S_T
        a(f"""
        s_and_b32 s{T+1}, s2, 24
        s_add_u32 s{T+1}, s{T+1}, s{S_WAVE}
        s_and_b32 s{T+2}, s{T}, 1
        s_mul_i32 s{T+2}, s{T+2}, 384
        v_lshrrev_b32 v2, 2, v0
        v_mul_u32_u24 v2, 2688, v2
        v_and_b32 v3, 3, v0
        v_lshl_add_u32 v4, v3, 7, v2
        v_add_u32 v3, 1, v3
        v_mul_u32_u24 v3, 896, v3
        v_add_u32 v3, v3, v2
        s_mul_i32 s{T+6}, s{T+1}, {16*2688}
        s_add_u32 s{T+7}, s{T+6}, s{T+2}
        s_waitcnt lgkmcnt(0)
        """)
        srd(S_W, KA_WQKV, 1204224)
        a(f"""
        s_mov_b32 exec_lo, 0x33333333
        s_mov_b32 exec_hi, 0x33333333
        buffer_load_dword v20, v3, s[{S_W}:{S_W+3}], s{T+6} offen offset:384
        s_mov_b64 exec, -1
        buffer_load_dword v19, v4, s[{S_W}:{S_W+3}], s{T+7} offen
        """)
    a(f"""
    s_cmp_ge_u32 s{S_WAVE}, 4
    s_cbranch_scc1 {l7}
    s_lshl_b32 s{S_T+5}, s2, 7
    s_add_u32 s{S_T+5}, s{S_T+5}, {FH}
    v_mov_b32 v12, s{S_T+5}
    v_mov_b32 v13, 0
    s_waitcnt lgkmcnt(0)
    """)
    srd(S_WS, KA_WS, WS_SIZE); srd(S_DBG, KA_DBG, 256)
    a("s_barrier")
    get_nonce(13, 0)
    a("s_mov_b64 exec, 1")
    poll(12, 13, 8, 0)
    a(f"""
    s_branch L_attn
    {l7}:
    s_cmp_eq_u32 s{S_WAVE}, 6
    s_cbranch_scc1 L_touch
    s_cmp_lg_u32 s{S_WAVE}, 7
    s_cbranch_scc1 L_end
    s_getpc_b64 s[{S_T+4}:{S_T+5}]
    Lpc:
    s_sub_u32 s{S_T+4}, s{S_T+4}, Lpc-{KN}
    s_subb_u32 s{S_T+5}, s{S_T+5}, 0
    s_memrealtime s[{S_T+10}:{S_T+11}]
    v_lshlrev_b32 v2, 7, v0
    v_add_u32 v3, 8192, v2
    v_add_u32 v4, 16384, v2
    v_min_u32 v4, L_end-{KN}, v4
    s_waitcnt lgkmcnt(0)
    s_cmp_lg_u32 s2, 0
    s_cbranch_scc1 Lnn
    """)
    srd(S_DBG, KA_DBG, 256)
    a(f"""
    s_or_b32 s{S_T+10}, s{S_T+10}, 1
    v_mov_b32 v8, s{S_T+10}
    s_mov_b64 exec, 1
    buffer_store_dword v8, off, s[{S_DBG}:{S_DBG+3}], 0 sc1
    s_mov_b64 exec, -1
    Lnn:
    global_load_dword v12, v2, s[{S_T+4}:{S_T+5}]
    global_load_dword v13, v3, s[{S_T+4}:{S_T+5}]
    global_load_dword v14, v4, s[{S_T+4}:{S_T+5}]
    s_endpgm
    """)
    a("L_touch:\ns_waitcnt lgkmcnt(0)")
    if OPT.get('touch', '0') != '0':
        srd(S_WS, KA_WS, WS_SIZE); srd(S_DBG, KA_DBG, 256); srd(S_WO, KA_WO, 401408); srd(S_OUT, KA_OUT, 3670016)
        touch(2)
    a("s_endpgm")
```

```python
from base import *
import base
from rolea import C_AH
vW0, vFa, vSt, vTag = 2, 3, 4, 5
T = 6
vSg, vMy, vPa, vSyB, vWl, vLin, vPar, vNat = 8, 9, 10, 11, 12, 13, 14, 15
vYl, vYr, vYw, vYq, vYs, vWo, vZp, vFy = 16, 17, 18, 19, 20, 22, 23, 24
ZQ = 252
def pair_signal(k):
    a(f"v_mov_b32 v{vSg}, {k}\ns_mov_b64 exec, 1\nds_write_b32 v{vMy}, v{vSg}\ns_mov_b64 exec, -1")
def pair_wait(k, sleep=0): lds_wait(vPa, 0, k, vSg, sleep)

def cmul(d, x, y, pk):
    if pk:
        return [f"v_pk_mul_f32 {vr(d,2)}, {vr(x,2)}, {vr(y,2)} op_sel:[0,0] op_sel_hi:[1,0]",
                f"v_pk_fma_f32 {vr(d,2)}, {vr(x,2)}, {vr(y,2)}, {vr(d,2)} op_sel:[1,1,0] op_sel_hi:[0,1,1] neg_lo:[0,1,0]"]
    return [f"v_mul_f32 v{d}, v{x}, v{y}", f"v_mul_f32 v{d+1}, v{x+1}, v{y}",
            f"v_fma_f32 v{d}, -v{x+1}, v{y+1}, v{d}", f"v_fmac_f32 v{d+1}, v{x}, v{y+1}"]

RAW, PRM, vDT, vFA, KT = 12, 16, 20, 21, 22
def kgen_valu(it, P):
    E1, E2, E4, E8, E256, E16 = 28, 30, 32, 34, 36, 38
    X, Y, Z, W = 40, 42, 44, 46
    LA, AI, CR, CI = PRM, PRM + 1, PRM + 2, PRM + 3
    T = KT; vA_, vB_ = T, T + 1
    G = []
    def raw(txt):
        for l in txt.strip().split("\n"): G.append(lambda pk, l=l.strip(): [l])
    for k in range(4):
        raw(f"v_lshlrev_b32 v{PRM+k}, 16, v{RAW+k}" if it == 0 else f"v_and_b32 v{PRM+k}, 0xffff0000, v{RAW+k}")
    raw(f"""v_mul_f32 v{vA_}, {f32(LOG2E)}, v{LA}
    v_exp_f32 v{vA_}, v{vA_}
    v_mul_f32 v{vB_}, v{AI}, v{vDT}
    v_cvt_pk_bf16_f32 v{vA_}, v{vA_}, v{vA_}
    v_and_b32 v{vA_}, 0xffff0000, v{vA_}
    v_mul_f32 v{vA_}, v{vA_}, v{vDT}
    v_mul_f32 v{vA_}, {f32(-LOG2E)}, v{vA_}
    v_mul_f32 v{vB_}, 0.15915494, v{vB_}
    v_add_f32 v{T+2}, v{vDT}, v{vDT}
    v_mul_f32 v{X}, v{CR}, v{T+2}
    v_mul_f32 v{X+1}, v{CI}, v{T+2}""")
    for E, t in ((E1, 1.0), (E8, 8.0), (E256, 256.0)):
        raw(f"""v_mul_f32 v{T+2}, {f32(t)}, v{vA_}
        v_mul_f32 v{T+3}, {f32(t)}, v{vB_}
        v_exp_f32 v{T+2}, v{T+2}
        v_fract_f32 v{T+3}, v{T+3}
        v_cos_f32 v{E}, v{T+3}
        v_sin_f32 v{E+1}, v{T+3}
        v_mul_f32 v{E}, v{E}, v{T+2}
        v_mul_f32 v{E+1}, v{E+1}, v{T+2}""")
    wr = []; nxtp = [P]
    def put(src, rows, conj):
        t = nxtp[0]; nxtp[0] += 1
        raw(f"v_cvt_pk_bf16_f32 v{t}, v{src}, {'-' if conj else ''}v{src+1}")
        for r in rows: wr.append(f"ds_write_addtid_b32 v{t} offset:{r*272}")
    def cm(d, x, y): G.append(lambda pk: cmul(d, x, y, pk))
    rho = lambda v, h: 8 * (v >> 2) + 4 * h + (v & 3)
    cm(E2, E1, E1); cm(E4, E2, E2); cm(E16, E8, E8)
    cm(Z, X, E256)
    put(X, [rho(0, 0)], True)
    cur, nxt = X, Y
    for k in range(1, 8):
        cm(nxt, cur, E1); put(nxt, [rho(k, 0)], True)
        cur, nxt = nxt, cur
    rows1 = [[0, 1], [2], [3, 4, 5], [6], [7]]
    put(Z, [rho(v, 1) for v in rows1[0]], True)
    cur, nxt = Z, X
    for k in range(1, 5):
        cm(nxt, cur, E2); put(nxt, [rho(v, 1) for v in rows1[k]], True)
        cur, nxt = nxt, (Y if nxt == X else X)
    H, Hn = Z, W
    for B in (2, 3):
        cm(Hn, H, E256); H, Hn = Hn, H
        put(H, [rho(8, B & 1)], True)
        cm(X, H, E4); put(X, [rho(9, B & 1)], True)
        cm(Y, H, E8); put(Y, [rho(10, B & 1)], True)
    for B in (4, 5, 6, 7):
        v0_ = 11 if B < 6 else 13
        cm(Hn, H, E256); H, Hn = Hn, H
        put(H, [rho(v0_, B & 1)], True)
        cm(X, H, E8); put(X, [rho(v0_ + 1, B & 1)], True)
    roww = list(wr); wr.clear()
    wr.append(f"ds_write_addtid_b32 v{KT+5} offset:0")
    put(E8, [1], False); put(E16, [2], False)
    ch = {1: E8, 0: E16}; pool = {1: [X, Y], 0: [Z, W]}
    for j in range(3, 32):
        par = j & 1
        d = pool[par][0]; pool[par].reverse()
        cm(d, ch[par], E16); put(d, [j], False)
        ch[par] = d
    assert nxtp[0] == P + 58
    return G, roww, list(wr)


def tr_addr(rd, wr, rq, st, dpitch, t):
    a(f"""
    v_lshrrev_b32 v{st}, 4, v0
    v_and_b32 v{wr}, 15, v0
    v_lshlrev_b32 v{rd}, 9, v{st}
    v_lshl_add_u32 v{rd}, v{wr}, 3, v{rd}
    v_add_u32 v{rd}, s{S_PRIV}, v{rd}
    v_mul_u32_u24 v{wr}, 144, v{wr}
    v_lshl_add_u32 v{wr}, v{st}, 5, v{wr}
    v_add_u32 v{wr}, s{S_PRIV}, v{wr}
    v_lshrrev_b32 v{st}, 3, v0
    v_mul_u32_u24 v{rq}, 144, v{st}
    v_mul_u32_u24 v{st}, {dpitch}, v{st}
    v_and_b32 v{t}, 7, v0
    v_lshl_add_u32 v{rq}, v{t}, 4, v{rq}
    v_add_u32 v{rq}, s{S_PRIV}, v{rq}
    v_lshl_add_u32 v{st}, v{t}, 4, v{st}
    """)
def tr_lds(lin, rd, wr, rq, R, LO):
    a(f"ds_write_b128 v{lin}, {vr(R,4)} offset:{LO}\nds_write_b128 v{lin}, {vr(R+4,4)} offset:{LO+1024}")
    for i in range(4): a(f"ds_read_b64_tr_b16 {vr(R+2*i,2)}, v{rd} offset:{LO + i*128}")
    a(f"""
    s_waitcnt lgkmcnt(0)
    ds_write_b128 v{wr}, {vr(R,4)} offset:{LO}
    ds_write_b128 v{wr}, {vr(R+4,4)} offset:{LO+16}
    ds_read_b128 {vr(R,4)}, v{rq} offset:{LO}
    ds_read_b128 {vr(R+4,4)}, v{rq} offset:{LO+8*144}
    """)
def mzero(regs):
    for r in regs: a(f"{MFMA} {vr(r,16)}, {vr(ZQ,4)}, {vr(ZQ,4)}, 0")

def role_b():
    base.VST = 26
    P = [48, 108]; AF = 216; CA = [216, 232]; ACC = 84
    UR, UT_, LD = 168, 176, 184
    vNon, vZ, vG, vFu, vAa, vXa_, vWw, vPu = 200, 201, 202, 203, 204, 205, 206, 207
    sU, sU2, sMk, sIt, sUw, sCh, sFl, sLast, sWin = S_T, S_T + 1, S_T + 2, S_T + 4, S_T + 7, S_T + 8, S_T + 9, S_T + 10, S_T + 11
    S1 = 4160
    t0, t1, t2 = 8, 9, 10
    a(f"""
    L_B:
    {'v_mov_b32 v26, -1' if STAMPS else ''}
    v_lshrrev_b32 v7, 1, v0
    v_mul_u32_u24 v7, 896, v7
    v_and_b32 v8, 1, v0
    v_lshl_add_u32 v7, v8, 4, v7
    s_lshl_b32 s{S_T+5}, s{S_BW}, 5
    s_add_u32 s{S_T+5}, s{S_T+5}, s{sXb}
    s_add_u32 s{S_T+5}, s{S_T+5}, s{sWb}
    v_add_u32 v7, s{S_T+5}, v7
    v_add_u32 v8, {32*896}, v7
    s_waitcnt lgkmcnt(0)
    global_load_dword v{RAW}, v6, {kp(KA_LOGA)}
    global_load_dword v{RAW+1}, v6, {kp(KA_AIM)}
    global_load_dword v{RAW+2}, v6, {kp(KA_CR)}
    global_load_dword v{RAW+3}, v6, {kp(KA_CI)}
    global_load_dwordx4 {vr(UR,4)}, v7, {kp(KA_U)}
    global_load_dwordx4 {vr(UR+4,4)}, v8, {kp(KA_U)}
    s_load_dword s{sLD}, {kp(KA_LOGDT)}, s{sD}
    s_load_dword s{sDS}, {kp(KA_DSKIP)}, s{sD}
    s_barrier
    """)
    srd(S_X, KA_X, 1835008); srd(S_W, KA_WQKV, 1204224); srd(S_DBG, KA_DBG, 256)
    srd(S_WS, KA_WS, WS_SIZE); srd(S_WO, KA_WO, 401408); srd(S_OUT, KA_OUT, 3670016)
    for c in range(7): offsets(c)
    a(f"""
    s_mul_i32 s{S_PRIV}, s{S_BW}, {PRIVB}
    s_add_u32 s{S_PRIV}, s{S_PRIV}, {PRIV0}
    s_mul_i32 s{sWin}, s{S_C}, {2*PRIVB}
    s_add_u32 s{sWin}, s{sWin}, {PRIV0}
    v_and_b32 v{t0}, 3, v0
    v_bfe_u32 v{t1}, v0, 3, 2
    v_lshl_add_u32 v{t0}, v{t1}, 2, v{t0}
    v_bfe_u32 v{t1}, v0, 2, 1
    v_lshl_add_u32 v{t0}, v{t1}, 4, v{t0}
    v_lshrrev_b32 v{t1}, 5, v0
    v_lshlrev_b32 v{t2}, 3, v{t1}
    v_sub_u32 v{t0}, v{t0}, v{t2}
    v_add_u32 v{t0}, 9, v{t0}
    v_sub_u32 v{t2}, 0, v{t0}
    v_and_b32 v{t2}, 3, v{t2}
    v_add_lshl_u32 v{t0}, v{t0}, v{t2}, 1
    v_mul_u32_u24 v{t2}, {S1}, v{t2}
    s_lshl_b32 s{S_T+5}, s{S_NH}, 10
    s_add_u32 s{S_T+5}, s{S_T+5}, s{sWin}
    v_add3_u32 v{vAa}, v{t0}, v{t2}, s{S_T+5}
    v_lshlrev_b32 v{UT_}, 4, v0
    s_lshl_b32 s{S_T+5}, s{S_NH}, 11
    s_add_u32 s{S_T+5}, s{S_T+5}, s{sWin}
    v_add_u32 v{vWw}, s{S_T+5}, v{UT_}
    v_add_u32 v{UT_}, s{S_PRIV}, v{UT_}
    v_and_b32 v{t0}, 31, v0
    v_mul_u32_u24 v{vFA}, 272, v{t0}
    v_lshl_add_u32 v{vFA}, v{t1}, 4, v{vFA}
    v_add_u32 v{vFA}, s{S_PRIV}, v{vFA}
    v_lshlrev_b32 v{vFu}, 7, v{t0}
    v_lshlrev_b32 v{t0}, 4, v{t0}
    v_mul_u32_u24 v{t2}, {SP}, v{t1}
    s_mul_i32 s{S_T+6}, s{S_C}, {KPLB}
    s_lshl_b32 s{S_T+5}, s{S_NH}, 8
    s_sub_u32 s{S_T+5}, s{S_T+6}, s{S_T+5}
    s_add_u32 s{S_T+5}, s{S_T+5}, {30*16}
    v_add3_u32 v{vXa_}, v{t0}, v{t2}, s{S_T+5}
    v_and_b32 v{t0}, 3, v0
    v_mul_u32_u24 v{t0}, {SP}, v{t0}
    v_lshrrev_b32 v{t1}, 2, v0
    v_lshl_add_u32 v{t0}, v{t1}, 4, v{t0}
    v_add_u32 v{vG}, s{S_T+6}, v{t0}
    v_lshrrev_b32 v{t0}, 4, v0
    v_mul_u32_u24 v{t0}, {S1}, v{t0}
    v_and_b32 v{t1}, 15, v0
    v_lshl_add_u32 v{t0}, v{t1}, 2, v{t0}
    v_add_u32 v{vZ}, s{sWin}, v{t0}
    s_lshr_b32 s{sCh}, s{sD}, 1
    s_add_u32 s{sCh}, s{sCh}, s{S_C}
    s_lshl_b32 s{S_T+5}, s{S_J}, 12
    s_add_u32 s{S_T+5}, s{S_T+5}, {FU}
    v_add_u32 v{vFu}, s{S_T+5}, v{vFu}
    s_mul_i32 s{sUw}, s{sCh}, {UROW}
    s_lshl_b32 s{S_T+5}, s{S_NH}, 11
    s_add_u32 s{sUw}, s{sUw}, s{S_T+5}
    s_add_u32 s{sUw}, s{sUw}, {UTB + 128 - 8}
    v_mov_b32 v{KT+5}, 0x3f80
    v_mov_b32 v{ZQ}, 0
    v_mov_b32 v{ZQ+1}, 0
    v_mov_b32 v{ZQ+2}, 0
    v_mov_b32 v{ZQ+3}, 0
    s_bitcmp1_b32 s{S_NH}, 0
    s_mov_b32 s{sMk}, 0xffff
    s_cselect_b32 s{sMk}, 0xffff8000, s{sMk}
    s_waitcnt lgkmcnt(0)
    s_lshl_b32 s{S3}, s{S_C}, 4
    s_lshr_b32 s{sLD}, s{sLD}, s{S3}
    s_lshl_b32 s{sLD}, s{sLD}, 16
    s_lshr_b32 s{sDS}, s{sDS}, s{S3}
    s_lshl_b32 s{sDS}, s{sDS}, 16
    v_mov_b32 v{KT}, {f32(LOG2E)}
    v_mul_f32 v{vDT}, s{sLD}, v{KT}
    v_exp_f32 v{vDT}, v{vDT}
    s_lshl_b32 s{sU}, s{S_J}, 2
    v_cvt_pk_bf16_f32 v{vDT}, v{vDT}, v{vDT}
    v_and_b32 v{vDT}, 0xffff0000, v{vDT}
    s_add_u32 s{sU}, s{sU}, s{S_BW}
    s_mul_i32 s{sU}, s{sU}, {16*UROW}
    s_lshl_b32 s{S_T+5}, s{S_RB}, 7
    s_add_u32 s{sU}, s{sU}, s{S_T+5}
    s_add_u32 s{sU}, s{sU}, {UTB + 128}
    s_add_u32 s{sU2}, s{sU}, {8*UROW}
    s_lshl_b32 s{sFl}, s{sD}, 5
    s_add_u32 s{sFl}, s{sFl}, {FU}
    """)
    tr_addr(UT_ + 1, UT_ + 2, UT_ + 3, UT_ + 4, UROW, t0)
    a("s_waitcnt vmcnt(2)")
    stamp(0)
    def emit(l):
        for t in l: a(t)
    G0, rw0, cw0 = kgen_valu(0, P[0]); G1, rw1, cw1 = kgen_valu(1, P[1])
    G = G0 + G1
    npre = int(len(G) * float(OPT.get('pre', 0.35)))
    n1 = int(len(G) * float(OPT.get('pre1', 0.15)))
    for g in G[:n1]: emit(g(True))
    a("s_waitcnt vmcnt(0)")
    tr_lds(UT_, UT_ + 1, UT_ + 2, UT_ + 3, UR, 0)
    for g in G[n1:npre]: emit(g(True))
    stamp(1)
    flat = [t for g in G[npre:] for t in g(False)]
    NDM = 2 * (28 - first[NA]); dcount = [0]
    def vslice():
        k = dcount[0]; dcount[0] += 1
        emit(flat[len(flat) * k // NDM: len(flat) * (k + 1) // NDM])
    late = f"""
    s_lshl_b32 s{S_T+6}, s{S_BW}, 2
    s_add_u32 s{S_T+6}, s{S_T+6}, {SYNC + C_PAIR}
    v_mov_b32 v{vMy}, s{S_T+6}
    v_xor_b32 v{vPa}, 4, v{vMy}
    v_mov_b32 v{vSyB}, {SYNC}
    v_lshlrev_b32 v{vWl}, 4, v0
    v_mov_b32 v{vLin}, v{UT_}
    s_xor_b32 s{S_T+6}, s{S_BW}, 1
    s_mul_i32 s{S_T+6}, s{S_T+6}, {PRIVB}
    s_add_u32 s{S_T+6}, s{S_T+6}, {PRIV0}
    v_add_u32 v{vPar}, s{S_T+6}, v{vWl}
    v_and_b32 v{T}, 31, v0
    v_lshrrev_b32 v{T+1}, 5, v0
    v_lshlrev_b32 v{vNat}, 6, v{T}
    v_lshl_add_u32 v{vNat}, v{T+1}, 5, v{vNat}
    v_add_u32 v{vNat}, s{S_PRIV}, v{vNat}
    v_mul_u32_u24 v{vSt}, 1792, v{T}
    v_lshl_add_u32 v{vSt}, v{T+1}, 5, v{vSt}
    v_bfe_u32 v{T}, v0, 2, 2
    v_mad_u32_u24 v{T}, v{T+1}, 7, v{T}
    v_lshlrev_b32 v{vW0}, 7, v{T}
    v_and_b32 v{T}, 1, v0
    v_lshl_add_u32 v{vW0}, v{T}, 5, v{vW0}
    v_lshrrev_b32 v{vYl}, 1, v0
    v_lshlrev_b32 v{vYl}, 12, v{vYl}
    v_lshl_add_u32 v{vYl}, v{T}, 4, v{vYl}
    v_lshlrev_b32 v{vTag}, 4, v{T}
    v_lshrrev_b32 v{vTag}, v{vTag}, s{S_NONCE}
    v_lshlrev_b32 v{vTag}, 16, v{vTag}
    v_bfe_u32 v{T}, v0, 4, 1
    v_lshl_add_u32 v{vW0}, v{T}, 4, v{vW0}
    v_bfe_u32 v{T}, v0, 1, 1
    v_lshl_add_u32 v{vW0}, v{T}, 3, v{vW0}
    v_add_u32 v{vW0}, {WOL}, v{vW0}
    v_lshlrev_b32 v{vFa}, 11, v0
    v_mov_b32 v{vYr}, v{UT_+1}
    v_mov_b32 v{vYw}, v{UT_+2}
    v_mov_b32 v{vYq}, v{UT_+3}
    v_lshrrev_b32 v{T}, 3, v0
    v_and_b32 v{T+1}, 7, v0
    v_lshlrev_b32 v{T+1}, 4, v{T+1}
    v_mul_u32_u24 v{vYs}, 1792, v{T}
    v_add_u32 v{vYs}, v{vYs}, v{T+1}
    v_mul_u32_u24 v{vWo}, 896, v{T}
    v_add_u32 v{vWo}, v{vWo}, v{T+1}
    v_lshlrev_b32 v{vZp}, 3, v0
    v_add_u32 v{vZp}, {WOL + 448*128}, v{vZp}
    v_add_u32 v{vFy}, {FY - FU}, v{vFu}
    """.strip().split("\n")
    vm = Q(63)
    nxt = first[NA]
    FUS = 99; PS = int(OPT.get('ps', 7)); LS = None
    for s in range(NBAR):
        tgt = s if s < NBAR - 1 else NS - 1
        if s >= NA: a(f"s_waitcnt vmcnt({vm.wait_for(('d', tgt))})")
        a("s_barrier")
        if s == FUS:
            get_nonce(vNon, 63)
            lp = a.lab("Lfu")
            a(f"""
            v_mov_b32 v{vNon}, s{S_NONCE}
            s_cmp_lg_u32 s{S_BW}, 0
            s_cbranch_scc1 {lp}
            s_mov_b64 exec, 1
            buffer_store_dword v{vNon}, off, s[{S_WS}:{S_WS+3}], s{sFl} sc1
            s_mov_b64 exec, -1
            {lp}:
            """)
        if s == PS:
            a(f"""
            s_mov_b32 exec_hi, 0
            s_mov_b32 exec_lo, s{sMk}
            buffer_load_dword v{vPu}, v{vFu}, s[{S_WS}:{S_WS+3}], 0 offen sc1
            s_mov_b64 exec, -1
            """)
            vm.issue("pu")
        if LS is not None and s - LS in (1, 2): emit(late[len(late) * (s - LS - 1) // 2: len(late) * (s - LS) // 2])
        lim = min(28, 14 + first[s])
        while nxt < lim:
            for t in dma(nxt): a(t); vm.issue(("d", slot_of[nxt])); vslice()
            nxt += 1
        if nxt == 28 and LS is None: LS = s
        if s == 0:
            lz = a.lab("Lz")
            a(f"""
            s_waitcnt lgkmcnt(0)
            buffer_store_dwordx4 {vr(UR,4)}, v{UT_+4}, s[{S_WS}:{S_WS+3}], s{sU} offen{SF}
            buffer_store_dwordx4 {vr(UR+4,4)}, v{UT_+4}, s[{S_WS}:{S_WS+3}], s{sU2} offen{SF}
            {load_nonce(vNon)}
            s_cmp_lg_u32 s{S_RB}, 0
            s_cbranch_scc1 {lz}
            s_sub_u32 s{sU}, s{sU}, 128
            s_sub_u32 s{sU2}, s{sU2}, 128
            buffer_store_dwordx4 {vr(ZQ,4)}, v{UT_+4}, s[{S_WS}:{S_WS+3}], s{sU} offen{SF}
            buffer_store_dwordx4 {vr(ZQ,4)}, v{UT_+4}, s[{S_WS}:{S_WS+3}], s{sU2} offen{SF}
            {lz}:
            """)
            for _ in range(3): vm.issue("us")
            FUS = slot_of[nxt]
    assert LS + 2 <= NBAR - 1 and FUS <= LS
    stamp(2)
    C1, Gs, BF = 48, 28, 100
    afr = lambda: emit([f"ds_read_b128 {vr(AF+4*s,4)}, v{vFA} offset:{32*s}" for s in range(8)])
    bfr = lambda it: emit([f"ds_read_b128 {vr(P[it]+4*s,4)}, v{vFA} offset:{32*s}" for s in range(8)])
    def mfm(it, fill):
        a("s_waitcnt lgkmcnt(0)")
        for s in range(8):
            a(f"{MFMA} {vr(ACC,16)}, {vr(AF+4*s,4)}, {vr(P[it]+4*s,4)}, {'0' if (s == 0 and it == 0) else vr(ACC,16)}")
            emit(fill[4*s:4*s+4])
    a(f"s_mov_b32 m0, s{S_PRIV}\ns_setprio {OPT.get('kprio', 1)}")
    emit(rw0); afr(); emit(cw0); bfr(0)
    lok = a.lab("Lok"); lh = a.lab("Lh")
    a(f"""
    s_mov_b32 exec_hi, 0
    s_mov_b32 exec_lo, s{sMk}
    s_waitcnt vmcnt(0)
    v_cmp_ne_u32 vcc, s{S_NONCE}, v{vPu}
    s_cbranch_vccz {lok}
    """)
    poll(vFu, vPu, 4, 0)
    a(f"{lok}:\ns_mov_b64 exec, -1")
    for g in range(2):
        a(f"buffer_load_dwordx2 {vr(LD+8*g+2,2)}, v{vWl}, s[{S_WS}:{S_WS+3}], s{sUw} offen offset:{1024*g}{LF}")
        a(f"buffer_load_dwordx4 {vr(LD+8*g+4,4)}, v{vWl}, s[{S_WS}:{S_WS+3}], s{sUw} offen offset:{1024*g+8}{LF}")
    a(f"""
    s_sub_u32 s{S_T+5}, s2, 32
    s_lshl_b32 s{S_T+6}, s{S_BW}, 5
    s_add_u32 s{S_T+6}, s{S_T+6}, s{S_T+5}
    s_lshl_b32 s{S_T+5}, s{S_T+5}, 7
    s_add_u32 s{S_T+5}, s{S_T+5}, {FH}
    s_cmp_ge_u32 s{S_T+6}, 32
    s_cbranch_scc1 {lh}
    s_mov_b64 exec, 1
    buffer_store_dword v{vNon}, off, s[{S_WS}:{S_WS+3}], s{S_T+5} sc1
    s_mov_b64 exec, -1
    {lh}:
    """)
    mfm(0, rw1)
    afr(); emit(cw1); bfr(1)
    a("s_waitcnt vmcnt(0)")
    for g in range(2):
        d = lambda k: LD + 8 * g + 4 + k
        o = C1 + 12 * g
        for k in range(4): a(f"v_alignbit_b32 v{o+k}, v{d(k)}, v{d(k-1)}, 16")
        for k in range(4): a(f"v_mov_b32 v{o+4+k}, v{d(k-1)}")
        a(f"v_alignbit_b32 v{o+8}, v{d(-1)}, v{d(-2)}, 16")
        for k in range(1, 4): a(f"v_mov_b32 v{o+8+k}, v{o+k-1}")
    mfm(1, [])
    mzero(CA)
    a("s_nop 9")
    for k in range(4): a(f"ds_write_b128 v{vLin}, {vr(ACC+4*k,4)} offset:{1024*k}")
    pair_signal(1)
    pair_wait(1)
    for i, o in enumerate([0, PRIVB]):
        for k in range(2): a(f"ds_read_b128 {vr(Gs+8*i+4*k,4)}, v{vWw} offset:{o + 1024*k}")
    pair_signal(2)
    a("s_waitcnt lgkmcnt(0)")
    for k in range(8): a(f"v_add_f32 v{Gs+k}, v{Gs+k}, v{Gs+8+k}")
    l3 = a.lab("Lkx"); l4 = a.lab("Lkx")
    wr = lambda reg, beta: f"ds_write_b128 v{vG}, {vr(reg,4)} offset:{KPLL + 512 + 256*beta}"
    a(f"""
    s_cmp_eq_u32 s{S_NH}, 0
    s_cbranch_scc0 {l3}
    s_mov_b64 exec, 1
    v_add_f32 v{Gs}, s{sDS}, v{Gs}
    s_mov_b64 exec, -1
    """)
    for k in range(4): a(f"v_cvt_pk_bf16_f32 v{BF+k}, v{Gs+7-2*k}, v{Gs+6-2*k}")
    a(wr(BF, 0)); a(wr(ZQ, -1)); a(wr(ZQ, -2))
    a(f"""
    s_branch {l4}
    {l3}:
    s_mov_b32 vcc_lo, 0x55555555
    s_mov_b32 vcc_hi, 0x55555555
    v_cvt_pk_bf16_f32 v{BF}, v{Gs+2}, v{Gs+2}
    v_cvt_pk_bf16_f32 v{BF+1}, v{Gs+1}, v{Gs+1}
    v_cvt_pk_bf16_f32 v{BF+2}, v{Gs+1}, v{Gs}
    v_cvt_pk_bf16_f32 v{BF+3}, v{Gs}, v{Gs}
    """)
    for beta in (2, 3):
        g0 = Gs + 3 + 2 * (beta - 2); g8 = g0 + 1; R = BF + 4 * (beta - 1)
        a(f"""
        v_cndmask_b32 v{T}, v{g8}, v{g0}, vcc
        v_cvt_pk_bf16_f32 v{R}, v{g8}, v{g8}
        v_cvt_pk_bf16_f32 v{R+1}, v{g8}, v{T}
        v_cvt_pk_bf16_f32 v{R+2}, v{g0}, v{g0}
        v_cvt_pk_bf16_f32 v{R+3}, v{g0}, v{g0}
        """)
    for beta in (1, 2, 3): a(wr(BF + 4 * (beta - 1), beta))
    a(f"{l4}:")
    pair_wait(2)
    a(f"ds_write_b32 v{vZ}, v{ZQ}")
    for g in range(2):
        a(f"ds_write_b128 v{vWw}, {vr(LD+8*g+4,4)} offset:{64 + 1024*g}")
        for c in range(1, 4): a(f"ds_write_b128 v{vWw}, {vr(C1+12*g+4*(c-1),4)} offset:{64 + 1024*g + c*S1}")
    pair_signal(3)
    pair_wait(3)
    a(f"s_setprio {OPT.get('cprio', 0)}")
    stamp(3)
    FR = [120, 152]
    def reads(buf, dm):
        ins = []
        R = FR[buf]
        for sg in range(2):
            for k_ in range(2):
                for i2 in range(2):
                    ins.append(f"ds_read_b64 {vr(R + (2*sg+k_)*4 + 2*i2, 2)}, v{vAa} offset:{sg*2048 + 64*dm + 32*(1-k_) + 8*i2}")
        for xo in range(2):
            for k_ in range(2):
                ins.append(f"ds_read_b128 {vr(R + 16 + (2*xo+k_)*4, 4)}, v{vXa_} offset:{KPLL + 2*k_*SP + 512*xo + 16*(2-dm)}")
        return [ins[k] for k in [0, 1, 8, 10, 4, 5, 2, 3, 9, 11, 6, 7]]
    def mf(buf, fill):
        R = FR[buf]
        A = lambda sg, k_: vr(R + (2*sg+k_)*4, 4)
        Xf = lambda xo, k_: vr(R + 16 + (2*xo+k_)*4, 4)
        o = []
        for k_ in range(2):
            o.append(f"{MFMA} {vr(CA[0],16)}, {A(0,k_)}, {Xf(0,k_)}, {vr(CA[0],16)}")
            o.append(f"{MFMA} {vr(CA[1],16)}, {A(0,k_)}, {Xf(1,k_)}, {vr(CA[1],16)}")
            o.append(f"{MFMA} {vr(CA[1],16)}, {A(1,k_)}, {Xf(0,k_)}, {vr(CA[1],16)}")
        for k, m in enumerate(o):
            a(m)
            emit(fill[3*k:3*k+3])
    emit(reads(0, 0))
    a(f"s_mov_b32 s{sIt}, 0")
    loop = a.lab("Lcv")
    a(f"{loop}:\ns_waitcnt lgkmcnt(0)")
    mf(0, reads(1, 1))
    a("s_waitcnt lgkmcnt(0)")
    mf(1, reads(0, 2) + [f"v_add_u32 v{vAa}, 128, v{vAa}", f"v_subrev_u32 v{vXa_}, 32, v{vXa_}", f"s_add_u32 s{sIt}, s{sIt}, 1", f"s_cmp_lt_u32 s{sIt}, {OPT.get('cit', 8)}"])
    a(f"s_cbranch_scc1 {loop}")
    stamp(4)
    a(f"s_setprio {OPT.get('yprio', 3)}")
    F = 48
    pair_signal(4)
    a(f"""
    s_lshl_b32 s{sU}, s{sCh}, 12
    s_lshl_b32 s{S_T+5}, s{S_NH}, 11
    s_add_u32 s{sU}, s{sU}, s{S_T+5}
    s_add_u32 s{sU}, s{sU}, {YTB}
    s_add_u32 s{sFl}, s{sFl}, {FY - FU}
    """)
    pair_wait(4, 2)
    l1 = a.lab("Lcx"); l2 = a.lab("Lcx")
    a(f"s_cmp_eq_u32 s{S_NH}, 0\ns_cbranch_scc1 {l1}")
    for mine in (1, 0):
        for k in range(4): a(f"ds_write_b128 v{vLin}, {vr(CA[1-mine]+4*k,4)} offset:{1024*k}")
        pair_signal(5)
        pair_wait(5, 1)
        for k in range(4): a(f"ds_read_b128 {vr(F+4*k,4)}, v{vPar} offset:{1024*k}")
        a("s_waitcnt lgkmcnt(0)")
        for k in range(16): a(f"v_add_f32 v{F+k}, v{F+k}, v{CA[mine]+k}")
        a(f"s_branch {l2}\n{l1}:" if mine else f"{l2}:")
    for k in range(8): a(f"v_cvt_pk_bf16_f32 v{F+k}, v{F+2*k}, v{F+2*k+1}")
    a(f"""
    ds_write_b128 v{vNat}, {vr(F,4)} offset:4096
    ds_write_b128 v{vNat}, {vr(F+4,4)} offset:4112
    ds_read_b128 {vr(F+8,4)}, v{vLin} offset:4096
    ds_read_b128 {vr(F+12,4)}, v{vLin} offset:5120
    s_waitcnt lgkmcnt(1)
    buffer_store_dwordx4 {vr(F+8,4)}, v{vWl}, s[{S_WS}:{S_WS+3}], s{sU} offen{SF}
    s_waitcnt lgkmcnt(0)
    buffer_store_dwordx4 {vr(F+12,4)}, v{vWl}, s[{S_WS}:{S_WS+3}], s{sU} offen offset:1024{SF}
    """)
    mzero(OACC)
    group_publish(C_PY, sFl, sLast, vSyB, T)
    lds_wait(vSyB, C_GD, 4, vSg)
    loop = a.lab("Lwo")
    a(f"""
    ds_write_b64 v{vZp}, {vr(ZQ,2)}
    s_mul_i32 s{S_T+5}, s{S_BW}, {112*896}
    s_add_u32 s{S_T+5}, s{S_T+5}, s{sWb}
    s_mul_i32 s{S_T+6}, s{S_BW}, {14*1024}
    s_add_u32 s{S_T+6}, s{S_T+6}, {WOL}
    s_mov_b32 s{sIt}, 0
    {loop}:
    s_mov_b32 m0, s{S_T+6}
    s_add_u32 s{S_T+6}, s{S_T+6}, 1024
    buffer_load_dwordx4 v{vWo}, s[{S_WO}:{S_WO+3}], s{S_T+5} offen lds
    s_add_u32 s{S_T+5}, s{S_T+5}, {8*896}
    s_add_u32 s{sIt}, s{sIt}, 1
    s_waitcnt vmcnt({OPT.get('wth', 2)})
    s_cmp_lt_u32 s{sIt}, 14
    s_cbranch_scc1 {loop}
    v_mov_b32 v{T}, 1
    s_waitcnt vmcnt(0)
    s_mov_b64 exec, 1
    ds_add_u32 v{vSyB}, v{T} offset:{C_WU}
    s_mov_b64 exec, -1
    """)
    group_wait(C_WY, sLast, 3, vFy, vSyB, T, int(OPT.get('ysl', 24)))
    R = 48; LO = 4096
    OSF = OPT.get('osf', '').replace('_', ' ')
    a(f"""
    s_lshl_b32 s{sU}, s{S_J}, 18
    s_lshl_b32 s{S_T+5}, s{S_RB}, 7
    s_add_u32 s{sU}, s{sU}, s{S_T+5}
    s_lshl_b32 s{S_T+5}, s{S_BW}, 5
    s_add_u32 s{sU}, s{sU}, s{S_T+5}
    s_add_u32 s{sU}, s{sU}, {YTB}
    s_add_u32 s{sU2}, s{sU}, {32*4096}
    buffer_load_dwordx4 {vr(R,4)}, v{vYl}, s[{S_WS}:{S_WS+3}], s{sU} offen{LF}
    buffer_load_dwordx4 {vr(R+4,4)}, v{vYl}, s[{S_WS}:{S_WS+3}], s{sU2} offen{LF}
    s_lshl_b32 s{sU}, s{S_RB}, 2
    s_add_u32 s{sU}, s{sU}, s{S_BW}
    s_mul_i32 s{sU}, s{sU}, {16*1792}
    s_add_u32 s{sU}, s{sU}, s{sWb}
    s_add_u32 s{sU}, s{sU}, 896
    s_add_u32 s{sU2}, s{sU}, {8*1792}
    s_waitcnt vmcnt(0)
    """)
    tr_lds(vLin, vYr, vYw, vYq, R, LO)
    a(f"""
    s_waitcnt lgkmcnt(1)
    buffer_store_dwordx4 {vr(R,4)}, v{vYs}, s[{S_OUT}:{S_OUT+3}], s{sU} offen{OSF}
    s_waitcnt lgkmcnt(0)
    buffer_store_dwordx4 {vr(R+4,4)}, v{vYs}, s[{S_OUT}:{S_OUT+3}], s{sU2} offen{OSF}
    """)
    stamp(5)
    stamp_save(0, 6)
    outproj()

OACC = [220, 236]
def outproj():
    ACC = OACC; B0 = 28; vAd = 1
    sO, sTodo, sNeed, sA, sOut, sLo, sRest, sN = [S_T + i for i in range(8)]
    sH = [76 + k for k in range(8)]
    a(f"""
    s_lshl_b32 s{sO}, s{S_RB}, 1
    s_add_u32 s{sO}, s{sO}, s{S_C}
    s_mul_i32 s{sOut}, s{sO}, {32*1792}
    s_add_u32 s{sOut}, s{sOut}, s{sWb}
    s_lshl_b32 s{sA}, s{S_NH}, 6
    s_add_u32 s{sOut}, s{sOut}, s{sA}
    s_lshl_b32 s{sO}, s{sO}, 15
    s_add_u32 s{sO}, s{sO}, {OBUF}
    s_lshr_b32 s{sLo}, s{S_NONCE}, 16
    s_lshl_b32 s{sNeed}, 0x5555, s{S_NH}
    """)
    lds_wait(vSyB, C_WU, 4, vSg, 4)
    lds_wait(vSyB, C_AH, int(OPT.get('ah', 13)), vSg, int(OPT.get('asl', 24)))
    stamp(0)
    LP = a.lab("Lop"); LD_ = a.lab("Lod"); LN = a.lab("Lon"); LZ = a.lab("Loz")
    I = [a.lab("Loi") for _ in range(9)]; W = [a.lab("Low") for _ in range(9)]
    a(f"""
    s_setprio {OPT.get('oprio', 3)}
    s_mov_b32 s{S3}, 0
    s_mov_b32 s{sTodo}, 0
    {LP}:
    s_add_u32 s{S3}, s{S3}, 1
    s_cmp_gt_u32 s{S3}, {SPIN_MAX}
    s_cbranch_scc1 {LD_}
    s_andn2_b32 s{sRest}, s{sNeed}, s{sTodo}
    s_cbranch_scc0 {LN}
    s_mov_b32 exec_hi, 0
    s_mov_b32 exec_lo, s{sRest}
    buffer_load_ushort v{T+1}, v{vFa}, s[{S_WS}:{S_WS+3}], s{sO} offen offset:2046 sc1
    s_mov_b64 exec, -1
    {LN}:
    s_bcnt1_i32_b32 s{sN}, s{sTodo}
    s_cbranch_scc0 {LZ}
    """)
    for n in range(1, 8): a(f"s_cmp_eq_u32 s{sN}, {n}\ns_cbranch_scc1 {I[n]}")
    for k in range(7, -1, -1):
        R = B0 + 24 * k
        a(f"""
        {I[k+1]}:
        s_ff1_i32_b32 s{sH[k]}, s{sTodo}
        s_bitset0_b32 s{sTodo}, s{sH[k]}
        s_lshl_b32 s{sA}, s{sH[k]}, 11
        s_add_u32 s{sA}, s{sA}, s{sO}
        buffer_load_dwordx4 {vr(R,4)}, v{vWl}, s[{S_WS}:{S_WS+3}], s{sA} offen{LF}
        buffer_load_dwordx4 {vr(R+4,4)}, v{vWl}, s[{S_WS}:{S_WS+3}], s{sA} offen offset:1024{LF}
        s_mul_i32 s{sA}, s{sH[k]}, {28*128}
        v_add_u32 v{vAd}, s{sA}, v{vW0}
        """)
        for ct in range(2):
            for f in range(2):
                for i2 in range(2): a(f"ds_read_b64_tr_b16 {vr(R+8+8*ct+4*f+2*i2,2)}, v{vAd} offset:{(14*f+4*i2)*128 + 64*ct}")
    a("s_waitcnt lgkmcnt(0)")
    for n in range(1, 8): a(f"s_cmp_eq_u32 s{sN}, {n}\ns_cbranch_scc1 {W[n]}")
    for k in range(7, -1, -1):
        R = B0 + 24 * k
        a(f"""
        {W[k+1]}:
        s_waitcnt vmcnt({2*k})
        v_xor_b32 v{R+3}, v{R+3}, v{vTag}
        v_xor_b32 v{R+7}, v{R+7}, v{vTag}
        v_or_b32 v{T}, v{R+3}, v{R+7}
        v_cmp_lt_u32 vcc, 0xffff, v{T}
        s_cbranch_vccnz {W[k]}
        s_bitset0_b32 s{sNeed}, s{sH[k]}
        """)
        for f in range(2):
            for ct in range(2):
                a(f"{MFMA} {vr(ACC[ct],16)}, {vr(R+8+8*ct+4*f,4)}, {vr(R+4*f,4)}, {vr(ACC[ct],16)}")
    a(f"""
    {W[0]}:
    s_cmp_eq_u32 s{sNeed}, 0
    s_cbranch_scc1 {LD_}
    v_cmp_eq_u32 vcc, s{sLo}, v{T+1}
    s_and_b32 s{sTodo}, vcc_lo, s{sRest}
    s_branch {LP}
    {LZ}:
    s_waitcnt vmcnt(0)
    v_cmp_eq_u32 vcc, s{sLo}, v{T+1}
    s_and_b32 s{sTodo}, vcc_lo, s{sRest}
    s_cbranch_scc1 {LP}
    s_sleep {OPT.get('osl', 6)}
    s_branch {LP}
    {LD_}:
    s_nop 7
    """)
    stamp(1)
    OSF = OPT.get('osf', '').replace('_', ' ')
    l1 = a.lab("Lox")
    a(f"s_cmp_eq_u32 s{S_NH}, 0\ns_cbranch_scc1 {l1}")
    for mine in (1, 0):
        for k in range(4): a(f"ds_write_b128 v{vLin}, {vr(ACC[1-mine]+4*k,4)} offset:{1024*k}")
        pair_signal(6)
        pair_wait(6)
        for k in range(4): a(f"ds_read_b128 {vr(B0+4*k,4)}, v{vPar} offset:{1024*k}")
        for h in range(2):
            a(f"s_waitcnt lgkmcnt({2 - 2*h})")
            for k in range(8*h, 8*h+8, 2): a(f"v_pk_add_f32 {vr(B0+k,2)}, {vr(B0+k,2)}, {vr(ACC[mine]+k,2)}")
            for k in range(4*h, 4*h+4): a(f"v_cvt_pk_bf16_f32 v{B0+16+k}, v{B0+2*k}, v{B0+2*k+1}")
            a(f"buffer_store_dwordx4 {vr(B0+16+4*h,4)}, v{vSt}, s[{S_OUT}:{S_OUT+3}], s{sOut} offen offset:{16*h}{OSF}")
        if STAMPS: a("s_waitcnt vmcnt(0)")
        stamp(2)
        stamp_save(1, 3)
        stamp_flush('B')
        a("s_endpgm")
        if mine: a(f"{l1}:")
```
